```python
import torch

def _softmax(x, axis=-1):
    return torch.softmax(x, dim=axis)

def _gelu(x):
    return torch.nn.functional.gelu(x, approximate='tanh')

def _silu(x):
    return torch.nn.functional.silu(x)

def _sigmoid(x):
    return torch.sigmoid(x)

def _layernorm(x, axis=-1, eps=1e-05):
    m = x.mean(dim=axis, keepdim=True)
    v = x.var(dim=axis, keepdim=True, unbiased=False)
    return (x - m) / torch.sqrt(v + eps)

def _scatter_add(tgt, idx, src, axis=0):
    return tgt.clone().index_add_(axis, idx, src)

def _segment_sum(src, seg, n):
    out = torch.zeros((n,) + src.shape[1:], dtype=src.dtype)
    return out.index_add_(0, seg, src)

def _pad(x, pw):
    flat = tuple((v for pair in reversed(pw) for v in pair))
    return torch.nn.functional.pad(x, flat)
kernel_name = 'adaLN_cond__ssm_conv_s4__dense_activation_squared_relu__prompt'

def setup_inputs():

    _w = lambda a: (lambda t: t.to(torch.bfloat16) if t.is_floating_point() else t)(torch.as_tensor(a))

    def _A_setup():
        B, L, D, N = (1, 2048, 512, 128)
        A_re = -(lambda _x: torch.exp(torch.as_tensor(_x)))((lambda *s: torch.randn(*s, dtype=torch.bfloat16) * 3.2)(D, N))
        A_im = torch.pi * (lambda *s: torch.randn(*s, dtype=torch.bfloat16) * 0.1)(D, N)
        B_re = (lambda *s: torch.randn(*s, dtype=torch.bfloat16) * 0.2)(D, N)
        B_im = (lambda *s: torch.randn(*s, dtype=torch.bfloat16) * 0.2)(D, N)
        C_re = (lambda *s: torch.randn(*s, dtype=torch.bfloat16) * 0.2)(D, N)
        C_im = (lambda *s: torch.randn(*s, dtype=torch.bfloat16) * 0.2)(D, N)
        log_dt = (lambda *s: torch.randn(*s, dtype=torch.bfloat16) * 0.1)(D) * 0.5 - 4.0
        Dskip = (lambda *s: torch.randn(*s, dtype=torch.bfloat16) * 0.2)(D)
        return {'u': _w((lambda *s: torch.randn(*s, dtype=torch.bfloat16) * 0.05)(B, L, D)), 'A_re': _w(A_re), 'A_im': _w(A_im), 'B_re': _w(B_re), 'B_im': _w(B_im), 'C_re': _w(C_re), 'C_im': _w(C_im), 'log_dt': _w(log_dt), 'Dskip': _w(Dskip)}
    _A_in = _A_setup()

    def _B_setup():
        B, S, D, F = (1, 2048, 512, 1376)
        return {'x': _w((lambda *s: torch.randn(*s, dtype=torch.bfloat16) * 0.05)(B, S, D)), 'w1': _w((lambda *s: torch.randn(*s, dtype=torch.bfloat16) * 0.05)(D, F)), 'b1': _w((lambda *s: torch.randn(*s, dtype=torch.bfloat16) * 0.4)(F)), 'w2': _w((lambda *s: torch.randn(*s, dtype=torch.bfloat16) * 0.05)(F, D)), 'b2': _w((lambda *s: torch.randn(*s, dtype=torch.bfloat16) * 3.2)(D))}
    _B_in = _B_setup()
    return {'A_u': _A_in['u'], 'A_A_re': _A_in['A_re'], 'A_A_im': _A_in['A_im'], 'A_B_re': _A_in['B_re'], 'A_B_im': _A_in['B_im'], 'A_C_re': _A_in['C_re'], 'A_C_im': _A_in['C_im'], 'A_log_dt': _A_in['log_dt'], 'A_Dskip': _A_in['Dskip'], 'B_x': _B_in['x'], 'B_w1': _B_in['w1'], 'B_b1': _B_in['b1'], 'B_w2': _B_in['w2'], 'B_b2': _B_in['b2'], 'c': _w((lambda *s: torch.randn(*s, dtype=torch.bfloat16) * 0.1)(1, 512) * 8.0), 'w_mod': _w((lambda *s: torch.randn(*s, dtype=torch.bfloat16) * 0.1)(512, 6 * 512) * 512 ** (-0.5) * 8.0)}

def reference(A_u, A_A_re, A_A_im, A_B_re, A_B_im, A_C_re, A_C_im, A_log_dt, A_Dskip, B_x, B_w1, B_b1, B_w2, B_b2, c, w_mod):

    def _A_ref(u, A_re, A_im, B_re, B_im, C_re, C_im, log_dt, Dskip):
        Bsz, L, D = u.shape
        dt = torch.exp(log_dt)[:, None]
        A = A_re + 1j * A_im
        Bc = B_re + 1j * B_im
        Cc = C_re + 1j * C_im
        logdA = dt * A
        dB = dt * Bc
        l = (lambda x, dt: x.to(dt))(torch.arange(L), A_re.dtype)
        P = torch.exp(logdA[:, :, None] * l[None, None, :])
        K = torch.einsum('dn,dnl,dn->dl', Cc, P, dB).real
        L2 = 2 * L
        Kp = _pad(K, ((0, 0), (0, L)))
        up = (lambda x, *d: x.permute(*d))(u, 0, 2, 1)
        up = _pad(up, ((0, 0), (0, 0), (0, L)))
        Kf = (lambda x, axes=(-2, -1): torch.fft.rfft2(x.float(), dim=axes))(Kp[:, None, :], axes=(-2, -1))
        Uf = (lambda x, axes=(-2, -1): torch.fft.rfft2(x.float(), dim=axes))(up[:, :, None, :], axes=(-2, -1))
        Yf = Uf * Kf[None, :, :, :]
        y = (lambda x, s, axes=(-2, -1): torch.fft.irfft2(x, s=s, dim=axes).to(torch.bfloat16))(Yf, (1, L2), axes=(-2, -1))[:, :, 0, :L]
        y = (lambda x, *d: x.permute(*d))(y, 0, 2, 1) + u * Dskip[None, None, :]
        return y

    def _B_ref(x, w1, b1, w2, b2):
        h = torch.einsum('bsd,df->bsf', x, w1) + b1
        zero = torch.zeros_like(h)
        r = torch.where(h > zero, h, zero)
        h = r * r
        out = torch.einsum('bsf,fd->bsd', h, w2) + b2
        return out
    x = A_u
    mod = (_silu(c) @ w_mod).reshape(c.shape[0], 6, 1, -1)
    sa, ca, ga, sb, cb, gb = (mod[:, 0].clone(), mod[:, 1].clone(), mod[:, 2].clone(), mod[:, 3].clone(), mod[:, 4].clone(), mod[:, 5].clone())
    h = _layernorm(x, axis=-1) * (1 + ca) + sa
    x = x + ga * _A_ref(h, A_A_re, A_A_im, A_B_re, A_B_im, A_C_re, A_C_im, A_log_dt, A_Dskip)
    h = _layernorm(x, axis=-1) * (1 + cb) + sb
    x = x + gb * _B_ref(h, B_w1, B_b1, B_w2, B_b2)
    return x
```

```python
import hazard
NAME="adaLN_cond__ssm_conv_s4__dense_activation_squared_relu__prompt"
KN=NAME+"_kernel"

class Asm:
    def __init__(self): self.L=[]; self.uid=0
    def __call__(self, s):
        for l in s.strip("\n").split("\n"):
            l=l.rstrip()
            if not l.strip(): continue
            ls=l.strip()
            if ls.endswith(':') and ' ' not in ls: self.L.append(ls)
            else: self.L.append("    "+ls)
    def lab(self, p="L"):
        self.uid+=1; return f"{p}_{self.uid}"
    def interleave(self, *streams):
        streams=[list(s) for s in streams]
        while any(streams):
            for s in streams:
                if s: self(s.pop(0))

HEADER_COMMENT = """; adaLN-conditioned S4 conv block + squared-ReLU FFN, single persistent launch (one workgroup per CU).
"""
def finish(a, launch, vgpr=256, sgpr=100, accum=256):
    body=hazard.fix(a.L, verbose=True)
    s=HEADER_COMMENT+launch+"\n"
    s+='.amdgcn_target "amdgcn-amd-amdhsa--gfx950"\n.text\n'
    s+=f".globl {KN}\n.p2align 8\n.type {KN},@function\n{KN}:\n"
    s+="\n".join(body)+"\n"
    s+=f""".section .rodata,"a"
.p2align 6
.amdhsa_kernel {KN}
  .amdhsa_next_free_vgpr {vgpr}
  .amdhsa_next_free_sgpr {sgpr}
  .amdhsa_accum_offset {accum}
  .amdhsa_group_segment_fixed_size 0
  .amdhsa_kernarg_size 152
  .amdhsa_user_sgpr_count 2
  .amdhsa_user_sgpr_kernarg_segment_ptr 1
  .amdhsa_system_sgpr_workgroup_id_x 1
.end_amdhsa_kernel
"""
    return s
```

```python
import re

TRANS = ("v_exp_f32","v_log_f32","v_rcp_f32","v_rsq_f32","v_sqrt_f32","v_sin_f32","v_cos_f32","v_rcp_iflag_f32")
reg_re = re.compile(r"(?<![\w.])(-|abs\()?([vas])(\d+)(?![\w])|(?<![\w.])([vas])\[(\d+):(\d+)\]|(?<![\w.])(vcc|exec|m0|scc)(?:_lo|_hi)?(?![\w])")

def regs_of(op):
    out=set()
    for m in reg_re.finditer(op):
        if m.group(2): out.add((m.group(2),int(m.group(3))))
        elif m.group(4):
            for i in range(int(m.group(5)),int(m.group(6))+1): out.add((m.group(4),i))
        elif m.group(7): out.add((m.group(7),0))
    return out

def split_ops(rest):
    ops=[];depth=0;cur=""
    for ch in rest:
        if ch=='[': depth+=1
        if ch==']': depth-=1
        if ch==',' and depth==0: ops.append(cur.strip());cur=""
        else: cur+=ch
    if cur.strip(): ops.append(cur.strip())
    return ops

class Ins:
    def __init__(self,text):
        self.text=text
        t=text.split(';')[0].strip()
        self.label=None; self.mn=None
        self.defs=set(); self.uses=set()
        if not t: return
        if t.endswith(':'): self.label=t[:-1]; return
        if t.startswith('.'): return
        parts=t.split(None,1)
        self.mn=mn=parts[0]
        rest=parts[1] if len(parts)>1 else ""
        ops=split_ops(rest)
        self.mods=""
        if ops:
            last=ops[-1]
            mm=re.match(r"^(\S+(?:\s*\[[^\]]*\])?\)?)\s+(.*)$", last)
            if mm and not last.startswith('hwreg') :
                ops[-1]=mm.group(1); self.mods=mm.group(2)
        self.ops=ops
        self.is_valu = mn.startswith('v_') and not mn.startswith('v_mfma')
        self.is_mfma = mn.startswith('v_mfma')
        self.is_vmem = mn.startswith(('buffer_','global_','flat_'))
        self.is_ds = mn.startswith('ds_')
        self.is_salu = mn.startswith('s_')
        self.is_trans = any(mn.startswith(x) for x in TRANS)
        self.is_dpp = any(k in rest for k in ('row_shr','row_shl','row_bcast','quad_perm','row_ror','wave_sh','row_mirror','row_half_mirror','wave_ro'))
        self.is_permlane = mn.startswith('v_permlane')
        self.is_rdlane = mn.startswith(('v_readlane','v_readfirstlane'))
        R=[regs_of(o) for o in ops]
        store = mn.startswith(('buffer_store','global_store','ds_write','buffer_atomic','global_atomic','ds_add_u32','ds_add_f32'))
        lds_dma = self.is_vmem and (' lds' in ' '+self.mods or mn.startswith('global_load_lds'))
        self.lds_dma=lds_dma
        if mn.startswith(('s_cmp','s_bitcmp','s_cbranch','s_branch','s_waitcnt','s_barrier','s_nop','s_sleep','s_endpgm','s_setprio')):
            for r in R: self.uses|=r
            if mn.startswith('s_cbranch_vcc'): self.uses.add(('vcc',0))
            if mn.startswith('s_cbranch_exec'): self.uses.add(('exec',0))
        elif store or lds_dma:
            for r in R: self.uses|=r
            if lds_dma: self.uses.add(('m0',0))
        elif mn.startswith('v_cmp'):
            self.defs|=R[0]
            for r in R[1:]: self.uses|=r
        elif self.is_permlane and 'swap' in mn:
            self.defs|=R[0]|R[1]; self.uses|=R[0]|R[1]
        elif mn in ('v_add_co_u32','v_sub_co_u32','v_addc_co_u32','v_subb_co_u32','v_mad_u64_u32'):
            self.defs|=R[0]|R[1]
            for r in R[2:]: self.uses|=r
        else:
            if R: self.defs|=R[0]
            for r in R[1:]: self.uses|=r
            if mn.startswith(('v_fmac','v_dot2c','v_pk_fmac','v_mac')) : self.uses|=R[0]
            if self.is_dpp and R: self.uses|=R[0]
            if mn.startswith('v_cndmask') and len(ops)==3: self.uses.add(('vcc',0))
            if mn.startswith(('s_and_saveexec','s_or_saveexec')): self.defs.add(('exec',0)); self.uses.add(('exec',0))
            if mn.startswith('v_writelane'): self.uses|=R[0]
            if ('d16' in mn) and R: self.uses|=R[0]
        if self.is_mfma:
            self.passes = 8 if '32x32x16' in mn else (4 if '16x16x32' in mn else 16)
            self.D=R[0]; self.A=R[1]; self.B=R[2]; self.C=R[3] if len(R)>3 else set()
        self.wide_store = self.is_vmem and store and any(k in mn for k in ('x3','x4'))
        if self.wide_store:
            self.sdata = R[0] if mn.startswith('buffer') else R[1]
    def states(self):
        if self.mn=='s_nop': return int(self.ops[0],0)+1
        return 1 if self.mn else 0

def isv(r): return r[0] in ('v','a')
def iss(r): return r[0] in ('s','vcc')

def required(prev, cur):
    n=0
    if prev.mn is None: return 0
    if prev.is_valu:
        vw={r for r in prev.defs if isv(r)}
        sw={r for r in prev.defs if iss(r)}
        if vw:
            if cur.is_valu and cur.is_dpp and vw & cur.uses: n=max(n,2)
            if cur.is_valu and cur.is_permlane and vw & cur.uses: n=max(n,2)
            if cur.is_valu and cur.is_rdlane and vw & cur.uses: n=max(n,1)
            if cur.is_mfma and vw & cur.uses: n=max(n,2)
            if prev.is_trans and cur.is_valu and not cur.is_trans and vw & cur.uses: n=max(n,1)
            if prev.is_trans and (cur.is_mfma) and vw & cur.uses: n=max(n,2)
        if sw:
            if cur.is_valu and sw & cur.uses:
                n=max(n,4 if cur.mn.startswith(('v_readlane','v_writelane')) else 2)
            if cur.is_vmem and sw & cur.uses: n=max(n,5)
            if cur.is_mfma and sw & cur.uses: n=max(n,2)
        if ('exec',0) in prev.defs:
            n=max(n,5 if (cur.is_valu or cur.is_mfma) else 0)
    if prev.is_mfma:
        D=prev.D; P=prev.passes
        big={2:5,4:8,8:12,16:20}[P]; ov={2:4,4:6,8:10,16:18}[P]; war={2:1,4:3,8:7,16:15}[P]
        if cur.is_mfma:
            if D & (cur.A|cur.B): n=max(n,big)
            if D & cur.C:
                if not (cur.C==D and cur.passes==P): n=max(n,ov)
            if D & cur.D and not (D & cur.C): n=max(n,big)
        elif cur.mn and (cur.is_valu or cur.is_vmem or cur.is_ds):
            if D & (cur.uses|cur.defs): n=max(n,big)
            if cur.is_valu and (prev.C & cur.defs): n=max(n,war)
    if prev.mn and getattr(prev,'wide_store',False):
        if cur.is_valu and (prev.sdata & cur.defs): n=max(n,2)
        elif cur.mn and (prev.sdata & cur.defs) and not cur.is_salu: n=max(n,1)
    if prev.is_salu if prev.mn else False:
        if ('m0',0) in prev.defs and cur.mn and getattr(cur,'lds_dma',False): n=max(n,1)
    return n

MAXW=20
def fix(lines, verbose=False):
    ins=[Ins(l) for l in lines]
    label_in={}
    out=None
    for it in range(3):
        out=[]; hist=[]
        added=0
        reachable=True
        for I in ins:
            if I.label is not None:
                hs=label_in.get(I.label,[])
                merged={}
                for h in ([hist] if reachable else [])+hs:
                    for (p,a) in h:
                        k=id(p)
                        if k not in merged or a<merged[k][1]: merged[k]=(p,a)
                hist=sorted(merged.values(), key=lambda x:-x[1])
                reachable=True
                out.append(I.text); continue
            if I.mn is None:
                out.append(I.text); continue
            need=0
            for (p,a) in hist:
                r=required(p,I)
                if r-a>need: need=r-a
            if need>0:
                added+=need
                k=need
                while k>0:
                    c=min(k,16)
                    out.append(f"    s_nop {c-1}   ; hazard")
                    k-=c
                hist=[(p,a+need) for (p,a) in hist]
            st=I.states()
            hist=[(p,a+st) for (p,a) in hist if a+st<=MAXW]
            hist.append((I,0))
            out.append(I.text)
            if I.mn.startswith(('s_cbranch','s_branch')):
                tgt=I.ops[0]
                label_in.setdefault(tgt,[])
                label_in[tgt]=[h for h in label_in[tgt] if h is not None]
                label_in[tgt].append(list(hist))
                if len(label_in[tgt])>8: label_in[tgt]=label_in[tgt][-8:]
                if I.mn=='s_branch': reachable=False; hist=[]
            if I.mn=='s_endpgm': reachable=False; hist=[]
    if verbose: print("hazard nops added:",added)
    return out
```

```python
import sys, os
from base import *
EXP=set(os.environ.get('EXP','').split(','))

OFF_E   =0x0
OFF_F2  =0x1000
OFF_F3  =0x2000
OFF_F2W =0x3000
OFF_STAT=0x4000
OFF_MOD =0x8000
OFF_S   =0x10000
OFF_T   =0x12000
OFF_XT  =0x100000
OFF_W1P =0x500000
OFF_W2F =0x700000
OFF_X2T =0x900000
OFF_H   =0xB00000
OFF_DBG =0x2000000
WS_SIZE =268435456
CS=4416; KCH=4*CS
L_KC=0
PL=1568; HCH=4*PL
L_HP=L_KC+2*KCH
L_XP=L_HP+2*HCH
L_EG=L_XP+8192
EGW=17408
L_EX=L_EG+4*EGW
L_MISC=L_EX+16384
L_MODP=L_MISC
L_CNT=L_MISC+512
L_W2S=L_MISC+1024
L_Y=L_EG; YW=9216
LDS_BYTES=163840
SPIN=4000
TAGC=0x9E3779B9

S_WAVE=3; S_TAG=4; S_P=5; S_XCD=6; S_IDX=7
SRD_WS=8; SRD_OUT=12; SRD_A=16; SRD_B=20; SRD_C=24
P_X=36;P_ARE=38;P_AIM=40;P_BRE=42;P_BIM=44;P_CRE=46;P_CIM=48;P_LDT=50
P_DSK=52;P_BX=54;P_W1=56;P_B1=58;P_W2=60;P_B2=62;P_C=64;P_WM=66;P_OUT=68;P_DBG=70;P_WS=72
LOG2E=0x3fb8aa3b; LOG2E_LO=0x32a57060; LN2=0x3f317218; INV2PI=0x3e22f983

def srd(a, r, p, size):
    a(f"""s_mov_b32 s{r}, s{p}
s_and_b32 s{r+1}, s{p+1}, 0xffff
s_mov_b32 s{r+2}, {size}
s_mov_b32 s{r+3}, 0x20000""")

def cmul(dst,x,y,tmp):
    return [f"v_pk_mul_f32 v[{tmp}:{tmp+1}], v[{x}:{x+1}], v[{y}:{y+1}] op_sel_hi:[1,0]",
            f"v_pk_fma_f32 v[{dst}:{dst+1}], v[{x}:{x+1}], v[{y}:{y+1}], v[{tmp}:{tmp+1}] op_sel:[1,1,0] op_sel_hi:[0,1,1] neg_lo:[1,0,0]"]

def cexp(dst,q,va,vb,t0,t1,t2):
    return [f"v_mul_f32 v{t0}, {q}, v{va}",
            f"v_mul_f32 v{t1}, {q}, v{vb}",
            f"v_exp_f32 v{t0}, v{t0}",
            f"v_fract_f32 v{t1}, v{t1}",
            f"v_cos_f32 v{t2}, v{t1}",
            f"v_sin_f32 v{t1}, v{t1}",
            f"v_mul_f32 v{dst}, v{t0}, v{t2}",
            f"v_mul_f32 v{dst+1}, v{t0}, v{t1}"]

def f32(x):
    import struct
    return "0x%08x"%struct.unpack('<I',struct.pack('<f',x))[0]

def rho(r,hi): return (r&3)+8*(r>>2)+4*hi
ROWS=[[0,1,2,3,4,5,6,7,512,516,520,1024,1032,1280,1288],
      [256,256,258,260,260,260,262,264,768,772,776,1536,1544,1792,1800]]
GROWS={}
for hi in (0,1):
    for r,q in enumerate(ROWS[hi]): GROWS.setdefault(q,[]).append(rho(r,hi))

STAMPS=False
def stamp(a,i):
    if not STAMPS: return
    a(f"""s_memtime s[78:79]
s_waitcnt lgkmcnt(0)
s_mov_b32 s{80+i}, s78""")
def dump_stamps(a,n):
    if not STAMPS: return
    l=a.lab("L_nostamp")
    a(f"""s_and_b32 s30, s{S_WAVE}, 3
s_cmp_lg_u32 s30, 0
s_cbranch_scc1 {l}
s_lshr_b32 s30, s{S_WAVE}, 2
s_lshl_b32 s30, s30, 6
s_lshl_b32 s31, s2, 7
s_add_u32 s30, s30, s31
s_add_u32 s30, s30, {OFF_DBG+0x3000000}
v_mov_b32 v2, 0
s_mov_b64 exec, 1""")
    for i in range(n):
        a(f"v_mov_b32 v3, s{80+i}\nbuffer_store_dword v3, v2, s[{SRD_WS}:{SRD_WS+3}], s30 offen offset:{4*i}")
    a(f"s_mov_b64 exec, -1\n{l}:")

def prologue(a):
    a(f"""s_cmp_ge_u32 s2, 256
s_cbranch_scc1 L_end
s_memtime s[80:81]
s_load_dwordx16 s[36:51], s[0:1], 0
s_load_dwordx16 s[52:67], s[0:1], 64
s_load_dwordx4 s[68:71], s[0:1], 128
s_load_dwordx2 s[72:73], s[0:1], 144
v_lshrrev_b32 v2, 6, v0
v_and_b32 v1, 63, v0
s_and_b32 s{S_XCD}, s2, 7
v_readfirstlane_b32 s{S_WAVE}, v2
s_lshr_b32 s{S_IDX}, s2, 3
s_lshl_b32 s{S_P}, s{S_XCD}, 5
s_add_u32 s{S_P}, s{S_P}, s{S_IDX}
s_waitcnt lgkmcnt(0)""")
    srd(a,SRD_WS,P_WS,WS_SIZE)
    stamp(a,1)
    a(f"""v_mov_b32 v2, 0
buffer_load_dword v255, v2, s[{SRD_WS}:{SRD_WS+3}], 0 offen sc1
s_cmp_ge_u32 s{S_WAVE}, 4
s_cbranch_scc1 L_H_P1""")

def get_tag(a):
    a(f"""v_readfirstlane_b32 s{S_TAG}, v255
s_add_u32 s{S_TAG}, s{S_TAG}, {TAGC}""")

def m_p1(a):
    a(f"""s_lshr_b32 s28, s{S_WAVE}, 1          ; ch
s_lshl_b32 s29, s{S_P}, 1
s_add_u32 s29, s29, s28                ; d
s_and_b32 s30, s{S_WAVE}, 1
s_lshl_b32 s31, s29, 8
s_lshl_b32 s32, s30, 7
s_add_u32 s31, s31, s32                ; d*256 + half*128
v_lshlrev_b32 v9, 1, v1
v_add_u32 v9, s31, v9
global_load_ushort v2, v9, s[{P_ARE}:{P_ARE+1}]
global_load_ushort v3, v9, s[{P_AIM}:{P_AIM+1}]
global_load_ushort v4, v9, s[{P_BRE}:{P_BRE+1}]
global_load_ushort v5, v9, s[{P_BIM}:{P_BIM+1}]
global_load_ushort v6, v9, s[{P_CRE}:{P_CRE+1}]
global_load_ushort v7, v9, s[{P_CIM}:{P_CIM+1}]
s_lshl_b32 s32, s29, 1
v_mov_b32 v10, s32
global_load_ushort v8, v10, s[{P_LDT}:{P_LDT+1}]""")
    a(f"""v_mov_b32 v12, 0
v_mov_b32 v13, 0
v_mov_b32 v14, 0
v_mov_b32 v15, 0
v_lshrrev_b32 v10, 5, v1                ; 0/1
s_lshl_b32 s32, s{S_WAVE}, 1
v_add_u32 v10, s32, v10
v_mul_u32_u24 v10, {PL}, v10
v_and_b32 v11, 31, v1
v_lshlrev_b32 v11, 4, v11
v_add_u32 v10, v10, v11
ds_write_b128 v10, v[12:15] offset:{L_HP}
v_lshrrev_b32 v10, 3, v1
v_mul_u32_u24 v10, {CS}, v10
v_and_b32 v11, 7, v1
v_lshlrev_b32 v11, 4, v11
v_add_u32 v10, v10, v11
ds_write_b128 v10, v[12:15] offset:{L_KC+16+4064}
s_waitcnt lgkmcnt(0)
s_barrier""")
    a(f"""s_mul_i32 s33, s{S_WAVE}, {EGW}
s_add_u32 s33, s33, {L_EG}
v_lshlrev_b32 v60, 2, v1
v_add_u32 v60, s33, v60
v_add_u32 v61, {32*272}, v60
s_mov_b32 s34, {LOG2E}
s_mov_b32 s35, {LOG2E_LO}
s_waitcnt vmcnt(0)""")
    stamp(a,2)
    get_tag(a)
    a(f"""v_lshlrev_b32 v2, 16, v2
v_lshlrev_b32 v3, 16, v3
v_lshlrev_b32 v4, 16, v4
v_lshlrev_b32 v5, 16, v5
v_lshlrev_b32 v6, 16, v6
v_lshlrev_b32 v7, 16, v7
v_lshlrev_b32 v8, 16, v8
v_mul_f32 v10, s34, v8
v_fma_f32 v11, v8, s34, -v10
v_fma_f32 v11, v8, s35, v11
v_exp_f32 v10, v10
v_mul_f32 v11, {LN2}, v11
v_fma_f32 v10, v10, v11, v10
v_cvt_pk_bf16_f32 v10, v10, v10
v_lshlrev_b32 v8, 16, v10
v_mul_f32 v2, v8, v2                    ; zr
v_mul_f32 v3, v8, v3                    ; zi
v_mul_f32 v4, v8, v4
v_mul_f32 v5, v8, v5
v_mul_f32 v10, v6, v4
v_mul_f32 v11, v6, v5
v_fma_f32 v10, -v7, v5, v10             ; wr
v_fma_f32 v11, v7, v4, v11              ; wi
v_mul_f32 v12, s34, v2
v_mul_f32 v13, {INV2PI}, v3""")
    stamp(a,14)
    W=10; U1=14;U2=16;U4=18;U8=20;U16=22;U256=24;U512=26;U1024=28
    a(f"""s_mov_b32 s74, {f32(8.0)}
s_mov_b32 s75, {f32(256.0)}
s_mov_b32 s76, {f32(512.0)}
s_mov_b32 s77, {f32(1024.0)}""")
    a.interleave(cexp(U8,"s74",12,13,38,39,40), cexp(U1,"1.0",12,13,41,42,43), cexp(U256,"s75",12,13,44,45,46))
    a.interleave(cexp(U512,"s76",12,13,38,39,40), cexp(U1024,"s77",12,13,41,42,43), cmul(U16,U8,U8,44)+cmul(U2,U1,U1,46))
    for l in cmul(U4,U2,U2,44): a(l)
    stamp(a,15)
    def emitG(q,reg,tmp):
        o=[f"v_cvt_pk_bf16_f32 v{tmp}, v{reg}, v{reg+1}"]
        if 'nods' in EXP: return o
        for r in GROWS[q]: o.append(f"ds_write_b32 v60, v{tmp} offset:{r*272}")
        return o
    def emitE(b,reg,tmp):
        if 'nods' in EXP: return [f"v_cvt_pk_bf16_f32 v{tmp}, v{reg}, -v{reg+1}"]
        return [f"v_cvt_pk_bf16_f32 v{tmp}, v{reg}, -v{reg+1}", f"ds_write_b32 v61, v{tmp} offset:{b*272}"]
    EA=30; EB=32
    sE=[]; sO=[]
    sE+=[f"v_mov_b32 v54, 0x3f80", f"ds_write_b32 v61, v54 offset:0"]
    sE+=[f"v_mov_b32 v{EA}, v{U16}", f"v_mov_b32 v{EA+1}, v{U16+1}"]+emitE(2,EA,54)
    for b in range(4,32,2): sE+=cmul(EA,EA,U16,48)+emitE(b,EA,54)
    sO+=[f"v_mov_b32 v{EB}, v{U8}", f"v_mov_b32 v{EB+1}, v{U8+1}"]+emitE(1,EB,55)
    for b in range(3,32,2): sO+=cmul(EB,EB,U16,50)+emitE(b,EB,55)
    GA=34; GB=36; GC=58
    sG=[]
    sG+=emitG(0,W,56)+cmul(GA,W,U1,52)+emitG(1,GA,56)
    for c in range(2,8): sG+=cmul(GA,GA,U1,52)+emitG(c,GA,56)
    sG+=cmul(GA,W,U256,52)+emitG(256,GA,56)
    sG+=cmul(GB,GA,U8,52)+emitG(264,GB,56)
    for q in (258,260,262): sG+=cmul(GA,GA,U2,52)+emitG(q,GA,56)
    sG+=cmul(GA,W,U512,52)+emitG(512,GA,56)
    sG+=cmul(GB,GA,U4,52)+emitG(516,GB,56)+cmul(GB,GA,U8,52)+emitG(520,GB,56)
    sG+=cmul(GA,GA,U256,52)+emitG(768,GA,56)
    sG+=cmul(GB,GA,U4,52)+emitG(772,GB,56)+cmul(GB,GA,U8,52)+emitG(776,GB,56)
    sG+=cmul(GA,W,U1024,52)+emitG(1024,GA,56)+cmul(GB,GA,U8,52)+emitG(1032,GB,56)
    sG+=cmul(GC,GA,U256,52)+emitG(1280,GC,56)+cmul(GB,GC,U8,52)+emitG(1288,GB,56)
    sG+=cmul(GA,GA,U512,52)+emitG(1536,GA,56)+cmul(GB,GA,U8,52)+emitG(1544,GB,56)
    sG+=cmul(GA,GA,U256,52)+emitG(1792,GA,56)+cmul(GB,GA,U8,52)+emitG(1800,GB,56)
    a.interleave(sE,sO,sG[:len(sG)//2],sG[len(sG)//2:]) if False else a.interleave(sE,sO,sG)
    stamp(a,3)
    if 'hwait' in EXP: a("s_barrier")
    if STAMPS:
        for i in range(100): a("v_add_f32 v2, v2, v2")
        stamp(a,13)
    a(f"""v_and_b32 v62, 31, v1
v_mul_u32_u24 v62, 272, v62
v_lshrrev_b32 v63, 5, v1
v_lshlrev_b32 v63, 4, v63
v_add3_u32 v62, v62, v63, s33
v_add_u32 v63, {32*272}, v62
s_waitcnt lgkmcnt(0)""")
    FA=64
    for s in range(7):
        a(f"ds_read_b128 v[{FA+8*s}:{FA+8*s+3}], v62 offset:{32*s}")
        a(f"ds_read_b128 v[{FA+8*s+4}:{FA+8*s+7}], v63 offset:{32*s}")
    ACC=128
    for s in range(8):
        if s==0:
            a("s_waitcnt lgkmcnt(12)")
        elif s==1:
            a(f"ds_read_b128 v[{FA+56}:{FA+59}], v62 offset:{32*7}")
            a(f"ds_read_b128 v[{FA+60}:{FA+63}], v63 offset:{32*7}")
            a("s_waitcnt lgkmcnt(12)")
        else:
            a(f"s_waitcnt lgkmcnt({2*(7-s)})")
        c = "0" if s==0 else f"v[{ACC}:{ACC+15}]"
        a(f"v_mfma_f32_32x32x16_bf16 v[{ACC}:{ACC+15}], v[{FA+8*s}:{FA+8*s+3}], v[{FA+8*s+4}:{FA+8*s+7}], {c}")
    a(f"""s_lshl_b32 s34, s{S_WAVE}, 12
s_add_u32 s34, s34, {L_EX}
v_lshlrev_b32 v62, 4, v1
v_add_u32 v63, s34, v62
s_xor_b32 s35, s34, 4096
v_add_u32 v62, s35, v62""")
    for g in range(4): a(f"ds_write_b128 v63, v[{ACC+4*g}:{ACC+4*g+3}] offset:{1024*g}")
    a(f"""s_xor_b32 s35, s{S_WAVE}, 1
s_lshl_b32 s35, s35, 12
s_add_u32 s35, s35, {L_EX}
v_lshlrev_b32 v62, 4, v1
v_add_u32 v62, s35, v62
s_waitcnt lgkmcnt(0)""")
    stamp(a,4)
    a("s_barrier")
    stamp(a,5)
    for g in range(4): a(f"ds_read_b128 v[{FA+4*g}:{FA+4*g+3}], v62 offset:{1024*g}")
    a(f"""s_lshr_b32 s28, s{S_WAVE}, 1
s_mul_i32 s28, s28, {KCH}
s_add_u32 s28, s28, {L_KC+16+4080-8}
v_and_b32 v2, 31, v1
v_lshlrev_b32 v2, 4, v2                 ; 16c
v_sub_u32 v2, s28, v2                   ; base - 16c
v_lshrrev_b32 v3, 5, v1                 ; hi
s_mov_b32 s30, 0xaaaaaaaa
s_mov_b32 s31, 0xaaaaaaaa
s_waitcnt lgkmcnt(0)""")
    for i in range(16): a(f"v_add_f32 v{ACC+i}, v{ACC+i}, v{FA+i}")
    def chunk(e, base0, basehi):
        D=84; O=88; K0=4
        a(f"""v_mul_u32_u24 v{K0}, {2*basehi}, v3
v_add_u32 v{K0}, {2*base0}, v{K0}
v_sub_u32 v{K0}, v2, v{K0}
v_add_u32 v{K0+1}, {CS}, v{K0}
v_add_u32 v{K0+2}, {2*CS}, v{K0}
v_add_u32 v{K0+3}, {3*CS}, v{K0}""")
        f=[e[7-j] for j in range(8)]
        for j in range(4): a(f"v_cvt_pk_bf16_f32 v{D+j}, v{f[2*j]}, v{f[2*j+1]}")
        for j in range(3): a(f"v_cvt_pk_bf16_f32 v{O+j}, v{f[2*j+1]}, v{f[2*j+2]}")
        a(f"""ds_write_b128 v{K0}, v[{D}:{D+3}] offset:8
ds_write2_b32 v{K0+2}, v{D}, v{D+1} offset0:1 offset1:2
ds_write2_b32 v{K0+2}, v{D+2}, v{D+3} offset0:3 offset1:4
ds_write_b16 v{K0+1}, v{D} offset:6
ds_write_b96 v{K0+1}, v[{O}:{O+2}] offset:8
ds_write_b16_d16_hi v{K0+1}, v{D+3} offset:20
ds_write_b16 v{K0+3}, v{D} offset:2
ds_write2_b32 v{K0+3}, v{O}, v{O+1} offset0:1 offset1:2
ds_write_b32 v{K0+3}, v{O+2} offset:12
ds_write_b16_d16_hi v{K0+3}, v{D+3} offset:16""")
    R=lambda r: ACC+r
    lo=a.lab("L_kodd"); le=a.lab("L_kend")
    a(f"""s_bitcmp1_b32 s{S_WAVE}, 0
s_cbranch_scc1 {lo}""")
    chunk([R(i) for i in range(8)],0,256)
    a(f"v_cndmask_b32 v8, v{R(11)}, v{R(12)}, s[30:31]")
    chunk([R(11)]*4+[8]+[R(12)]*3,1024,512)
    a(f"s_branch {le}\n{lo}:")
    chunk([R(8)]*3+[R(9)]*3+[R(10)]*2,512,256)
    a(f"v_cndmask_b32 v8, v{R(13)}, v{R(14)}, s[30:31]")
    chunk([R(13)]*4+[8]+[R(14)]*3,1280,512)
    a(f"{le}:")
    a("s_waitcnt lgkmcnt(0)")
    stamp(a,6)
    a("s_barrier")
    stamp(a,7)

def dpp_reduce(regs, full=True):
    o=[]
    for sh in (1,2,4,8):
        for r in regs: o.append(f"v_add_f32_dpp v{r}, v{r}, v{r} row_shr:{sh} row_mask:0xf bank_mask:0xf")
    for r in regs: o.append(f"v_add_f32_dpp v{r}, v{r}, v{r} row_bcast:15 row_mask:0xa bank_mask:0xf")
    if full:
        for r in regs: o.append(f"v_add_f32_dpp v{r}, v{r}, v{r} row_bcast:31 row_mask:0xc bank_mask:0xf")
    return o

def gemv16(a, nvec, vecregs, wregs, accbase):
    for v in range(nvec):
        for k in range(8): a(f"v_mov_b32 v{accbase+8*v+k}, 0")
    for i in range(4):
        for v in range(nvec):
            lo,hi=vecregs[v][i]
            for k in range(4):
                a(f"v_dot2c_f32_bf16 v{accbase+8*v+2*k}, v{wregs[i]+k}, v{lo}")
                a(f"v_dot2c_f32_bf16 v{accbase+8*v+2*k+1}, v{wregs[i]+k}, v{hi}")

def h_p1(a):
    a("L_H_P1:")
    a(f"s_sub_u32 s28, s{S_WAVE}, 4            ; hw")
    srd(a,SRD_A,P_X,2097152)
    a(f"""s_lshl_b32 s29, s28, 8
v_lshlrev_b32 v2, 2, v1
v_add_u32 v2, s29, v2                   ; (64hw+lane)*4
s_lshl_b32 s30, s2, 13                  ; j*8192
s_add_u32 s31, s30, 4096""")
    for t in range(8):
        so = "s30" if t<4 else "s31"
        a(f"buffer_load_dword v{10+2*t}, v2, s[{SRD_A}:{SRD_A+3}], {so} offen offset:{1024*(t&3)}")
    a(f"""s_lshl_b32 s32, s28, 11
s_add_u32 s32, s32, s30
v_lshlrev_b32 v3, 4, v1
buffer_load_dwordx4 v[26:29], v3, s[{SRD_A}:{SRD_A+3}], s32 offen
buffer_load_dwordx4 v[30:33], v3, s[{SRD_A}:{SRD_A+3}], s32 offen offset:1024""")
    srd(a,SRD_B,P_WM,3145728)
    srd(a,SRD_C,P_C,1024)
    a(f"""s_mul_i32 s33, s{S_XCD}, 24
s_add_u32 s33, s33, s{S_IDX}
v_and_b32 v4, 31, v1
s_lshl_b32 s34, s28, 7
v_add_u32 v4, s34, v4
v_mul_u32_u24 v5, 6144, v4
v_lshrrev_b32 v6, 5, v1
v_lshlrev_b32 v6, 4, v6
v_add_u32 v5, v5, v6
v_lshlrev_b32 v4, 1, v4
s_lshl_b32 s34, s33, 5""")
    lskip=a.lab("L_nomodld")
    a(f"s_cmp_ge_u32 s2, 192\ns_cbranch_scc1 {lskip}")
    for i in range(4):
        a(f"buffer_load_dwordx4 v[{36+4*i}:{39+4*i}], v5, s[{SRD_B}:{SRD_B+3}], s34 offen")
        if i<3: a(f"s_add_u32 s34, s34, {32*6144}")
    for i in range(4):
        a(f"buffer_load_ushort v{52+i}, v4, s[{SRD_C}:{SRD_C+3}], 0 offen offset:{64*i}")
    a(f"{lskip}:")
    a(f"""v_mov_b32 v6, 0
v_mov_b32 v7, 0
v_mov_b32 v8, {L_CNT}
ds_write_b64 v8, v[6:7]
ds_write_b64 v8, v[6:7] offset:8
s_waitcnt lgkmcnt(0)
s_barrier""")
    if 'hwait' in EXP: a("s_barrier")
    lm=a.lab("L_hasmod"); lm2=a.lab("L_w")
    a(f"""s_cmp_ge_u32 s2, 192
s_cbranch_scc0 {lm}
s_waitcnt vmcnt(2)
s_branch {lm2}
{lm}:
s_waitcnt vmcnt(10)
{lm2}:""")
    stamp(a,2)
    get_tag(a)
    for t in range(8): a(f"v_mov_b32 v{11+2*t}, s{S_TAG}")
    a(f"""v_lshlrev_b32 v2, 4, v2                 ; (64hw+lane)*64
s_lshl_b32 s30, s2, 14
s_add_u32 s30, s30, {OFF_XT}""")
    for q in range(4):
        a(f"buffer_store_dwordx4 v[{10+4*q}:{13+4*q}], v2, s[{SRD_WS}:{SRD_WS+3}], s30 offen offset:{16*q} sc1")
    l1=a.lab("L_hm"); l2=a.lab("L_w")
    a(f"""s_cmp_ge_u32 s2, 192
s_cbranch_scc0 {l1}
s_waitcnt vmcnt(4)
s_branch {l2}
{l1}:
s_waitcnt vmcnt(12)
{l2}:""")
    X=60
    for t in range(2):
        for k in range(4):
            a(f"v_lshlrev_b32 v{X+8*t+2*k}, 16, v{26+4*t+k}")
            a(f"v_and_b32 v{X+8*t+2*k+1}, 0xffff0000, v{26+4*t+k}")
    for t in range(2):
        a(f"v_pk_add_f32 v[{76+2*t}:{77+2*t}], v[{X+8*t}:{X+8*t+1}], v[{X+8*t+2}:{X+8*t+3}]")
        a(f"v_pk_add_f32 v[{80+2*t}:{81+2*t}], v[{X+8*t+4}:{X+8*t+5}], v[{X+8*t+6}:{X+8*t+7}]")
    for t in range(2):
        a(f"v_pk_add_f32 v[{76+2*t}:{77+2*t}], v[{76+2*t}:{77+2*t}], v[{80+2*t}:{81+2*t}]")
    for t in range(2): a(f"v_add_f32 v{84+t}, v{76+2*t}, v{77+2*t}")
    for l in dpp_reduce([84,85]): a(l)
    a(f"""v_readlane_b32 s74, v84, 63
v_readlane_b32 s75, v85, 63
s_mov_b32 s76, {f32(1/512)}
v_mov_b32 v84, s74
v_mov_b32 v85, s75
v_mul_f32 v84, s76, v84
v_mul_f32 v85, s76, v85""")
    for t in range(2):
        for k in range(8): a(f"v_sub_f32 v{X+8*t+k}, v{X+8*t+k}, v{84+t}")
    for t in range(2):
        a(f"v_mul_f32 v{86+t}, v{X+8*t}, v{X+8*t}")
    for k in range(1,8):
        for t in range(2): a(f"v_fmac_f32 v{86+t}, v{X+8*t+k}, v{X+8*t+k}")
    for l in dpp_reduce([86,87]): a(l)
    a(f"""v_mul_f32 v86, s76, v86
v_mul_f32 v87, s76, v87
v_cvt_pk_bf16_f32 v88, v86, v87         ; bf16(var)
v_lshlrev_b32 v86, 16, v88
v_and_b32 v87, 0xffff0000, v88
v_add_f32 v86, {f32(1e-5)}, v86
v_add_f32 v87, {f32(1e-5)}, v87
v_cvt_pk_bf16_f32 v88, v86, v87
v_lshlrev_b32 v86, 16, v88
v_and_b32 v87, 0xffff0000, v88
v_sqrt_f32 v86, v86
v_sqrt_f32 v87, v87
v_cvt_pk_bf16_f32 v90, v84, v86         ; token0: (m, s)
v_cvt_pk_bf16_f32 v92, v85, v87         ; token1
v_mov_b32 v91, s{S_TAG}
v_mov_b32 v93, s{S_TAG}
s_lshl_b32 s30, s2, 6
s_lshl_b32 s31, s28, 4
s_add_u32 s30, s30, s31
s_add_u32 s30, s30, {OFF_STAT}
v_mov_b32 v94, 0
s_mov_b32 exec_lo, 0
s_mov_b32 exec_hi, 0x80000000
buffer_store_dwordx4 v[90:93], v94, s[{SRD_WS}:{SRD_WS+3}], s30 offen sc1
s_mov_b64 exec, -1""")
    stamp(a,3)
    lend=a.lab("L_nomod")
    a(f"s_cmp_ge_u32 s2, 192\ns_cbranch_scc1 {lend}")
    a("s_waitcnt vmcnt(5)")
    for i in range(4):
        c=52+i
        a(f"""v_lshlrev_b32 v{c}, 16, v{c}
v_mul_f32 v56, {f32(-1.4426950408889634)}, v{c}
v_exp_f32 v56, v56
v_add_f32 v56, 1.0, v56
v_rcp_f32 v56, v56
v_mul_f32 v56, v{c}, v56
v_cvt_pk_bf16_f32 v{100+2*i}, v56, 0
v_lshlrev_b32 v{101+2*i}, 16, v{100+2*i}""")
    gemv16(a,1,[[(100+2*i,101+2*i) for i in range(4)]],[36+4*i for i in range(4)],110)
    for l in dpp_reduce(list(range(110,118)),full=False): a(l)
    a(f"""s_lshl_b32 s30, s28, 6
v_lshrrev_b32 v6, 5, v1
v_lshlrev_b32 v6, 5, v6
v_add_u32 v6, s30, v6
v_add_u32 v6, {L_MODP}, v6
s_mov_b32 exec_lo, 0x80000000
s_mov_b32 exec_hi, 0x80000000
ds_write_b128 v6, v[110:113]
ds_write_b128 v6, v[114:117] offset:16
s_mov_b64 exec, -1
v_mov_b32 v7, 1
v_mov_b32 v8, {L_CNT}
s_waitcnt lgkmcnt(0)
s_mov_b64 exec, 1
ds_add_rtn_u32 v9, v8, v7
s_mov_b64 exec, -1
s_waitcnt lgkmcnt(0)
v_readfirstlane_b32 s30, v9
s_cmp_eq_u32 s30, 3
s_cbranch_scc0 {lend}
v_and_b32 v6, 15, v1
v_lshlrev_b32 v6, 2, v6
v_add_u32 v7, {L_MODP}, v6
ds_read_b32 v10, v7
ds_read_b32 v11, v7 offset:64
ds_read_b32 v12, v7 offset:128
ds_read_b32 v13, v7 offset:192
s_waitcnt lgkmcnt(0)
v_add_f32 v10, v10, v11
v_add_f32 v12, v12, v13
v_add_f32 v10, v10, v12
v_cvt_pk_bf16_f32 v10, v10, v10
v_lshlrev_b32 v10, 16, v10
v_mov_b32 v11, s{S_TAG}
v_lshlrev_b32 v6, 1, v6
s_lshl_b32 s30, s33, 7
s_add_u32 s30, s30, {OFF_MOD}
s_mov_b64 exec, 0xffff
buffer_store_dwordx2 v[10:11], v6, s[{SRD_WS}:{SRD_WS+3}], s30 offen sc1
s_mov_b64 exec, -1
{lend}:""")
    stamp(a,4)
    a("s_barrier")
    stamp(a,5)
    h_build(a)

def tagcheck(a, regs, lab_ok, lab_retry, T=(250,251,252)):
    t0,t1,t2=T
    a(f"v_xor_b32 v{t0}, s{S_TAG}, v{regs[0]}")
    rest=regs[1:]
    i=0
    while i<len(rest):
        a(f"v_xor_b32 v{t1}, s{S_TAG}, v{rest[i]}")
        if i+1<len(rest):
            a(f"v_xor_b32 v{t2}, s{S_TAG}, v{rest[i+1]}\nv_or3_b32 v{t0}, v{t0}, v{t1}, v{t2}"); i+=2
        else:
            a(f"v_or_b32 v{t0}, v{t0}, v{t1}"); i+=1
    a(f"""v_cmp_ne_u32 vcc, 0, v{t0}
s_cbranch_vccz {lab_ok}
s_sub_u32 s99, s99, 1
s_cmp_eq_u32 s99, 0
s_cbranch_scc1 {lab_ok}
s_sleep 1
s_branch {lab_retry}
{lab_ok}:""")

def h_build(a):
    a(f"""s_mov_b32 s99, {SPIN}
v_lshrrev_b32 v2, 2, v1                 ; l>>2
s_lshl_b32 s29, s28, 6
v_add_u32 v2, s29, v2
v_and_b32 v3, 3, v1                     ; q
v_lshlrev_b32 v4, 14, v2
v_lshlrev_b32 v5, 4, v3
v_add_u32 v4, v4, v5                    ; tb*16384 + 16q
s_lshl_b32 s30, s{S_P}, 6
s_add_u32 s30, s30, {OFF_XT}
v_lshlrev_b32 v6, 6, v2
v_add_u32 v6, v6, v5                    ; tb*64 + 16q
v_mov_b32 v7, 0
s_lshl_b32 s31, s{S_P}, 4
s_add_u32 s31, s31, {OFF_MOD}""")
    lr=a.lab("L_pollx"); ok=a.lab("L_okx")
    a(f"{lr}:")
    a("s_mov_b32 s32, s30")
    for i in range(4):
        a(f"buffer_load_dwordx4 v[{10+4*i}:{13+4*i}], v4, s[{SRD_WS}:{SRD_WS+3}], s32 offen sc1")
        if i<3: a(f"s_add_u32 s32, s32, {16*16384}")
    a(f"s_mov_b32 s32, {OFF_STAT}")
    for i in range(4):
        a(f"buffer_load_dwordx4 v[{26+4*i}:{29+4*i}], v6, s[{SRD_WS}:{SRD_WS+3}], s32 offen offset:{1024*i} sc1")
    a(f"""buffer_load_dwordx4 v[42:45], v7, s[{SRD_WS}:{SRD_WS+3}], s31 offen sc1
s_add_u32 s32, s31, 4096
buffer_load_dwordx4 v[46:49], v7, s[{SRD_WS}:{SRD_WS+3}], s32 offen sc1
s_waitcnt vmcnt(0)""")
    tagcheck(a,[11+2*k for k in range(20)],ok,lr)
    stamp(a,6)
    a(f"""v_add_f32 v46, 1.0, v46
v_add_f32 v48, 1.0, v48
v_cvt_pk_bf16_f32 v50, v46, v48
v_lshlrev_b32 v52, 16, v50
v_and_b32 v53, 0xffff0000, v50          ; c1 pair v[52:53]
v_mov_b32 v54, v42
v_mov_b32 v55, v44
v_and_b32 v8, 3, v2
v_mul_u32_u24 v8, {PL}, v8
v_lshrrev_b32 v9, 2, v2
v_lshlrev_b32 v9, 4, v9
v_lshlrev_b32 v5, 2, v3
v_add3_u32 v8, v8, v9, v5
v_lshlrev_b32 v9, 4, v2
v_add_u32 v9, v9, v5                    ; tb*16 + 4q
s_mov_b32 s74, 0x05040100
s_mov_b32 s75, 0x07060302""")
    for i in range(4):
        X0=10+4*i; X1=X0+2; S0=26+4*i; S1=S0+2
        a(f"""v_lshlrev_b32 v56, 16, v{S0}
v_and_b32 v57, 0xffff0000, v{S0}
v_lshlrev_b32 v58, 16, v{S1}
v_and_b32 v59, 0xffff0000, v{S1}
v_rcp_f32 v57, v57
v_rcp_f32 v59, v59
v_lshlrev_b32 v60, 16, v{X0}
v_and_b32 v61, 0xffff0000, v{X0}
v_lshlrev_b32 v62, 16, v{X1}
v_and_b32 v63, 0xffff0000, v{X1}
v_pk_add_f32 v[60:61], v[60:61], v[56:57] op_sel_hi:[1,0] neg_lo:[0,1] neg_hi:[0,1]
v_pk_add_f32 v[62:63], v[62:63], v[58:59] op_sel_hi:[1,0] neg_lo:[0,1] neg_hi:[0,1]
v_pk_mul_f32 v[60:61], v[60:61], v[56:57] op_sel:[0,1] op_sel_hi:[1,1]
v_pk_mul_f32 v[62:63], v[62:63], v[58:59] op_sel:[0,1] op_sel_hi:[1,1]
v_pk_fma_f32 v[60:61], v[60:61], v[52:53], v[54:55]
v_pk_fma_f32 v[62:63], v[62:63], v[52:53], v[54:55]
v_perm_b32 v66, v{X1}, v{X0}, s74
v_perm_b32 v67, v{X1}, v{X0}, s75
v_cvt_pk_bf16_f32 v64, v60, v62
v_cvt_pk_bf16_f32 v65, v61, v63
ds_write_b32 v8, v64 offset:{L_HP+512+64*i}
ds_write_b32 v8, v65 offset:{L_HP+HCH+512+64*i}
ds_write_b32 v9, v66 offset:{L_XP+256*i}
ds_write_b32 v9, v67 offset:{L_XP+4096+256*i}""")
    a("s_waitcnt lgkmcnt(0)\ns_barrier")
    stamp(a,7)


def m_conv(a):
    a(f"""s_lshr_b32 s28, s{S_WAVE}, 1          ; ch
s_and_b32 s29, s{S_WAVE}, 1             ; m half
v_and_b32 v2, 31, v1                    ; i / a'
v_lshrrev_b32 v3, 5, v1                 ; hi
v_sub_u32 v4, 3, v2
v_and_b32 v4, 3, v4                     ; s = (3-i)&3
v_mul_u32_u24 v5, {CS}, v4
v_lshlrev_b32 v6, 3, v3                 ; 8hi
v_sub_u32 v6, v6, v2
v_sub_u32 v6, v6, v4
v_add_u32 v6, 2047, v6                  ; 2047 - i + 8hi - s
v_lshlrev_b32 v6, 1, v6
s_mul_i32 s30, s28, {KCH}
s_mul_i32 s31, s29, {32*32}
s_sub_u32 s30, s30, s31
s_add_u32 s30, s30, {L_KC+16+32-32*31-2048}
v_add3_u32 v10, v5, v6, s30             ; A base
v_mul_u32_u24 v5, {PL}, v3
v_lshlrev_b32 v6, 4, v2
s_mul_i32 s30, s28, {HCH}
s_lshl_b32 s31, s29, 8                  ; 16 entries * 16B
s_sub_u32 s30, s30, s31
s_add_u32 s30, s30, {L_HP+(32-15)*16}
v_add3_u32 v11, v5, v6, s30             ; B base""")
    NB=3; FB=48
    def reads(it):
        b=FB+16*(it%NB)
        oa=32*(31-it)
        ob=(15-it//2)*16+(2*PL if it%2==0 else 0)
        return [f"ds_read_b64 v[{b}:{b+1}], v10 offset:{oa+2048}",
                f"ds_read_b64 v[{b+2}:{b+3}], v10 offset:{oa+2048+8}",
                f"ds_read_b128 v[{b+8}:{b+11}], v11 offset:{ob}",
                f"ds_read_b128 v[{b+12}:{b+15}], v11 offset:{ob+512}",
                f"ds_read_b64 v[{b+4}:{b+5}], v10 offset:{oa}",
                f"ds_read_b64 v[{b+6}:{b+7}], v10 offset:{oa+8}"]
    A0=16; A1=32
    for l in reads(0)+reads(1): a(l)
    for it in range(32):
        b=FB+16*(it%NB)
        nxt=reads(it+2) if it+2<32 else []
        c0="0" if it==0 else f"v[{A0}:{A0+15}]"
        c1="0" if it==0 else f"v[{A1}:{A1+15}]"
        m0=f"v_mfma_f32_32x32x16_bf16 v[{A0}:{A0+15}], v[{b}:{b+3}], v[{b+8}:{b+11}], {c0}"
        m1=f"v_mfma_f32_32x32x16_bf16 v[{A1}:{A1+15}], v[{b}:{b+3}], v[{b+12}:{b+15}], {c1}"
        m2=f"v_mfma_f32_32x32x16_bf16 v[{A1}:{A1+15}], v[{b+4}:{b+7}], v[{b+8}:{b+11}], v[{A1}:{A1+15}]"
        rem = 6 if it+1<32 else 0
        a(f"s_waitcnt lgkmcnt({rem})")
        a(m0)
        for l in nxt[:2]: a(l)
        a(m1)
        for l in nxt[2:4]: a(l)
        a(m2)
        for l in nxt[4:]: a(l)
    a(f"""v_mul_u32_u24 v4, 144, v2
v_lshlrev_b32 v5, 4, v3
s_mul_i32 s30, s{S_WAVE}, {YW}
s_add_u32 s30, s30, {L_Y}
v_add3_u32 v4, v4, v5, s30""")
    for g in range(4): a(f"ds_write_b128 v4, v[{A0+4*g}:{A0+4*g+3}] offset:{32*g}")
    for g in range(4): a(f"ds_write_b128 v4, v[{A1+4*g}:{A1+4*g+3}] offset:{4608+32*g}")
    a("s_waitcnt lgkmcnt(0)")
    stamp(a,8)
    a("s_barrier")
    stamp(a,9)

def poll16(a, dst, soff_expr_sgpr, lab):
    lr=a.lab(lab+"r"); ok=a.lab(lab+"k")
    a(f"""{lr}:
buffer_load_dwordx4 v[{dst}:{dst+3}], v249, s[{SRD_WS}:{SRD_WS+3}], {soff_expr_sgpr} offen sc1
s_waitcnt vmcnt(0)""")
    tagcheck(a,[dst+1,dst+3],ok,lr)

def h_side(a):
    srd(a,SRD_A,P_W1,512*2752)
    srd(a,SRD_B,P_W2,1376*1024)
    a(f"""s_mov_b32 s99, {SPIN}
v_mov_b32 v249, 0
s_sub_u32 s28, s{S_WAVE}, 4             ; hw
s_lshr_b32 s29, s28, 1
s_lshl_b32 s30, s{S_P}, 1
s_add_u32 s30, s30, s29                 ; d
s_mul_i32 s31, s30, 2752
s_and_b32 s32, s28, 1
s_mul_i32 s32, s32, {86*16}
s_add_u32 s31, s31, s32
v_lshlrev_b32 v2, 4, v1
buffer_load_dwordx4 v[10:13], v2, s[{SRD_A}:{SRD_A+3}], s31 offen
buffer_load_dwordx4 v[14:17], v2, s[{SRD_A}:{SRD_A+3}], s31 offen offset:1024""")
    a(f"""s_lshl_b32 s33, s28, 8
s_add_u32 s33, s33, s2                  ; g
s_mul_hi_u32 s34, s33, {(2**32+85)//86} ; dtile
s_mul_i32 s35, s34, 86
s_sub_u32 s35, s33, s35                 ; ks
s_lshl_b32 s35, s35, 14                 ; ks*16*1024
s_lshl_b32 s34, s34, 6
s_add_u32 s35, s35, s34
v_lshrrev_b32 v3, 2, v1
v_lshlrev_b32 v3, 10, v3
v_and_b32 v4, 3, v1
v_lshlrev_b32 v4, 4, v4
v_add_u32 v3, v3, v4
buffer_load_dwordx4 v[18:21], v3, s[{SRD_B}:{SRD_B+3}], s35 offen
s_add_u32 s74, s33, 1024                ; g2
s_mul_hi_u32 s34, s74, {(2**32+85)//86}
s_mul_i32 s35, s34, 86
s_sub_u32 s35, s74, s35
s_lshl_b32 s35, s35, 14
s_lshl_b32 s34, s34, 6
s_add_u32 s35, s35, s34
buffer_load_dwordx4 v[22:25], v3, s[{SRD_B}:{SRD_B+3}], s35 offen""")
    lno=a.lab("L_nost")
    a(f"""v_and_b32 v5, 31, v1
s_lshl_b32 s34, s28, 7
v_add_u32 v5, s34, v5
v_mul_u32_u24 v6, 2752, v5
v_lshrrev_b32 v7, 5, v1
v_lshlrev_b32 v7, 4, v7
v_add_u32 v6, v6, v7
v_lshlrev_b32 v5, 3, v5
s_lshl_b32 s34, s2, 5
s_cmp_ge_u32 s2, 86
s_cbranch_scc1 {lno}""")
    for i in range(4):
        a(f"buffer_load_dwordx4 v[{36+4*i}:{39+4*i}], v6, s[{SRD_A}:{SRD_A+3}], s34 offen")
        if i<3: a(f"s_add_u32 s34, s34, {32*2752}")
    a(f"{lno}:")
    a(f"""s_lshl_b32 s34, s{S_P}, 4
s_add_u32 s34, s34, {OFF_MOD+2048*8}""")
    poll16(a,26,"s34","L_cb")
    a(f"""s_cmp_eq_u32 s29, 0
s_cselect_b64 s[76:77], -1, 0
v_cndmask_b32 v26, v28, v26, s[76:77]
v_add_f32 v26, 1.0, v26
v_cvt_pk_bf16_f32 v26, v26, v26
v_lshlrev_b32 v26, 16, v26              ; c1b""")
    for h in range(2):
        for k in range(4):
            r=10+4*h+k
            a(f"""v_lshlrev_b32 v30, 16, v{r}
v_and_b32 v31, 0xffff0000, v{r}
v_pk_mul_f32 v[30:31], v[30:31], v[26:27] op_sel_hi:[1,0]
v_cvt_pk_bf16_f32 v{r}, v30, v31""")
    a(f"""s_add_u32 s31, s31, {OFF_W1P}
buffer_store_dwordx4 v[10:13], v2, s[{SRD_WS}:{SRD_WS+3}], s31 offen sc1
s_mov_b64 exec, 0x3fffff
buffer_store_dwordx4 v[14:17], v2, s[{SRD_WS}:{SRD_WS+3}], s31 offen offset:1024 sc1
s_mov_b64 exec, -1""")
    a(f"""s_lshl_b32 s34, s28, 10
s_add_u32 s34, s34, {L_W2S}
v_lshlrev_b32 v4, 4, v1
v_add_u32 v4, s34, v4                   ; staging write addr
v_lshrrev_b32 v7, 5, v1                 ; hi
v_lshlrev_b32 v7, 2, v7
v_bfe_u32 v8, v1, 2, 2                  ; r
v_add_u32 v7, v7, v8
v_lshlrev_b32 v7, 6, v7                 ; (4hi+r)*64
v_bfe_u32 v8, v1, 4, 1                  ; nh
v_lshlrev_b32 v8, 5, v8
v_and_b32 v9, 3, v1
v_lshlrev_b32 v9, 3, v9
v_add3_u32 v7, v7, v8, v9
v_add_u32 v7, s34, v7
v_lshlrev_b32 v8, 4, v1
s_lshl_b32 s35, s33, 10
s_add_u32 s35, s35, {OFF_W2F}
ds_write_b128 v4, v[18:21]
s_waitcnt lgkmcnt(0)
ds_read_b64_tr_b16 v[28:29], v7
ds_read_b64_tr_b16 v[30:31], v7 offset:512
s_waitcnt lgkmcnt(0)
buffer_store_dwordx4 v[28:31], v8, s[{SRD_WS}:{SRD_WS+3}], s35 offen sc1""")
    l2=a.lab("L_now2")
    a(f"""s_add_u32 s74, s33, 1024
s_cmp_ge_u32 s74, 1376
s_cbranch_scc1 {l2}
s_add_u32 s35, s35, {1024*1024}
ds_write_b128 v4, v[22:25]
s_waitcnt lgkmcnt(0)
ds_read_b64_tr_b16 v[32:33], v7
ds_read_b64_tr_b16 v[34:35], v7 offset:512
s_waitcnt lgkmcnt(0)
buffer_store_dwordx4 v[32:35], v8, s[{SRD_WS}:{SRD_WS+3}], s35 offen sc1
{l2}:""")
    lend=a.lab("L_stend")
    a(f"s_cmp_ge_u32 s2, 86\ns_cbranch_scc1 {lend}")
    lr=a.lab("L_pollst"); ok=a.lab("L_okst")
    a(f"""s_mov_b32 s34, {OFF_MOD+2048*8}
s_mov_b32 s35, {OFF_MOD+1536*8}
{lr}:""")
    for i in range(4):
        a(f"buffer_load_dwordx2 v[{60+2*i}:{61+2*i}], v5, s[{SRD_WS}:{SRD_WS+3}], s34 offen offset:{256*i} sc1")
        a(f"buffer_load_dwordx2 v[{68+2*i}:{69+2*i}], v5, s[{SRD_WS}:{SRD_WS+3}], s35 offen offset:{256*i} sc1")
    a("s_waitcnt vmcnt(0)")
    tagcheck(a,[61+2*k for k in range(8)],ok,lr)
    for i in range(4):
        a(f"""v_add_f32 v{60+2*i}, 1.0, v{60+2*i}
v_cvt_pk_bf16_f32 v{60+2*i}, v{60+2*i}, 0
v_lshlrev_b32 v{61+2*i}, 16, v{60+2*i}
v_mov_b32 v{69+2*i}, v{68+2*i}
v_lshrrev_b32 v{68+2*i}, 16, v{68+2*i}""")
    gemv16(a,2,[[(60+2*i,61+2*i) for i in range(4)],[(68+2*i,69+2*i) for i in range(4)]],[36+4*i for i in range(4)],80)
    for l in dpp_reduce(list(range(80,96)),full=False): a(l)
    srd(a,SRD_C,P_B1,2752)
    a(f"""s_lshl_b32 s30, s28, 6
v_lshrrev_b32 v6, 5, v1
v_lshlrev_b32 v6, 5, v6
v_add_u32 v6, s30, v6
v_add_u32 v6, {L_MODP}, v6
v_and_b32 v12, 15, v1
v_lshlrev_b32 v13, 1, v12
s_lshl_b32 s31, s2, 5
buffer_load_ushort v14, v13, s[{SRD_C}:{SRD_C+3}], s31 offen
s_mov_b32 exec_lo, 0x80000000
s_mov_b32 exec_hi, 0x80000000
ds_write_b128 v6, v[80:83]
ds_write_b128 v6, v[84:87] offset:16
ds_write_b128 v6, v[88:91] offset:256
ds_write_b128 v6, v[92:95] offset:272
s_mov_b64 exec, -1
v_mov_b32 v7, 1
v_mov_b32 v8, {L_CNT+4}
s_waitcnt lgkmcnt(0)
s_mov_b64 exec, 1
ds_add_rtn_u32 v9, v8, v7
s_mov_b64 exec, -1
s_waitcnt lgkmcnt(0)
v_readfirstlane_b32 s30, v9
s_cmp_eq_u32 s30, 3
s_cbranch_scc0 {lend}
v_lshlrev_b32 v6, 2, v12
v_add_u32 v7, {L_MODP}, v6""")
    for k in range(4):
        a(f"ds_read_b32 v{16+k}, v7 offset:{64*k}")
        a(f"ds_read_b32 v{20+k}, v7 offset:{256+64*k}")
    a(f"""s_waitcnt vmcnt(0) lgkmcnt(0)
v_add_f32 v16, v16, v17
v_add_f32 v18, v18, v19
v_add_f32 v20, v20, v21
v_add_f32 v22, v22, v23
v_lshlrev_b32 v14, 16, v14
v_add_f32 v16, v16, v18
v_add_f32 v20, v20, v22
v_add_f32 v20, v20, v14
s_lshl_b32 s30, s2, 6
s_add_u32 s31, s30, {OFF_T}
s_add_u32 s30, s30, {OFF_S}
s_mov_b64 exec, 0xffff
buffer_store_dword v16, v6, s[{SRD_WS}:{SRD_WS+3}], s30 offen sc1
buffer_store_dword v20, v6, s[{SRD_WS}:{SRD_WS+3}], s31 offen sc1
s_mov_b64 exec, -1
{lend}:""")
    stamp(a,8)
    a("s_barrier")
    stamp(a,9)

def conv_epilogue(a):
    a(f"""s_mov_b32 s99, {SPIN}
v_mov_b32 v249, 0
s_lshr_b32 s28, s{S_WAVE}, 2            ; ch
s_lshl_b32 s29, s{S_P}, 1
s_add_u32 s29, s29, s28                 ; d
s_lshl_b32 s30, s29, 1
v_mov_b32 v2, s30
global_load_ushort v40, v2, s[{P_DSK}:{P_DSK+1}]
v_and_b32 v2, 255, v0                   ; tb
v_lshrrev_b32 v3, 2, v2                 ; a
v_and_b32 v4, 3, v2
v_mul_u32_u24 v5, 144, v3
v_lshlrev_b32 v6, 5, v4
s_mul_i32 s30, s28, {2*YW}
s_add_u32 s30, s30, {L_Y}
v_add3_u32 v5, v5, v6, s30              ; Y addr
v_mul_u32_u24 v6, {PL}, v4
v_lshlrev_b32 v7, 4, v3
s_mul_i32 s30, s28, {HCH}
s_add_u32 s30, s30, {L_HP+512}
v_add3_u32 v6, v6, v7, s30              ; h addr
v_lshlrev_b32 v7, 4, v2
s_lshl_b32 s30, s28, 12
s_add_u32 s30, s30, {L_XP}
v_add_u32 v8, s30, v7                   ; x addr
ds_read_b128 v[12:15], v5
ds_read_b128 v[16:19], v5 offset:16
ds_read_b128 v[20:23], v5 offset:{YW}
ds_read_b128 v[24:27], v5 offset:{YW+16}
ds_read_b128 v[28:31], v6
ds_read_b128 v[32:35], v8
s_lshl_b32 s34, s{S_P}, 4
s_add_u32 s34, s34, {OFF_MOD+1024*8}""")
    poll16(a,44,"s34","L_ga")
    a(f"""s_cmp_eq_u32 s28, 0
s_cselect_b64 s[76:77], -1, 0
v_cndmask_b32 v44, v46, v44, s[76:77]   ; ga
v_lshlrev_b32 v40, 16, v40              ; Dskip
s_waitcnt lgkmcnt(0)""")
    for k in range(4):
        y=12+2*k
        a(f"""v_pk_add_f32 v[{y}:{y+1}], v[{y}:{y+1}], v[{y+8}:{y+9}]
v_lshlrev_b32 v48, 16, v{28+k}
v_and_b32 v49, 0xffff0000, v{28+k}
v_lshlrev_b32 v50, 16, v{32+k}
v_and_b32 v51, 0xffff0000, v{32+k}
v_pk_fma_f32 v[{y}:{y+1}], v[48:49], v[40:41], v[{y}:{y+1}] op_sel_hi:[1,0,1]
v_pk_fma_f32 v[{y}:{y+1}], v[{y}:{y+1}], v[44:45], v[50:51] op_sel_hi:[1,0,1]
v_cvt_pk_bf16_f32 v{36+k}, v{y}, v{y+1}""")
    a(f"""s_lshl_b32 s30, s29, 12
s_add_u32 s30, s30, {OFF_X2T}
buffer_store_dwordx4 v[36:39], v7, s[{SRD_WS}:{SRD_WS+3}], s30 offen sc1""")
    stamp(a,10)
    a("s_waitcnt vmcnt(0)")
    stamp(a,11)
    a("s_barrier")
    stamp(a,12)
    lf=a.lab("L_nof2")
    a(f"""s_cmp_lg_u32 s{S_WAVE}, 4
s_cbranch_scc1 {lf}
s_lshl_b32 s30, s2, 4
s_add_u32 s30, s30, {OFF_F2}
v_mov_b32 v2, s{S_TAG}
s_mov_b64 exec, 1
buffer_store_dword v2, v249, s[{SRD_WS}:{SRD_WS+3}], s30 offen sc1
s_mov_b64 exec, -1
{lf}:""")


L_W1=0
L_RING=98304
NSLOT=6
L_ST=L_RING+NSLOT*8192
def poll_flags(a, off, nflag_regs, lab):
    pass

def p3_common(a):
    a(f"""s_and_b32 s28, s{S_IDX}, 1
s_lshl_b32 s29, s{S_XCD}, 1
s_add_u32 s28, s28, s29
s_lshr_b32 s29, s{S_IDX}, 1""")

def h_p3(a):
    a("L_H_P3:")
    p3_common(a)
    a(f"""s_mov_b32 s99, {SPIN}
s_sub_u32 s30, s{S_WAVE}, 4             ; hw""")
    lw=a.lab("L_f2w"); lr=a.lab("L_f2r"); ok=a.lab("L_f2k")
    a(f"""s_cmp_lg_u32 s30, 0
s_cbranch_scc1 {lw}
v_lshlrev_b32 v2, 4, v1
s_mov_b32 s31, {OFF_F2}
s_waitcnt vmcnt(0)
{lr}:""")
    for i in range(4): a(f"buffer_load_dword v{10+i}, v2, s[{SRD_WS}:{SRD_WS+3}], s31 offen offset:{1024*i} sc1")
    a("s_waitcnt vmcnt(0)")
    tagcheck(a,[10,11,12,13],ok,lr)
    le=a.lab("L_noep")
    a(f"""s_cmp_lg_u32 s2, 0
s_cbranch_scc1 {le}
v_mov_b32 v3, s{S_TAG}
v_mov_b32 v4, 0
s_mov_b64 exec, 1
buffer_store_dword v3, v4, s[{SRD_WS}:{SRD_WS+3}], 0 offen sc1
s_mov_b64 exec, -1
{le}:
{lw}:
s_barrier""")
    stamp(a,13)
    lidle=a.lab("L_h3idle")
    a(f"s_cmp_eq_u32 s29, 15\ns_cbranch_scc1 {lidle}")
    for k in range(3):
        a(f"""v_add_u32 v2, {64*k}, v1
v_mul_u32_u24 v3, 5462, v2
v_lshrrev_b32 v3, 16, v3                ; q/12
v_mul_u32_u24 v4, 12, v3
v_sub_u32 v4, v2, v4                    ; q%12
v_mul_u32_u24 v3, 2752, v3
v_lshlrev_b32 v4, 4, v4
v_add_u32 v{10+k}, v3, v4""")
    a(f"""s_mul_i32 s31, s29, 192
s_add_u32 s31, s31, {OFF_W1P}
s_mul_i32 s32, s30, {16*2752}
s_add_u32 s31, s31, s32
s_mul_i32 s33, s30, 3072""")
    for g in range(8):
        for k in range(3):
            a(f"""s_add_u32 m0, s33, {1024*k}
buffer_load_dwordx4 v{10+k}, s[{SRD_WS}:{SRD_WS+3}], s31 offen sc1 lds""")
        if g<7: a(f"s_add_u32 s31, s31, {4*16*2752}\ns_add_u32 s33, s33, {4*3072}")
    ls=a.lab("L_nost2")
    a(f"""s_cmp_lg_u32 s30, 0
s_cbranch_scc1 {ls}
v_lshlrev_b32 v5, 2, v1
s_mul_i32 s32, s29, 384
s_add_u32 s34, s32, {OFF_S}
s_add_u32 s35, s32, {OFF_T}
buffer_load_dword v14, v5, s[{SRD_WS}:{SRD_WS+3}], s34 offen sc1
buffer_load_dword v15, v5, s[{SRD_WS}:{SRD_WS+3}], s34 offen offset:256 sc1
buffer_load_dword v16, v5, s[{SRD_WS}:{SRD_WS+3}], s35 offen sc1
buffer_load_dword v17, v5, s[{SRD_WS}:{SRD_WS+3}], s35 offen offset:256 sc1
v_add_u32 v5, {L_ST}, v5
s_waitcnt vmcnt(0)
ds_write_b32 v5, v14
ds_write_b32 v5, v16 offset:384
s_mov_b64 exec, 0xffffffff
ds_write_b32 v5, v15 offset:256
ds_write_b32 v5, v17 offset:640
s_mov_b64 exec, -1
s_waitcnt lgkmcnt(0)
{ls}:""")
    a(f"""v_lshrrev_b32 v2, 4, v1                 ; rho
v_and_b32 v3, 15, v1                    ; kappa
v_lshlrev_b32 v4, 2, v2
v_xor_b32 v3, v3, v4                    ; kappa'
v_lshlrev_b32 v3, 4, v3
v_lshlrev_b32 v2, 12, v2                ; rho*4096
v_add_u32 v20, v2, v3
v_add_u32 v21, {4*4096}, v20
s_lshl_b32 s31, s28, 8
s_add_u32 s31, s31, {OFF_X2T}
s_lshl_b32 s32, s30, 15                 ; 8 rows * 4096
s_add_u32 s31, s31, s32
s_lshl_b32 s33, s30, 11                 ; 8 rows * 256B
s_add_u32 s33, s33, {L_RING}""")
    def issue(s):
        a(f"""s_add_u32 m0, s33, {(s%NSLOT)*8192}
s_add_u32 s34, s31, {s*32*4096}
buffer_load_dwordx4 v20, s[{SRD_WS}:{SRD_WS+3}], s34 offen sc1 lds
s_add_u32 m0, s33, {(s%NSLOT)*8192+1024}
buffer_load_dwordx4 v21, s[{SRD_WS}:{SRD_WS+3}], s34 offen sc1 lds""")
    AHEAD=NSLOT-2
    for s in range(AHEAD): issue(s)
    for s in range(16):
        issued=min(16,s+AHEAD)
        a(f"s_waitcnt vmcnt({2*(issued-s-1)})\ns_barrier")
        if s+AHEAD<16: issue(s+AHEAD)
    a(f"s_branch L_H_P3_done\n{lidle}:")
    for s in range(16): a("s_barrier")
    a("L_H_P3_done:")

def m_p3(a):
    a("L_M_P3:")
    p3_common(a)
    a("s_barrier")
    stamp(a,13)
    lidle=a.lab("L_m3idle")
    a(f"s_cmp_eq_u32 s29, 15\ns_cbranch_scc1 {lidle}")
    a(f"""v_lshrrev_b32 v2, 5, v1                 ; hi
v_bfe_u32 v3, v1, 2, 2                  ; r
v_bfe_u32 v4, v1, 4, 1                  ; nh
v_and_b32 v5, 3, v1                     ; c
v_lshlrev_b32 v6, 3, v2
v_add_u32 v6, v6, v3                    ; 8hi + r
v_lshlrev_b32 v7, 5, v4
v_lshlrev_b32 v8, 3, v5
v_add_u32 v7, v7, v8                    ; nh*32 + c*8
v_mul_u32_u24 v10, 192, v6
v_add_u32 v10, v10, v7                  ; A base (W1')
v_add_u32 v11, {16*3072}, v10
v_lshlrev_b32 v12, 8, v6
v_xor_b32 v8, s{S_WAVE}, v3
v_lshlrev_b32 v8, 6, v8
v_add3_u32 v12, v12, v8, v7
v_add_u32 v12, {L_RING}, v12
v_mov_b32 v13, 0
v_mov_b32 v14, 0
s_mov_b32 s31, 0x3f803f80""")
    ACC=16
    FB=64
    def reads(ks):
        b=FB+16*(ks%2)
        av = 10 if ks<16 else 11
        ko=(ks%16)*3072
        slot=(ks//2)%NSLOT
        bo=slot*8192+(ks%2)*4096
        o=[f"ds_read_b64_tr_b16 v[{b+12}:{b+13}], v12 offset:{bo}",
           f"ds_read_b64_tr_b16 v[{b+14}:{b+15}], v12 offset:{bo+1024}"]
        for ft in range(3):
            o+=[f"ds_read_b64_tr_b16 v[{b+4*ft}:{b+4*ft+1}], v{av} offset:{ko+64*ft}",
                f"ds_read_b64_tr_b16 v[{b+4*ft+2}:{b+4*ft+3}], v{av} offset:{ko+768+64*ft}"]
        return o
    a("s_barrier")
    for l in reads(0): a(l)
    for ks in range(32):
        b=FB+16*(ks%2)
        if ks%2==1 and ks<31: a("s_barrier")
        nxt=reads(ks+1) if ks<31 else []
        for l in nxt: a(l)
        a(f"s_waitcnt lgkmcnt({len(nxt)})")
        for ft in range(3):
            c="0" if ks==0 else f"v[{ACC+16*ft}:{ACC+16*ft+15}]"
            a(f"v_mfma_f32_32x32x16_bf16 v[{ACC+16*ft}:{ACC+16*ft+15}], v[{b+4*ft}:{b+4*ft+3}], v[{b+12}:{b+15}], {c}")
        for k in range(4):
            a(f"v_dot2c_f32_bf16 v13, s31, v{b+12+k}")
            a(f"v_dot2c_f32_bf16 v14, v{b+12+k}, v{b+12+k}")
    stamp(a,14)
    a(f"""v_mov_b32 v2, v13
v_mov_b32 v3, v14
s_nop 1
v_permlane32_swap_b32 v2, v13
v_permlane32_swap_b32 v3, v14
s_nop 1
v_add_f32 v13, v13, v2
v_add_f32 v14, v14, v3
v_mul_f32 v13, {f32(1/512)}, v13        ; mean
v_mul_f32 v14, {f32(1/512)}, v14
v_fma_f32 v14, -v13, v13, v14           ; var
v_max_f32 v14, 0, v14
v_cvt_pk_bf16_f32 v2, v13, v14
v_lshlrev_b32 v13, 16, v2               ; m (bf16)
v_and_b32 v14, 0xffff0000, v2
v_add_f32 v14, {f32(1e-5)}, v14
v_cvt_pk_bf16_f32 v14, v14, v14
v_lshlrev_b32 v14, 16, v14
v_sqrt_f32 v14, v14
s_nop 0
v_cvt_pk_bf16_f32 v14, v14, v14
v_lshlrev_b32 v14, 16, v14
v_rcp_f32 v14, v14                      ; r
v_lshrrev_b32 v2, 5, v1
v_lshlrev_b32 v2, 4, v2
v_add_u32 v2, {L_ST}, v2
v_lshlrev_b32 v3, 4, v1                 ; store lane offset
s_lshl_b32 s30, s28, 2
s_add_u32 s30, s30, s{S_WAVE}           ; T32
s_mul_i32 s30, s30, {86*1024}
s_mul_i32 s31, s29, {6*1024}
s_add_u32 s30, s30, s31
s_add_u32 s30, s30, {OFF_H}""")
    for ft in range(3):
        lsk=a.lab("L_skipft")
        if ft>0:
            a(f"s_cmp_eq_u32 s29, 14\ns_cbranch_scc1 {lsk}")
        for g in range(4):
            a(f"ds_read_b128 v[{64+4*g}:{67+4*g}], v2 offset:{128*ft+32*g}")
            a(f"ds_read_b128 v[{80+4*g}:{83+4*g}], v2 offset:{384+128*ft+32*g}")
        a("s_waitcnt lgkmcnt(0)")
        A=ACC+16*ft
        for p in range(8):
            r=A+2*p
            a(f"""v_fma_f32 v{r}, -v13, v{64+2*p}, v{r}
v_fma_f32 v{r+1}, -v13, v{65+2*p}, v{r+1}
v_fma_f32 v{r}, v14, v{r}, v{80+2*p}
v_fma_f32 v{r+1}, v14, v{r+1}, v{81+2*p}
v_max_f32 v4, 0, v{r}
v_max_f32 v5, 0, v{r+1}
v_mul_f32 v4, v4, v4
v_mul_f32 v5, v5, v5
v_cvt_pk_bf16_f32 v{96+p}, v4, v5""")
        a(f"""buffer_store_dwordx4 v[96:99], v3, s[{SRD_WS}:{SRD_WS+3}], s30 offen offset:{2048*ft} sc1
buffer_store_dwordx4 v[100:103], v3, s[{SRD_WS}:{SRD_WS+3}], s30 offen offset:{2048*ft+1024} sc1""") if ft<2 else a(f"""s_add_u32 s31, s30, 4096
buffer_store_dwordx4 v[96:99], v3, s[{SRD_WS}:{SRD_WS+3}], s31 offen sc1
buffer_store_dwordx4 v[100:103], v3, s[{SRD_WS}:{SRD_WS+3}], s31 offen offset:1024 sc1""")
        if ft>0: a(f"{lsk}:")
    a(f"s_branch L_M_P3_done\n{lidle}:")
    for s in range(16): a("s_barrier")
    a("L_M_P3_done:")

def p3_publish(a):
    a("s_waitcnt vmcnt(0)")
    stamp(a,15)
    a("s_barrier")
    lf=a.lab("L_nof3")
    a(f"""s_cmp_lg_u32 s{S_WAVE}, 4
s_cbranch_scc1 {lf}
s_lshl_b32 s30, s2, 4
s_add_u32 s30, s30, {OFF_F3}
v_mov_b32 v2, s{S_TAG}
v_mov_b32 v3, 0
s_mov_b64 exec, 1
buffer_store_dword v2, v3, s[{SRD_WS}:{SRD_WS+3}], s30 offen sc1
s_mov_b64 exec, -1
{lf}:""")

L_HR=0 ; HSLOTS=36
L_EX2=HSLOTS*4096
GRP=4
def h_p4(a):
    a(f"""L_H_P4:
s_mov_b32 s99, {SPIN}
s_and_b32 s28, s{S_IDX}, 3
s_lshl_b32 s29, s{S_XCD}, 2
s_add_u32 s28, s28, s29                 ; t64
s_sub_u32 s30, s{S_WAVE}, 4             ; hw""")
    lw=a.lab("L_f3w"); lr=a.lab("L_f3r"); ok=a.lab("L_f3k")
    a(f"""s_cmp_lg_u32 s30, 0
s_cbranch_scc1 {lw}
s_lshr_b32 s31, s28, 1                  ; tt
s_and_b32 s32, s31, 1
s_lshr_b32 s31, s31, 1
s_lshl_b32 s32, s32, 3
s_add_u32 s32, s32, s31
s_lshl_b32 s32, s32, 4
s_add_u32 s32, s32, {OFF_F3}
v_min_u32 v2, 14, v1
v_lshlrev_b32 v2, 8, v2                 ; fc*16*16B
s_waitcnt vmcnt(0)
{lr}:
buffer_load_dword v10, v2, s[{SRD_WS}:{SRD_WS+3}], s32 offen sc1
s_waitcnt vmcnt(0)""")
    tagcheck(a,[10],ok,lr)
    a(f"{lw}:\ns_barrier")
    a(f"""s_lshl_b32 s31, s28, 1
s_and_b32 s32, s30, 1
s_add_u32 s31, s31, s32                 ; T32
s_mul_i32 s31, s31, {86*1024}
s_lshr_b32 s32, s30, 1
s_mul_i32 s32, s32, {43*1024}
s_add_u32 s31, s31, s32
s_add_u32 s31, s31, {OFF_H}
s_lshl_b32 s33, s30, 10                 ; LDS offset inside a step
v_lshlrev_b32 v20, 4, v1""")
    def issue(j):
        a(f"""s_add_u32 m0, s33, {(j%HSLOTS)*4096+L_HR}
s_add_u32 s34, s31, {j*1024}
buffer_load_dwordx4 v20, s[{SRD_WS}:{SRD_WS+3}], s34 offen sc1 lds""")
    for j in range(HSLOTS): issue(j)
    ngrp=(43+GRP-1)//GRP
    issued=HSLOTS
    for g in range(ngrp):
        need=min(43,(g+1)*GRP)
        a(f"s_waitcnt vmcnt({issued-need})\ns_barrier")
        while issued<43 and issued-HSLOTS < g*GRP-1:
            issue(issued); issued+=1
    assert issued==43

def m_p4(a):
    a(f"""L_M_P4:
s_mov_b32 s99, {SPIN}
s_and_b32 s28, s{S_IDX}, 3
s_lshl_b32 s29, s{S_XCD}, 2
s_add_u32 s28, s28, s29                 ; t64
s_lshr_b32 s29, s{S_IDX}, 2             ; dc
s_and_b32 s30, s{S_WAVE}, 1             ; dt
s_lshr_b32 s31, s{S_WAVE}, 1            ; kh
s_lshl_b32 s32, s29, 1
s_add_u32 s32, s32, s30                 ; dtile
s_mul_i32 s33, s32, 86
s_mul_i32 s34, s31, 43
s_add_u32 s33, s33, s34
s_lshl_b32 s33, s33, 10
s_add_u32 s33, s33, {OFF_W2F}
v_lshlrev_b32 v2, 4, v1""")
    WF=64
    for j in range(43):
        if j%4==0 and j>0: a(f"s_add_u32 s33, s33, 4096")
        a(f"buffer_load_dwordx4 v[{WF+4*j}:{WF+4*j+3}], v2, s[{SRD_WS}:{SRD_WS+3}], s33 offen offset:{1024*(j%4)} sc1")
    X=236
    a(f"""v_and_b32 v3, 31, v1
v_lshrrev_b32 v4, 5, v1                 ; hi
s_lshl_b32 s33, s32, 5                  ; d0 = 32*dtile
s_lshl_b32 s34, s28, 6
s_lshl_b32 s35, s31, 5
s_add_u32 s34, s34, s35                 ; t0 = 64*t64 + 32*kh
v_lshlrev_b32 v5, 2, v4                 ; 4hi
v_add_u32 v6, s33, v5                   ; d0 + 4hi
v_lshlrev_b32 v7, 12, v6
v_add_u32 v8, s34, v3
v_lshlrev_b32 v8, 1, v8
v_add_u32 v7, v7, v8                    ; (d0+4hi)*4096 + 2t
s_mov_b32 s35, {OFF_X2T}""")
    for r in range(16):
        dd=(r&3)+8*(r>>2)
        if dd==0: so="s35"
        else:
            a(f"s_add_u32 s74, s35, {dd*4096}"); so="s74"
        a(f"buffer_load_ushort v{X+r}, v7, s[{SRD_WS}:{SRD_WS+3}], {so} offen sc1")
    a("s_barrier")
    a(f"""s_lshl_b32 s35, s31, 11                 ; kh*2048
v_add_u32 v9, s35, v2                   ; H frag address inside a step
v_add_u32 v10, 0x10000, v9
v_add_u32 v13, 0x20000, v9""")
    ACC=16; FB=48
    def reads(j):
        b=FB+8*(j%2); sl=(j%HSLOTS)*4096+L_HR
        av=[9,10,13][sl>>16]
        o=sl&0xffff
        return [f"ds_read_b128 v[{b}:{b+3}], v{av} offset:{o}", f"ds_read_b128 v[{b+4}:{b+7}], v{av} offset:{o+1024}"]
    a("s_waitcnt vmcnt(0)\ns_barrier")
    for l in reads(0): a(l)
    for j in range(43):
        b=FB+8*(j%2)
        if j+1<43:
            if (j+1)%GRP==0: a("s_barrier")
            for l in reads(j+1): a(l)
            a("s_waitcnt lgkmcnt(2)")
        else: a("s_waitcnt lgkmcnt(0)")
        for tt in range(2):
            c="0" if j==0 else f"v[{ACC+16*tt}:{ACC+16*tt+15}]"
            a(f"v_mfma_f32_32x32x16_bf16 v[{ACC+16*tt}:{ACC+16*tt+15}], v[{WF+4*j}:{WF+4*j+3}], v[{b+4*tt}:{b+4*tt+3}], {c}")
    a(f"""s_barrier
s_lshl_b32 s35, s{S_WAVE}, 12
s_add_u32 s35, s35, {L_EX2}
v_add_u32 v4, s35, v2
s_xor_b32 s35, s{S_WAVE}, 2
s_lshl_b32 s35, s35, 12
s_add_u32 s35, s35, {L_EX2}
v_add_u32 v5, s35, v2""")
    lk=a.lab("L_kh1"); lj=a.lab("L_khj")
    a(f"s_cmp_eq_u32 s31, 0\ns_cbranch_scc0 {lk}")
    for g in range(4): a(f"ds_write_b128 v4, v[{ACC+16+4*g}:{ACC+16+4*g+3}] offset:{1024*g}")
    a(f"s_branch {lj}\n{lk}:")
    for g in range(4): a(f"ds_write_b128 v4, v[{ACC+4*g}:{ACC+4*g+3}] offset:{1024*g}")
    for i in range(16): a(f"v_mov_b32 v{ACC+i}, v{ACC+16+i}")
    a(f"{lj}:\ns_waitcnt lgkmcnt(0)\ns_barrier")
    for g in range(4): a(f"ds_read_b128 v[{48+4*g}:{48+4*g+3}], v5 offset:{1024*g}")
    srd(a,SRD_A,P_B2,1024)
    srd(a,SRD_OUT,P_OUT,2097152)
    lr=a.lab("L_gbr"); ok=a.lab("L_gbk")
    a(f"""v_lshlrev_b32 v11, 3, v6                ; (d0+4hi)*8
s_mov_b32 s35, {OFF_MOD+2560*8}
v_lshlrev_b32 v12, 1, v6""")
    for g in range(4): a(f"buffer_load_dwordx2 v[{64+2*g}:{65+2*g}], v12, s[{SRD_A}:{SRD_A+3}], 0 offen offset:{16*g}")
    a(f"{lr}:")
    for g in range(4):
        a(f"buffer_load_dwordx4 v[{72+8*g}:{75+8*g}], v11, s[{SRD_WS}:{SRD_WS+3}], s35 offen offset:{64*g} sc1")
        a(f"buffer_load_dwordx4 v[{76+8*g}:{79+8*g}], v11, s[{SRD_WS}:{SRD_WS+3}], s35 offen offset:{64*g+16} sc1")
    a("s_waitcnt vmcnt(0)")
    tagcheck(a,[73+2*k for k in range(16)],ok,lr,T=(13,14,15))
    a("s_waitcnt lgkmcnt(0)")
    for r in range(16):
        g=r>>2; k=r&3
        b2r=64+2*g+(k>>1)
        unp = f"v_lshlrev_b32 v2, 16, v{b2r}" if k%2==0 else f"v_and_b32 v2, 0xffff0000, v{b2r}"
        a(f"""v_add_f32 v{ACC+r}, v{ACC+r}, v{48+r}
{unp}
v_lshlrev_b32 v{X+r}, 16, v{X+r}
v_add_f32 v{ACC+r}, v{ACC+r}, v2
v_fma_f32 v{ACC+r}, v{72+8*g+2*k}, v{ACC+r}, v{X+r}""")
    for p in range(8): a(f"v_cvt_pk_bf16_f32 v{104+p}, v{ACC+2*p}, v{ACC+2*p+1}")
    a(f"""s_nop 1
v_permlane32_swap_b32 v104, v106
v_permlane32_swap_b32 v105, v107
v_permlane32_swap_b32 v108, v110
v_permlane32_swap_b32 v109, v111
v_add_u32 v8, s34, v3
v_lshlrev_b32 v8, 10, v8                ; t*1024
v_lshrrev_b32 v4, 5, v1
v_lshlrev_b32 v4, 4, v4                 ; hi*16B
s_lshl_b32 s35, s33, 1
v_add3_u32 v8, v8, v4, s35
buffer_store_dwordx4 v[104:107], v8, s[{SRD_OUT}:{SRD_OUT+3}], 0 offen
buffer_store_dwordx4 v[108:111], v8, s[{SRD_OUT}:{SRD_OUT+3}], 0 offen offset:32""")

def h_p4_tail(a):
    a("s_barrier\ns_barrier")

def dump_lds(a, nbytes):
    a(f"""s_mul_i32 s30, s2, {LDS_BYTES}
s_add_u32 s30, s30, {OFF_DBG}
v_lshlrev_b32 v2, 4, v0""")
    n=(nbytes+8191)//8192
    for i in range(n):
        a(f"""ds_read_b128 v[4:7], v2 offset:0
s_waitcnt lgkmcnt(0)
buffer_store_dwordx4 v[4:7], v2, s[{SRD_WS}:{SRD_WS+3}], s30 offen
v_add_u32 v2, 8192, v2
s_waitcnt vmcnt(0)""")

def build(stop):
    a=Asm()
    prologue(a)
    m_p1(a)
    if stop>=2: m_conv(a)
    a("s_branch L_P2_join")
    h_p1(a)
    if stop>=2: h_side(a)
    a("L_P2_join:")
    if stop==1:
        dump_lds(a,L_EG)
        a("s_branch L_end")
    conv_epilogue(a)
    if stop>=3:
        a(f"s_cmp_ge_u32 s{S_WAVE}, 4\ns_cbranch_scc1 L_H_P3")
        m_p3(a)
        a("s_branch L_P3_join")
        h_p3(a)
        a("L_P3_join:")
        p3_publish(a)
    if stop>=4:
        a(f"s_cmp_ge_u32 s{S_WAVE}, 4\ns_cbranch_scc1 L_H_P4")
        m_p4(a)
        a("s_branch L_P4_join")
        h_p4(a)
        h_p4_tail(a)
        a("L_P4_join:")
    dump_stamps(a,16)
    a("L_end:\ns_endpgm")
    return finish(a, f"; @launch grid=(256,1,1) block=(512,1,1) lds={LDS_BYTES}")

if __name__=="__main__":
    stop=int(sys.argv[1]) if len(sys.argv)>1 else 99
    if len(sys.argv)>3 and sys.argv[3]=='st': STAMPS=True
    out=sys.argv[2] if len(sys.argv)>2 else "out.s"
    open(out,"w").write(build(stop))
```

```python
import re

TRANS = ("v_exp_f32","v_log_f32","v_rcp_f32","v_rsq_f32","v_sqrt_f32","v_sin_f32","v_cos_f32","v_rcp_iflag_f32")
reg_re = re.compile(r"(?<![\w.])(-|abs\()?([vas])(\d+)(?![\w])|(?<![\w.])([vas])\[(\d+):(\d+)\]|(?<![\w.])(vcc|exec|m0|scc)(?:_lo|_hi)?(?![\w])")

def regs_of(op):
    out=set()
    for m in reg_re.finditer(op):
        if m.group(2): out.add((m.group(2),int(m.group(3))))
        elif m.group(4):
            for i in range(int(m.group(5)),int(m.group(6))+1): out.add((m.group(4),i))
        elif m.group(7): out.add((m.group(7),0))
    return out

def split_ops(rest):
    ops=[];depth=0;cur=""
    for ch in rest:
        if ch=='[': depth+=1
        if ch==']': depth-=1
        if ch==',' and depth==0: ops.append(cur.strip());cur=""
        else: cur+=ch
    if cur.strip(): ops.append(cur.strip())
    return ops

class Ins:
    def __init__(self,text):
        self.text=text
        t=text.split(';')[0].strip()
        self.label=None; self.mn=None
        self.defs=set(); self.uses=set()
        if not t: return
        if t.endswith(':'): self.label=t[:-1]; return
        if t.startswith('.'): return
        parts=t.split(None,1)
        self.mn=mn=parts[0]
        rest=parts[1] if len(parts)>1 else ""
        ops=split_ops(rest)
        self.mods=""
        if ops:
            last=ops[-1]
            mm=re.match(r"^(\S+(?:\s*\[[^\]]*\])?\)?)\s+(.*)$", last)
            if mm and not last.startswith('hwreg') :
                ops[-1]=mm.group(1); self.mods=mm.group(2)
        self.ops=ops
        self.is_valu = mn.startswith('v_') and not mn.startswith('v_mfma')
        self.is_mfma = mn.startswith('v_mfma')
        self.is_vmem = mn.startswith(('buffer_','global_','flat_'))
        self.is_ds = mn.startswith('ds_')
        self.is_salu = mn.startswith('s_')
        self.is_trans = any(mn.startswith(x) for x in TRANS)
        self.is_dpp = any(k in rest for k in ('row_shr','row_shl','row_bcast','quad_perm','row_ror','wave_sh','row_mirror','row_half_mirror','wave_ro'))
        self.is_permlane = mn.startswith('v_permlane')
        self.is_rdlane = mn.startswith(('v_readlane','v_readfirstlane'))
        R=[regs_of(o) for o in ops]
        store = mn.startswith(('buffer_store','global_store','ds_write','buffer_atomic','global_atomic','ds_add_u32','ds_add_f32'))
        lds_dma = self.is_vmem and (' lds' in ' '+self.mods or mn.startswith('global_load_lds'))
        self.lds_dma=lds_dma
        if mn.startswith(('s_cmp','s_bitcmp','s_cbranch','s_branch','s_waitcnt','s_barrier','s_nop','s_sleep','s_endpgm','s_setprio')):
            for r in R: self.uses|=r
            if mn.startswith('s_cbranch_vcc'): self.uses.add(('vcc',0))
            if mn.startswith('s_cbranch_exec'): self.uses.add(('exec',0))
        elif store or lds_dma:
            for r in R: self.uses|=r
            if lds_dma: self.uses.add(('m0',0))
        elif mn.startswith('v_cmp'):
            self.defs|=R[0]
            for r in R[1:]: self.uses|=r
        elif self.is_permlane and 'swap' in mn:
            self.defs|=R[0]|R[1]; self.uses|=R[0]|R[1]
        elif mn in ('v_add_co_u32','v_sub_co_u32','v_addc_co_u32','v_subb_co_u32','v_mad_u64_u32'):
            self.defs|=R[0]|R[1]
            for r in R[2:]: self.uses|=r
        else:
            if R: self.defs|=R[0]
            for r in R[1:]: self.uses|=r
            if mn.startswith(('v_fmac','v_dot2c','v_pk_fmac','v_mac')) : self.uses|=R[0]
            if self.is_dpp and R: self.uses|=R[0]
            if mn.startswith('v_cndmask') and len(ops)==3: self.uses.add(('vcc',0))
            if mn.startswith(('s_and_saveexec','s_or_saveexec')): self.defs.add(('exec',0)); self.uses.add(('exec',0))
            if mn.startswith('v_writelane'): self.uses|=R[0]
            if ('d16' in mn) and R: self.uses|=R[0]
        if self.is_mfma:
            self.passes = 8 if '32x32x16' in mn else (4 if '16x16x32' in mn else 16)
            self.D=R[0]; self.A=R[1]; self.B=R[2]; self.C=R[3] if len(R)>3 else set()
        self.wide_store = self.is_vmem and store and any(k in mn for k in ('x3','x4'))
        if self.wide_store:
            self.sdata = R[0] if mn.startswith('buffer') else R[1]
    def states(self):
        if self.mn=='s_nop': return int(self.ops[0],0)+1
        return 1 if self.mn else 0

def isv(r): return r[0] in ('v','a')
def iss(r): return r[0] in ('s','vcc')

def required(prev, cur):
    n=0
    if prev.mn is None: return 0
    if prev.is_valu:
        vw={r for r in prev.defs if isv(r)}
        sw={r for r in prev.defs if iss(r)}
        if vw:
            if cur.is_valu and cur.is_dpp and vw & cur.uses: n=max(n,2)
            if cur.is_valu and cur.is_permlane and vw & cur.uses: n=max(n,2)
            if cur.is_valu and cur.is_rdlane and vw & cur.uses: n=max(n,1)
            if cur.is_mfma and vw & cur.uses: n=max(n,2)
            if prev.is_trans and cur.is_valu and not cur.is_trans and vw & cur.uses: n=max(n,1)
            if prev.is_trans and (cur.is_mfma) and vw & cur.uses: n=max(n,2)
        if sw:
            if cur.is_valu and sw & cur.uses:
                n=max(n,4 if cur.mn.startswith(('v_readlane','v_writelane')) else 2)
            if cur.is_vmem and sw & cur.uses: n=max(n,5)
            if cur.is_mfma and sw & cur.uses: n=max(n,2)
        if ('exec',0) in prev.defs:
            n=max(n,5 if (cur.is_valu or cur.is_mfma) else 0)
    if prev.mn and prev.mn.startswith('v_dot'):
        D=prev.defs
        if cur.mn and (cur.is_valu or cur.is_mfma or cur.is_vmem or cur.is_ds):
            if cur.mn==prev.mn:
                srcs=set()
                for o in cur.ops[1:]: srcs|=regs_of(o)
                if D & srcs: n=max(n,3)
            elif D & (cur.uses|cur.defs): n=max(n,3)
    if prev.is_mfma:
        D=prev.D; P=prev.passes
        big={2:5,4:8,8:12,16:20}[P]; ov={2:4,4:6,8:10,16:18}[P]; war={2:1,4:3,8:7,16:15}[P]
        if cur.is_mfma:
            if D & (cur.A|cur.B): n=max(n,big)
            if D & cur.C:
                if not (cur.C==D and cur.passes==P): n=max(n,ov)
            if D & cur.D and not (D & cur.C): n=max(n,big)
        elif cur.mn and (cur.is_valu or cur.is_vmem or cur.is_ds):
            if D & (cur.uses|cur.defs): n=max(n,big)
            if cur.is_valu and (prev.C & cur.defs): n=max(n,war)
    if prev.mn and getattr(prev,'wide_store',False):
        if cur.is_valu and (prev.sdata & cur.defs): n=max(n,2)
        elif cur.mn and (prev.sdata & cur.defs) and not cur.is_salu: n=max(n,1)
    if prev.is_salu if prev.mn else False:
        if ('m0',0) in prev.defs and cur.mn and getattr(cur,'lds_dma',False): n=max(n,1)
    return n

MAXW=20
def fix(lines, verbose=False):
    ins=[Ins(l) for l in lines]
    label_in={}
    out=None
    for it in range(3):
        out=[]; hist=[]
        added=0
        reachable=True
        for I in ins:
            if I.label is not None:
                hs=label_in.get(I.label,[])
                merged={}
                for h in ([hist] if reachable else [])+hs:
                    for (p,a) in h:
                        k=id(p)
                        if k not in merged or a<merged[k][1]: merged[k]=(p,a)
                hist=sorted(merged.values(), key=lambda x:-x[1])
                reachable=True
                out.append(I.text); continue
            if I.mn is None:
                out.append(I.text); continue
            need=0
            for (p,a) in hist:
                r=required(p,I)
                if r-a>need: need=r-a
            if need>0:
                added+=need
                k=need
                while k>0:
                    c=min(k,16)
                    out.append(f"    s_nop {c-1}   ; hazard")
                    k-=c
                hist=[(p,a+need) for (p,a) in hist]
            st=I.states()
            hist=[(p,a+st) for (p,a) in hist if a+st<=MAXW]
            hist.append((I,0))
            out.append(I.text)
            if I.mn.startswith(('s_cbranch','s_branch')):
                tgt=I.ops[0]
                label_in.setdefault(tgt,[])
                label_in[tgt]=[h for h in label_in[tgt] if h is not None]
                label_in[tgt].append(list(hist))
                if len(label_in[tgt])>8: label_in[tgt]=label_in[tgt][-8:]
                if I.mn=='s_branch': reachable=False; hist=[]
            if I.mn=='s_endpgm': reachable=False; hist=[]
    if verbose: print("hazard nops added:",added)
    return out
```

```python
import sys, os
from base import *
EXP=set(os.environ.get('EXP','').split(','))
BS=' sc1' if 'bulksc1' in EXP else ''

OFF_E   =0x0
OFF_F2  =0x1000
OFF_F3  =0x2000
OFF_F2W =0x3000
OFF_F1W =0x88000
OFF_STAT=0x4000
OFF_MOD =0x8000
OFF_S   =0x10000
OFF_T   =0x12000
OFF_MODP=0x20000
OFF_FINS=0x80000
OFF_FING=0x81000
OFF_LNP =0x90000
OFF_XT  =0x110000
OFF_W1P =0x500000
OFF_W2F =0x700000
OFF_X2T =0x900000
OFF_H   =0xB00000
OFF_DBG =0x2000000
WS_SIZE =268435456
CS=4416; KCH=4*CS
L_KC=0
PL=1568; HCH=4*PL
L_EG=35328; EGW=17408
L_EX=104960
L_Y=98304; YW=9216
L_HP=135168
L_XP=147712
L_MISC=155904
L_MODP=L_MISC
L_CNT=L_MISC+512
L_W2S=L_MISC+1024
L_STV=161024
L_GA=L_CNT+56
E_W2=0; E_F2=4; E_SIDE=8; E_KX=12; E_EPI=16; E_F3=20; E_F2W=24; E_Y=28; E_GA=36; E_W1=40; E_PB=44; E_WF=48; E_STI=52; E_WE=32
L_PB=156928
LDS_BYTES=163840
SPIN=4000
PSL=int(os.environ.get('PSL','1'))
TAGC=0x9E3779B9

S_WAVE=3; S_TAG=4; S_P=5; S_XCD=6; S_IDX=7
SRD_WS=8; SRD_OUT=12; SRD_A=16; SRD_B=20; SRD_C=24
P_X=36;P_ARE=38;P_AIM=40;P_BRE=42;P_BIM=44;P_CRE=46;P_CIM=48;P_LDT=50
P_DSK=52;P_BX=54;P_W1=56;P_B1=58;P_W2=60;P_B2=62;P_C=64;P_WM=66;P_OUT=68;P_DBG=70;P_WS=72
LOG2E=0x3fb8aa3b; LOG2E_LO=0x32a57060; LN2=0x3f317218; INV2PI=0x3e22f983

def srd(a, r, p, size):
    a(f"""s_mov_b32 s{r}, s{p}
s_and_b32 s{r+1}, s{p+1}, 0xffff
s_mov_b32 s{r+2}, {size}
s_mov_b32 s{r+3}, 0x20000""")

def cmul(dst,x,y,tmp):
    return [f"v_pk_mul_f32 v[{tmp}:{tmp+1}], v[{x}:{x+1}], v[{y}:{y+1}] op_sel_hi:[1,0]",
            f"v_pk_fma_f32 v[{dst}:{dst+1}], v[{x}:{x+1}], v[{y}:{y+1}], v[{tmp}:{tmp+1}] op_sel:[1,1,0] op_sel_hi:[0,1,1] neg_lo:[1,0,0]"]

def cexp(dst,q,va,vb,t0,t1,t2):
    return [f"v_mul_f32 v{t0}, {q}, v{va}",
            f"v_mul_f32 v{t1}, {q}, v{vb}",
            f"v_exp_f32 v{t0}, v{t0}",
            f"v_fract_f32 v{t1}, v{t1}",
            f"v_cos_f32 v{t2}, v{t1}",
            f"v_sin_f32 v{t1}, v{t1}",
            f"v_mul_f32 v{dst}, v{t0}, v{t2}",
            f"v_mul_f32 v{dst+1}, v{t0}, v{t1}"]

def f32(x):
    import struct
    return "0x%08x"%struct.unpack('<I',struct.pack('<f',x))[0]

def rho(r,hi): return (r&3)+8*(r>>2)+4*hi
ROWS=[[0,1,2,3,4,5,6,7,512,516,520,1024,1032,1280,1288],
      [256,256,258,260,260,260,262,264,768,772,776,1536,1544,1792,1800]]
GROWS={}
for hi in (0,1):
    for r,q in enumerate(ROWS[hi]): GROWS.setdefault(q,[]).append(rho(r,hi))

STAMPS=False
def stamp(a,i):
    if not STAMPS: return
    a(f"""s_memtime s[78:79]
s_waitcnt lgkmcnt(0)
v_writelane_b32 v254, s78, {i}""")
def dump_stamps(a,n):
    if not STAMPS: return
    a(f"""s_lshl_b32 s30, s{S_WAVE}, 8
s_lshl_b32 s31, s2, 11
s_add_u32 s30, s30, s31
s_add_u32 s30, s30, {OFF_DBG+0x3000000}
v_lshlrev_b32 v2, 2, v1
buffer_store_dword v254, v2, s[{SRD_WS}:{SRD_WS+3}], s30 offen""")

def prologue(a):
    a(f"""s_cmp_ge_u32 s2, 256
s_cbranch_scc1 L_end
s_memtime s[80:81]
s_load_dwordx16 s[36:51], s[0:1], 0
s_load_dwordx16 s[52:67], s[0:1], 64
s_load_dwordx4 s[68:71], s[0:1], 128
s_load_dwordx2 s[72:73], s[0:1], 144
v_lshrrev_b32 v2, 6, v0
v_and_b32 v1, 63, v0
s_and_b32 s{S_XCD}, s2, 7
v_readfirstlane_b32 s{S_WAVE}, v2
s_lshr_b32 s{S_IDX}, s2, 3
s_lshl_b32 s{S_P}, s{S_XCD}, 5
s_add_u32 s{S_P}, s{S_P}, s{S_IDX}
s_waitcnt lgkmcnt(0)""")
    srd(a,SRD_WS,P_WS,WS_SIZE)
    if STAMPS:
        a("v_writelane_b32 v254, s80, 0")
        a("s_memrealtime s[78:79]\ns_waitcnt lgkmcnt(0)\nv_writelane_b32 v254, s78, 60")
    stamp(a,1)
    a(f"""v_mov_b32 v2, 0
buffer_load_dword v255, v2, s[{SRD_WS}:{SRD_WS+3}], 0 offen sc1
s_cmp_ge_u32 s{S_WAVE}, 4
s_cbranch_scc1 L_H_P1""")

def get_tag(a):
    a(f"""v_readfirstlane_b32 s{S_TAG}, v255
s_add_u32 s{S_TAG}, s{S_TAG}, {TAGC}""")

def m_p1(a):
    a(f"""s_lshr_b32 s28, s{S_WAVE}, 1          ; ch
s_lshl_b32 s29, s{S_P}, 1
s_add_u32 s29, s29, s28                ; d
s_and_b32 s30, s{S_WAVE}, 1
s_lshl_b32 s31, s29, 8
s_lshl_b32 s32, s30, 7
s_add_u32 s31, s31, s32                ; d*256 + half*128
v_lshlrev_b32 v9, 1, v1
v_add_u32 v9, s31, v9
global_load_ushort v2, v9, s[{P_ARE}:{P_ARE+1}]
global_load_ushort v3, v9, s[{P_AIM}:{P_AIM+1}]
global_load_ushort v4, v9, s[{P_BRE}:{P_BRE+1}]
global_load_ushort v5, v9, s[{P_BIM}:{P_BIM+1}]
global_load_ushort v6, v9, s[{P_CRE}:{P_CRE+1}]
global_load_ushort v7, v9, s[{P_CIM}:{P_CIM+1}]
s_lshl_b32 s32, s29, 1
v_mov_b32 v10, s32
global_load_ushort v8, v10, s[{P_LDT}:{P_LDT+1}]""")
    a(f"""v_mov_b32 v12, 0
v_mov_b32 v13, 0
v_mov_b32 v14, 0
v_mov_b32 v15, 0
v_lshrrev_b32 v10, 5, v1                ; 0/1
s_lshl_b32 s32, s{S_WAVE}, 1
v_add_u32 v10, s32, v10
v_mul_u32_u24 v10, {PL}, v10
v_and_b32 v11, 31, v1
v_lshlrev_b32 v11, 4, v11
v_add_u32 v10, v10, v11
v_add_u32 v10, {L_HP}, v10
ds_write_b128 v10, v[12:15]
v_lshrrev_b32 v10, 3, v1
v_mul_u32_u24 v10, {CS}, v10
v_and_b32 v11, 7, v1
v_lshlrev_b32 v11, 4, v11
v_add_u32 v10, v10, v11
ds_write_b128 v10, v[12:15] offset:{L_KC+16+4064}
s_waitcnt lgkmcnt(0)
s_barrier""")
    a(f"""s_mul_i32 s33, s{S_WAVE}, {EGW}
s_add_u32 s33, s33, {L_EG}
v_lshlrev_b32 v60, 2, v1
v_add_u32 v60, s33, v60
v_add_u32 v61, {32*272}, v60
s_mov_b32 s34, {LOG2E}
s_mov_b32 s35, {LOG2E_LO}
s_waitcnt vmcnt(0)""")
    stamp(a,2)
    get_tag(a)
    a(f"""v_lshlrev_b32 v2, 16, v2
v_lshlrev_b32 v3, 16, v3
v_lshlrev_b32 v4, 16, v4
v_lshlrev_b32 v5, 16, v5
v_lshlrev_b32 v6, 16, v6
v_lshlrev_b32 v7, 16, v7
v_lshlrev_b32 v8, 16, v8
v_mul_f32 v10, s34, v8
v_fma_f32 v11, v8, s34, -v10
v_fma_f32 v11, v8, s35, v11
v_exp_f32 v10, v10
v_mul_f32 v11, {LN2}, v11
v_fma_f32 v10, v10, v11, v10
v_cvt_pk_bf16_f32 v10, v10, v10
v_lshlrev_b32 v8, 16, v10
v_mul_f32 v2, v8, v2                    ; zr
v_mul_f32 v3, v8, v3                    ; zi
v_mul_f32 v4, v8, v4
v_mul_f32 v5, v8, v5
v_mul_f32 v10, v6, v4
v_mul_f32 v11, v6, v5
v_fma_f32 v10, -v7, v5, v10             ; wr
v_fma_f32 v11, v7, v4, v11              ; wi
v_mul_f32 v12, s34, v2
v_mul_f32 v13, {INV2PI}, v3""")
    W=10; U1=14;U2=16;U4=18;U8=20;U16=22;U256=24;U512=26;U1024=28
    a(f"""s_mov_b32 s74, {f32(8.0)}
s_mov_b32 s75, {f32(256.0)}
s_mov_b32 s76, {f32(512.0)}
s_mov_b32 s77, {f32(1024.0)}""")
    a.interleave(cexp(U8,"s74",12,13,38,39,40), cexp(U1,"1.0",12,13,41,42,43), cexp(U256,"s75",12,13,44,45,46))
    a.interleave(cexp(U512,"s76",12,13,38,39,40), cexp(U1024,"s77",12,13,41,42,43), cmul(U16,U8,U8,44)+cmul(U2,U1,U1,46))
    for l in cmul(U4,U2,U2,44): a(l)
    def emitG(q,reg,tmp):
        o=[f"v_cvt_pk_bf16_f32 v{tmp}, v{reg}, v{reg+1}"]
        if 'nods' in EXP: return o
        for r in GROWS[q]: o.append(f"ds_write_b32 v60, v{tmp} offset:{r*272}")
        return o
    def emitE(b,reg,tmp):
        if 'nods' in EXP: return [f"v_cvt_pk_bf16_f32 v{tmp}, v{reg}, -v{reg+1}"]
        return [f"v_cvt_pk_bf16_f32 v{tmp}, v{reg}, -v{reg+1}", f"ds_write_b32 v61, v{tmp} offset:{b*272}"]
    EA=30; EB=32
    sE=[]; sO=[]
    sE+=[f"v_mov_b32 v54, 0x3f80", f"ds_write_b32 v61, v54 offset:0"]
    sE+=[f"v_mov_b32 v{EA}, v{U16}", f"v_mov_b32 v{EA+1}, v{U16+1}"]+emitE(2,EA,54)
    for b in range(4,32,2): sE+=cmul(EA,EA,U16,48)+emitE(b,EA,54)
    sO+=[f"v_mov_b32 v{EB}, v{U8}", f"v_mov_b32 v{EB+1}, v{U8+1}"]+emitE(1,EB,55)
    for b in range(3,32,2): sO+=cmul(EB,EB,U16,50)+emitE(b,EB,55)
    GA=34; GB=36; GC=58
    sG=[]
    sG+=emitG(0,W,56)+cmul(GA,W,U1,52)+emitG(1,GA,56)
    for c in range(2,8): sG+=cmul(GA,GA,U1,52)+emitG(c,GA,56)
    sG+=cmul(GA,W,U256,52)+emitG(256,GA,56)
    sG+=cmul(GB,GA,U8,52)+emitG(264,GB,56)
    for q in (258,260,262): sG+=cmul(GA,GA,U2,52)+emitG(q,GA,56)
    sG+=cmul(GA,W,U512,52)+emitG(512,GA,56)
    sG+=cmul(GB,GA,U4,52)+emitG(516,GB,56)+cmul(GB,GA,U8,52)+emitG(520,GB,56)
    sG+=cmul(GA,GA,U256,52)+emitG(768,GA,56)
    sG+=cmul(GB,GA,U4,52)+emitG(772,GB,56)+cmul(GB,GA,U8,52)+emitG(776,GB,56)
    sG+=cmul(GA,W,U1024,52)+emitG(1024,GA,56)+cmul(GB,GA,U8,52)+emitG(1032,GB,56)
    sG+=cmul(GC,GA,U256,52)+emitG(1280,GC,56)+cmul(GB,GC,U8,52)+emitG(1288,GB,56)
    sG+=cmul(GA,GA,U512,52)+emitG(1536,GA,56)+cmul(GB,GA,U8,52)+emitG(1544,GB,56)
    sG+=cmul(GA,GA,U256,52)+emitG(1792,GA,56)+cmul(GB,GA,U8,52)+emitG(1800,GB,56)
    a.interleave(sE,sO,sG[:len(sG)//2],sG[len(sG)//2:]) if False else a.interleave(sE,sO,sG)
    stamp(a,3)
    if 'hwait' in EXP: a("s_barrier")
    a(f"""v_and_b32 v62, 31, v1
v_mul_u32_u24 v62, 272, v62
v_lshrrev_b32 v63, 5, v1
v_lshlrev_b32 v63, 4, v63
v_add3_u32 v62, v62, v63, s33
v_add_u32 v63, {32*272}, v62
s_waitcnt lgkmcnt(0)""")
    FA=64
    for s in range(7):
        a(f"ds_read_b128 v[{FA+8*s}:{FA+8*s+3}], v62 offset:{32*s}")
        a(f"ds_read_b128 v[{FA+8*s+4}:{FA+8*s+7}], v63 offset:{32*s}")
    ACC=128
    for s in range(8):
        if s==0:
            a("s_waitcnt lgkmcnt(12)")
        elif s==1:
            a(f"ds_read_b128 v[{FA+56}:{FA+59}], v62 offset:{32*7}")
            a(f"ds_read_b128 v[{FA+60}:{FA+63}], v63 offset:{32*7}")
            a("s_waitcnt lgkmcnt(12)")
        else:
            a(f"s_waitcnt lgkmcnt({2*(7-s)})")
        c = "0" if s==0 else f"v[{ACC}:{ACC+15}]"
        a(f"v_mfma_f32_32x32x16_bf16 v[{ACC}:{ACC+15}], v[{FA+8*s}:{FA+8*s+3}], v[{FA+8*s+4}:{FA+8*s+7}], {c}")
    a(f"""s_lshl_b32 s34, s{S_WAVE}, 12
s_add_u32 s34, s34, {L_EX}
v_lshlrev_b32 v62, 4, v1
v_add_u32 v63, s34, v62
s_xor_b32 s35, s34, 4096
v_add_u32 v62, s35, v62""")
    for g in range(4): a(f"ds_write_b128 v63, v[{ACC+4*g}:{ACC+4*g+3}] offset:{1024*g}")
    a(f"""s_xor_b32 s35, s{S_WAVE}, 1
s_lshl_b32 s35, s35, 12
s_add_u32 s35, s35, {L_EX}
v_lshlrev_b32 v62, 4, v1
v_add_u32 v62, s35, v62
s_waitcnt lgkmcnt(0)""")
    stamp(a,4)
    ev_add(a,E_KX)
    ev_wait(a,E_KX,4)
    stamp(a,5)
    for g in range(4): a(f"ds_read_b128 v[{FA+4*g}:{FA+4*g+3}], v62 offset:{1024*g}")
    a(f"""s_lshr_b32 s28, s{S_WAVE}, 1
s_mul_i32 s28, s28, {KCH}
s_add_u32 s28, s28, {L_KC+16+4080-8}
v_and_b32 v2, 31, v1
v_lshlrev_b32 v2, 4, v2                 ; 16c
v_sub_u32 v2, s28, v2                   ; base - 16c
v_lshrrev_b32 v3, 5, v1                 ; hi
s_mov_b32 s30, 0xaaaaaaaa
s_mov_b32 s31, 0xaaaaaaaa
s_waitcnt lgkmcnt(0)""")
    for i in range(16): a(f"v_add_f32 v{ACC+i}, v{ACC+i}, v{FA+i}")
    def chunk(e, base0, basehi):
        D=84; O=88; K0=4
        a(f"""v_mul_u32_u24 v{K0}, {2*basehi}, v3
v_add_u32 v{K0}, {2*base0}, v{K0}
v_sub_u32 v{K0}, v2, v{K0}
v_add_u32 v{K0+1}, {CS}, v{K0}
v_add_u32 v{K0+2}, {2*CS}, v{K0}
v_add_u32 v{K0+3}, {3*CS}, v{K0}""")
        f=[e[7-j] for j in range(8)]
        for j in range(4): a(f"v_cvt_pk_bf16_f32 v{D+j}, v{f[2*j]}, v{f[2*j+1]}")
        for j in range(3): a(f"v_cvt_pk_bf16_f32 v{O+j}, v{f[2*j+1]}, v{f[2*j+2]}")
        a(f"""ds_write_b128 v{K0}, v[{D}:{D+3}] offset:8
ds_write2_b32 v{K0+2}, v{D}, v{D+1} offset0:1 offset1:2
ds_write2_b32 v{K0+2}, v{D+2}, v{D+3} offset0:3 offset1:4
ds_write_b16 v{K0+1}, v{D} offset:6
ds_write_b96 v{K0+1}, v[{O}:{O+2}] offset:8
ds_write_b16_d16_hi v{K0+1}, v{D+3} offset:20
ds_write_b16 v{K0+3}, v{D} offset:2
ds_write2_b32 v{K0+3}, v{O}, v{O+1} offset0:1 offset1:2
ds_write_b32 v{K0+3}, v{O+2} offset:12
ds_write_b16_d16_hi v{K0+3}, v{D+3} offset:16""")
    R=lambda r: ACC+r
    lo=a.lab("L_kodd"); le=a.lab("L_kend")
    a(f"""s_bitcmp1_b32 s{S_WAVE}, 0
s_cbranch_scc1 {lo}""")
    chunk([R(i) for i in range(8)],0,256)
    a(f"v_cndmask_b32 v8, v{R(11)}, v{R(12)}, s[30:31]")
    chunk([R(11)]*4+[8]+[R(12)]*3,1024,512)
    a(f"s_branch {le}\n{lo}:")
    chunk([R(8)]*3+[R(9)]*3+[R(10)]*2,512,256)
    a(f"v_cndmask_b32 v8, v{R(13)}, v{R(14)}, s[30:31]")
    chunk([R(13)]*4+[8]+[R(14)]*3,1280,512)
    a(f"{le}:")
    a("s_waitcnt lgkmcnt(0)")
    stamp(a,6)
    a("s_barrier")
    stamp(a,7)

def dpp_reduce(regs, full=True):
    o=[]
    for sh in (1,2,4,8):
        for r in regs: o.append(f"v_add_f32_dpp v{r}, v{r}, v{r} row_shr:{sh} row_mask:0xf bank_mask:0xf")
    for r in regs: o.append(f"v_add_f32_dpp v{r}, v{r}, v{r} row_bcast:15 row_mask:0xa bank_mask:0xf")
    if full:
        for r in regs: o.append(f"v_add_f32_dpp v{r}, v{r}, v{r} row_bcast:31 row_mask:0xc bank_mask:0xf")
    return o

def dpp_reduce_rows(regs):
    o=[]
    for sh in (1,2,4,8):
        for r in regs: o.append(f"v_add_f32_dpp v{r}, v{r}, v{r} row_shr:{sh} row_mask:0xf bank_mask:0xf")
    return o

def gemv16(a, nvec, vecregs, wregs, accbase):
    for v in range(nvec):
        for k in range(8): a(f"v_mov_b32 v{accbase+8*v+k}, 0")
    for i in range(4):
        for v in range(nvec):
            lo,hi=vecregs[v][i]
            for k in range(4):
                a(f"v_dot2c_f32_bf16 v{accbase+8*v+2*k}, v{wregs[i]+k}, v{lo}")
                a(f"v_dot2c_f32_bf16 v{accbase+8*v+2*k+1}, v{wregs[i]+k}, v{hi}")

def silu_pack(a,c,lo,hi,t):
    a(f"""v_lshlrev_b32 v{c}, 16, v{c}
v_mul_f32 v{t}, {f32(-1.4426950408889634)}, v{c}
v_exp_f32 v{t}, v{t}
v_add_f32 v{t}, 1.0, v{t}
v_rcp_f32 v{t}, v{t}
v_mul_f32 v{t}, v{c}, v{t}
v_cvt_pk_bf16_f32 v{lo}, v{t}, 0
v_lshlrev_b32 v{hi}, 16, v{lo}""")

def mod_tile_loads(a):
    a(f"""v_lshrrev_b32 v4, 3, v1
s_lshl_b32 s34, s35, 5
v_add_u32 v4, s34, v4
v_mul_u32_u24 v5, 6144, v4
v_and_b32 v6, 7, v1
v_lshlrev_b32 v6, 4, v6
v_add_u32 v5, v5, v6
v_lshlrev_b32 v4, 1, v4
s_lshl_b32 s34, s33, 7""")
    for i in range(4):
        a(f"buffer_load_dwordx4 v[{36+4*i}:{39+4*i}], v5, s[{SRD_B}:{SRD_B+3}], s34 offen")
        if i<3: a(f"s_add_u32 s34, s34, {8*6144}")
    for i in range(4):
        a(f"buffer_load_ushort v{52+i}, v4, s[{SRD_C}:{SRD_C+3}], 0 offen offset:{16*i}")

def mod_tile_compute(a):
    for i in range(4): silu_pack(a,52+i,100+2*i,101+2*i,56)
    gemv16(a,1,[[(100+2*i,101+2*i) for i in range(4)]],[36+4*i for i in range(4)],110)
    a("s_nop 1")
    for k in range(4): a(f"v_permlane32_swap_b32 v{110+2*k}, v{111+2*k}")
    for k in range(4): a(f"v_add_f32 v{110+2*k}, v{110+2*k}, v{111+2*k}")
    a("""s_nop 1
v_permlane16_swap_b32 v110, v112
v_permlane16_swap_b32 v114, v116
v_add_f32 v110, v110, v112
v_add_f32 v114, v114, v116
s_nop 1
v_add_f32_dpp v110, v110, v110 row_ror:8 row_mask:0xf bank_mask:0xf
v_add_f32_dpp v114, v114, v114 row_ror:8 row_mask:0xf bank_mask:0xf""")
    a(f"""v_bfe_u32 v6, v1, 3, 1
v_cmp_eq_u32 vcc, 1, v6
v_cndmask_b32 v118, v110, v114, vcc
v_mov_b32 v119, s{S_TAG}
v_and_b32 v7, 7, v1
v_lshlrev_b32 v7, 3, v7
v_lshlrev_b32 v6, 2, v6
v_bfe_u32 v8, v1, 4, 1
v_lshlrev_b32 v8, 1, v8
v_lshrrev_b32 v9, 5, v1
v_add3_u32 v7, v7, v6, v8
v_add_u32 v7, v7, v9
v_lshlrev_b32 v7, 3, v7                 ; *8 bytes
s_mul_i32 s30, s35, {3072*8}
s_lshl_b32 s31, s33, 9
s_add_u32 s30, s30, s31
s_add_u32 s30, s30, {OFF_MODP}
buffer_store_dwordx2 v[118:119], v7, s[{SRD_WS}:{SRD_WS+3}], s30 offen sc1""")

def h_p1(a):
    a("L_H_P1:")
    a(f"s_sub_u32 s28, s{S_WAVE}, 4            ; hw")
    srd(a,SRD_A,P_X,2097152)
    a(f"""v_and_b32 v2, 1, v1
v_lshlrev_b32 v2, 12, v2                ; 4*(l&1)*1024
v_lshrrev_b32 v3, 1, v1
s_lshl_b32 s29, s28, 6
v_add_u32 v3, s29, v3
v_lshlrev_b32 v3, 2, v3
v_add_u32 v2, v2, v3
s_lshl_b32 s30, s2, 13                  ; j*8192""")
    for i in range(2):
        for k in range(4):
            a(f"buffer_load_dword v{10+4*i+k}, v2, s[{SRD_A}:{SRD_A+3}], s30 offen offset:{128*i+1024*k}")
    a(f"""s_lshl_b32 s32, s28, 11
s_add_u32 s32, s32, s30
v_lshlrev_b32 v3, 4, v1
buffer_load_dwordx4 v[26:29], v3, s[{SRD_A}:{SRD_A+3}], s32 offen
buffer_load_dwordx4 v[30:33], v3, s[{SRD_A}:{SRD_A+3}], s32 offen offset:1024""")
    if 'w2late' not in EXP: w2_loads(a)
    srd(a,SRD_B,P_WM,3145728)
    srd(a,SRD_C,P_C,1024)
    l7=a.lab("L_t7"); lt=a.lab("L_tj")
    a(f"""s_cmp_eq_u32 s28, 3
s_cbranch_scc1 {l7}
s_lshl_b32 s33, s2, 1
s_add_u32 s33, s33, s28
s_sub_u32 s33, s33, 1                   ; tau
s_lshr_b32 s35, s33, 5
s_and_b32 s33, s33, 31
s_add_u32 s33, s33, 16
s_branch {lt}
{l7}:
s_and_b32 s33, s2, 15
s_lshr_b32 s35, s2, 4""")
    mod_tile_loads(a)
    a(f"""{lt}:
v_mov_b32 v8, 0
v_mov_b32 v9, 0
v_mov_b32 v34, {L_CNT}
ds_write_b64 v34, v[8:9]
ds_write_b64 v34, v[8:9] offset:8
ds_write_b64 v34, v[8:9] offset:16
ds_write_b64 v34, v[8:9] offset:24
ds_write_b64 v34, v[8:9] offset:32
ds_write_b64 v34, v[8:9] offset:40
ds_write_b64 v34, v[8:9] offset:48
s_waitcnt lgkmcnt(0)
s_barrier""")
    lm=a.lab("L_hasmod"); lm2=a.lab("L_w")
    a(f"""s_cmp_eq_u32 s28, 3
s_cbranch_scc1 {lm}
s_waitcnt vmcnt({2 if 'w2late' in EXP else 4})
s_branch {lm2}
{lm}:
s_waitcnt vmcnt({10 if 'w2late' in EXP else 12})
{lm2}:""")
    stamp(a,2)
    a(f"""v_lshlrev_b32 v2, 4, v1
s_lshl_b32 s30, s2, 13
s_lshl_b32 s31, s28, 11
s_add_u32 s30, s30, s31
s_add_u32 s30, s30, {OFF_XT}""")
    for i in range(2):
        a(f"buffer_store_dwordx4 v[{10+4*i}:{13+4*i}], v2, s[{SRD_WS}:{SRD_WS+3}], s30 offen offset:{1024*i} sc1")
    get_tag(a)
    ln=a.lab("L_no56"); l1=a.lab("L_w56"); l2=a.lab("L_w7"); l3=a.lab("L_wj")
    a(f"""s_cmp_eq_u32 s28, 0
s_cbranch_scc1 {ln}
s_cmp_eq_u32 s28, 3
s_cbranch_scc1 {l2}""")
    mod_tile_loads(a)
    if 'w2late' in EXP:
        a(f"""{l2}:
s_waitcnt vmcnt(10)
s_branch {l3}
{ln}:
s_waitcnt vmcnt(2)
{l3}:""")
    else:
        a(f"""{l2}:
s_waitcnt vmcnt(12)
s_branch {l3}
{ln}:
s_waitcnt vmcnt(4)
{l3}:""")
    X=60
    for t in range(2):
        for k in range(4):
            a(f"v_lshlrev_b32 v{X+8*t+2*k}, 16, v{26+4*t+k}")
            a(f"v_and_b32 v{X+8*t+2*k+1}, 0xffff0000, v{26+4*t+k}")
    for t in range(2):
        a(f"v_add_f32 v{84+t}, v{X+8*t}, v{X+8*t+1}")
    for k in range(2,8):
        for t in range(2): a(f"v_add_f32 v{84+t}, v{84+t}, v{X+8*t+k}")
    for l in dpp_reduce([84,85]): a(l)
    a(f"""v_readlane_b32 s74, v84, 63
v_readlane_b32 s75, v85, 63
s_mov_b32 s76, {f32(1/512)}
v_mov_b32 v84, s74
v_mov_b32 v85, s75
v_mul_f32 v84, s76, v84
v_mul_f32 v85, s76, v85""")
    for k in range(8):
        for t in range(2): a(f"v_sub_f32 v{X+8*t+k}, v{X+8*t+k}, v{84+t}")
    for t in range(2):
        a(f"v_mul_f32 v{86+t}, v{X+8*t}, v{X+8*t}")
    for k in range(1,8):
        for t in range(2): a(f"v_fmac_f32 v{86+t}, v{X+8*t+k}, v{X+8*t+k}")
    for l in dpp_reduce([86,87]): a(l)
    a(f"""v_mul_f32 v86, s76, v86
v_mul_f32 v87, s76, v87
v_cvt_pk_bf16_f32 v88, v86, v87         ; bf16(var)
v_lshlrev_b32 v86, 16, v88
v_and_b32 v87, 0xffff0000, v88
v_add_f32 v86, {f32(1e-5)}, v86
v_add_f32 v87, {f32(1e-5)}, v87
v_cvt_pk_bf16_f32 v88, v86, v87
v_lshlrev_b32 v86, 16, v88
v_and_b32 v87, 0xffff0000, v88
v_sqrt_f32 v86, v86
v_sqrt_f32 v87, v87
v_cvt_pk_bf16_f32 v90, v84, v86         ; token0: (m, s)
v_cvt_pk_bf16_f32 v92, v85, v87         ; token1
v_mov_b32 v91, s{S_TAG}
v_mov_b32 v93, s{S_TAG}
s_lshl_b32 s30, s2, 6
s_lshl_b32 s31, s28, 4
s_add_u32 s30, s30, s31
s_add_u32 s30, s30, {OFF_STAT}
v_mov_b32 v94, 0""")
    lx=a.lab("L_x8"); ly=a.lab("L_x0")
    a(f"""s_cmp_eq_u32 s28, 1
s_cbranch_scc1 {lx}
s_cmp_eq_u32 s28, 2
s_cbranch_scc1 {lx}
s_waitcnt vmcnt(0)
s_branch {ly}
{lx}:
s_waitcnt vmcnt(8)
{ly}:
s_mov_b32 exec_lo, 0
s_mov_b32 exec_hi, 0x80000000
buffer_store_dwordx4 v[90:93], v94, s[{SRD_WS}:{SRD_WS+3}], s30 offen sc1
s_mov_b64 exec, -1""")
    stamp(a,3)
    lend=a.lab("L_nomodc"); lw2=a.lab("L_w2go")
    a(f"s_cmp_eq_u32 s28, 0\ns_cbranch_scc1 {lend}")
    a("s_waitcnt vmcnt(1)")
    mod_tile_compute(a)
    a(f"{lend}:")
    w1_loads(a)
    w2_prep(a)
    stamp(a,4)
    h_build(a)

def tagcheck(a, regs, lab_ok, lab_retry, T=(250,251,252)):
    t0,t1,t2=T
    a(f"v_xor_b32 v{t0}, s{S_TAG}, v{regs[0]}")
    rest=regs[1:]
    i=0
    while i<len(rest):
        a(f"v_xor_b32 v{t1}, s{S_TAG}, v{rest[i]}")
        if i+1<len(rest):
            a(f"v_xor_b32 v{t2}, s{S_TAG}, v{rest[i+1]}\nv_or3_b32 v{t0}, v{t0}, v{t1}, v{t2}"); i+=2
        else:
            a(f"v_or_b32 v{t0}, v{t0}, v{t1}"); i+=1
    a(f"""v_cmp_ne_u32 vcc, 0, v{t0}
s_cbranch_vccz {lab_ok}
s_sub_u32 s99, s99, 1
s_cmp_eq_u32 s99, 0
s_cbranch_scc1 {lab_ok}
s_sleep {PSL}
s_branch {lab_retry}
{lab_ok}:""")

def h_build(a):
    a(f"""s_mov_b32 s99, {SPIN}
v_lshrrev_b32 v2, 2, v1                 ; l>>2
s_lshl_b32 s29, s28, 6
v_add_u32 v2, s29, v2
v_and_b32 v3, 3, v1                     ; q
v_lshlrev_b32 v4, 13, v2
v_lshlrev_b32 v5, 3, v3
v_add_u32 v4, v4, v5                    ; tb*8192 + 8q
v_lshlrev_b32 v5, 4, v3
s_lshl_b32 s33, s{S_P}, 5
s_add_u32 s33, s33, {OFF_XT}
v_lshlrev_b32 v6, 6, v2
v_add_u32 v6, v6, v5                    ; tb*64 + 16q
v_and_b32 v7, 15, v1
v_mul_u32_u24 v7, {3072*8}, v7          ; rb
v_lshrrev_b32 v8, 4, v1
v_lshlrev_b32 v9, 12, v8
v_add_u32 v70, v7, v9                   ; groups 2..5
v_and_b32 v9, 0x1000, v9
v_add_u32 v7, v7, v9                    ; groups 0,1
s_lshl_b32 s31, s{S_P}, 4
s_add_u32 s31, s31, {OFF_MODP}
s_add_u32 s30, s31, {2*4096}""")
    lr=a.lab("L_pollx"); ok=a.lab("L_okx"); lf1=a.lab("L_nof1w")
    a("s_waitcnt vmcnt(0)")
    a("v_mov_b32 v71, v7\nv_mov_b32 v72, v8\nv_mov_b32 v73, v9\nv_mov_b32 v74, v2\nv_mov_b32 v75, v3\ns_mov_b32 s96, s30")
    last_arriver(a,E_W2,4,lf1)
    store_flag(a,OFF_F1W)
    a(f"{lf1}:")
    a("v_mov_b32 v7, v71\nv_mov_b32 v8, v72\nv_mov_b32 v9, v73\nv_mov_b32 v2, v74\nv_mov_b32 v3, v75\ns_mov_b32 s30, s96")
    if 'xsl' in EXP: a(f"s_sleep {os.environ.get('XSL','8')}")
    a(f"{lr}:")
    a(f"s_mov_b32 s32, {OFF_STAT}")
    for i in range(4):
        a(f"buffer_load_dwordx4 v[{26+4*i}:{29+4*i}], v6, s[{SRD_WS}:{SRD_WS+3}], s32 offen offset:{1024*i} sc1")
    a(f"""buffer_load_dwordx4 v[42:45], v7, s[{SRD_WS}:{SRD_WS+3}], s31 offen sc1
buffer_load_dwordx4 v[128:131], v70, s[{SRD_WS}:{SRD_WS+3}], s30 offen sc1
s_waitcnt vmcnt(0)""")
    tagcheck(a,[27+2*k for k in range(10)]+[129,131],ok,lr)
    stamp(a,6)
    a("s_mov_b32 s32, s33")
    for i in range(4):
        a(f"buffer_load_dwordx2 v[{10+2*i}:{11+2*i}], v4, s[{SRD_WS}:{SRD_WS+3}], s32 offen{BS}")
        if i<3: a(f"s_add_u32 s32, s32, {16*8192}")
    side_compute(a)
    for l in dpp_reduce_rows([42,44]): a(l)
    a(f"""v_cvt_pk_bf16_f32 v46, v42, v44
s_nop 0
v_readlane_b32 s74, v46, 15
v_readlane_b32 s75, v46, 31
s_lshl_b32 s76, s74, 16
s_and_b32 s77, s74, 0xffff0000
v_mov_b32 v54, s76
v_mov_b32 v55, s77
s_lshl_b32 s76, s75, 16
s_and_b32 s77, s75, 0xffff0000
v_add_f32 v46, s76, 1.0
v_add_f32 v48, s77, 1.0
v_cvt_pk_bf16_f32 v50, v46, v48
v_lshlrev_b32 v52, 16, v50
v_and_b32 v53, 0xffff0000, v50          ; c1 pair v[52:53]
v_and_b32 v8, 3, v2
v_mul_u32_u24 v8, {PL}, v8
v_lshrrev_b32 v9, 2, v2
v_lshlrev_b32 v9, 4, v9
v_lshlrev_b32 v5, 2, v3
v_add3_u32 v8, v8, v9, v5
v_add_u32 v8, {L_HP+512}, v8
v_lshlrev_b32 v9, 4, v2
v_add_u32 v9, v9, v5                    ; tb*16 + 4q
v_add_u32 v9, {L_XP}, v9
s_mov_b32 s74, 0x05040100
s_mov_b32 s75, 0x07060302""")
    for i in range(4):
        X0=10+2*i; X1=X0+1; S0=26+4*i; S1=S0+2
        if i==0:
            lq=a.lab("L_xq"); lq2=a.lab("L_xq2")
            a(f"s_cmp_eq_u32 s28, 0\ns_cbranch_scc1 {lq}\ns_waitcnt vmcnt(2)\ns_branch {lq2}\n{lq}:\ns_waitcnt vmcnt(4)\n{lq2}:")
        a(f"""v_lshlrev_b32 v56, 16, v{S0}
v_and_b32 v57, 0xffff0000, v{S0}
v_lshlrev_b32 v58, 16, v{S1}
v_and_b32 v59, 0xffff0000, v{S1}
v_rcp_f32 v57, v57
v_rcp_f32 v59, v59
v_lshlrev_b32 v60, 16, v{X0}
v_and_b32 v61, 0xffff0000, v{X0}
v_lshlrev_b32 v62, 16, v{X1}
v_and_b32 v63, 0xffff0000, v{X1}
v_pk_add_f32 v[60:61], v[60:61], v[56:57] op_sel_hi:[1,0] neg_lo:[0,1] neg_hi:[0,1]
v_pk_add_f32 v[62:63], v[62:63], v[58:59] op_sel_hi:[1,0] neg_lo:[0,1] neg_hi:[0,1]
v_pk_mul_f32 v[60:61], v[60:61], v[56:57] op_sel:[0,1] op_sel_hi:[1,1]
v_pk_mul_f32 v[62:63], v[62:63], v[58:59] op_sel:[0,1] op_sel_hi:[1,1]
v_pk_fma_f32 v[60:61], v[60:61], v[52:53], v[54:55]
v_pk_fma_f32 v[62:63], v[62:63], v[52:53], v[54:55]
v_perm_b32 v66, v{X1}, v{X0}, s74
v_perm_b32 v67, v{X1}, v{X0}, s75
v_cvt_pk_bf16_f32 v64, v60, v62
v_cvt_pk_bf16_f32 v65, v61, v63
ds_write_b32 v8, v64 offset:{64*i}
ds_write_b32 v8, v65 offset:{HCH+64*i}
ds_write_b32 v9, v66 offset:{256*i}
ds_write_b32 v9, v67 offset:{4096+256*i}""")
    a("s_waitcnt lgkmcnt(0)\ns_barrier")
    stamp(a,7)


def m_conv(a):
    a(f"""s_lshr_b32 s28, s{S_WAVE}, 1          ; ch
s_and_b32 s29, s{S_WAVE}, 1             ; m half
v_and_b32 v2, 31, v1                    ; i / a'
v_lshrrev_b32 v3, 5, v1                 ; hi
v_sub_u32 v4, 3, v2
v_and_b32 v4, 3, v4                     ; s = (3-i)&3
v_mul_u32_u24 v5, {CS}, v4
v_lshlrev_b32 v6, 3, v3                 ; 8hi
v_sub_u32 v6, v6, v2
v_sub_u32 v6, v6, v4
v_add_u32 v6, 2047, v6                  ; 2047 - i + 8hi - s
v_lshlrev_b32 v6, 1, v6
s_mul_i32 s30, s28, {KCH}
s_mul_i32 s31, s29, {32*32}
s_sub_u32 s30, s30, s31
s_add_u32 s30, s30, {L_KC+16+32-32*31-2048}
v_add3_u32 v10, v5, v6, s30             ; A base
v_mul_u32_u24 v5, {PL}, v3
v_lshlrev_b32 v6, 4, v2
s_mul_i32 s30, s28, {HCH}
s_lshl_b32 s31, s29, 8                  ; 16 entries * 16B
s_sub_u32 s30, s30, s31
s_add_u32 s30, s30, {L_HP+(32-15)*16}
v_add3_u32 v11, v5, v6, s30             ; B base""")
    a(f"""s_lshl_b32 s34, s{S_P}, 2
v_mov_b32 v137, s34
global_load_dword v136, v137, s[{P_DSK}:{P_DSK+1}]""")
    NB=3; FB=48
    def reads(it):
        b=FB+16*(it%NB)
        oa=32*(31-it)
        ob=(15-it//2)*16+(2*PL if it%2==0 else 0)
        return [f"ds_read_b64 v[{b}:{b+1}], v10 offset:{oa+2048}",
                f"ds_read_b64 v[{b+2}:{b+3}], v10 offset:{oa+2048+8}",
                f"ds_read_b128 v[{b+8}:{b+11}], v11 offset:{ob}",
                f"ds_read_b128 v[{b+12}:{b+15}], v11 offset:{ob+512}",
                f"ds_read_b64 v[{b+4}:{b+5}], v10 offset:{oa}",
                f"ds_read_b64 v[{b+6}:{b+7}], v10 offset:{oa+8}"]
    A0=16; A1=32
    for l in reads(0)+reads(1): a(l)
    for it in range(32):
        b=FB+16*(it%NB)
        nxt=reads(it+2) if it+2<32 else []
        c0="0" if it==0 else f"v[{A0}:{A0+15}]"
        c1="0" if it==0 else f"v[{A1}:{A1+15}]"
        m0=f"v_mfma_f32_32x32x16_bf16 v[{A0}:{A0+15}], v[{b}:{b+3}], v[{b+8}:{b+11}], {c0}"
        m1=f"v_mfma_f32_32x32x16_bf16 v[{A1}:{A1+15}], v[{b}:{b+3}], v[{b+12}:{b+15}], {c1}"
        m2=f"v_mfma_f32_32x32x16_bf16 v[{A1}:{A1+15}], v[{b+4}:{b+7}], v[{b+8}:{b+11}], v[{A1}:{A1+15}]"
        rem = 6 if it+1<32 else 0
        a(f"s_waitcnt lgkmcnt({rem})")
        a(m0)
        for l in nxt[:2]: a(l)
        a(m1)
        for l in nxt[2:4]: a(l)
        a(m2)
        for l in nxt[4:]: a(l)
    a(f"""v_mul_u32_u24 v4, 144, v2
v_lshlrev_b32 v5, 4, v3
s_mul_i32 s30, s{S_WAVE}, {YW}
s_add_u32 s30, s30, {L_Y}
v_add3_u32 v4, v4, v5, s30""")
    for g in range(4): a(f"ds_write_b128 v4, v[{A0+4*g}:{A0+4*g+3}] offset:{32*g}")
    for g in range(4): a(f"ds_write_b128 v4, v[{A1+4*g}:{A1+4*g+3}] offset:{4608+32*g}")
    stamp(a,8)
    ev_add(a,E_Y)
    ev_wait(a,E_Y,4)
    ev_wait(a,E_GA,1)
    stamp(a,9)

def poll16(a, dst, soff_expr_sgpr, lab):
    lr=a.lab(lab+"r"); ok=a.lab(lab+"k")
    a(f"""{lr}:
buffer_load_dwordx4 v[{dst}:{dst+3}], v249, s[{SRD_WS}:{SRD_WS+3}], {soff_expr_sgpr} offen sc1
s_waitcnt vmcnt(0)""")
    tagcheck(a,[dst+1,dst+3],ok,lr)

def w1_loads(a):
    srd(a,SRD_A,P_W1,512*2752)
    a(f"""s_lshr_b32 s29, s28, 1
s_lshl_b32 s30, s{S_P}, 1
s_add_u32 s30, s30, s29                 ; d
s_mul_i32 s31, s30, 2752
s_and_b32 s32, s28, 1
s_mul_i32 s32, s32, {86*16}
s_add_u32 s31, s31, s32
v_lshlrev_b32 v68, 4, v1
buffer_load_dwordx4 v[160:163], v68, s[{SRD_A}:{SRD_A+3}], s31 offen
buffer_load_dwordx4 v[164:167], v68, s[{SRD_A}:{SRD_A+3}], s31 offen offset:1024""")

def w2_loads(a):
    srd(a,SRD_C,P_W2,1376*1024)
    a(f"""s_lshl_b32 s74, s28, 8
s_add_u32 s74, s74, s2                  ; g
s_mul_hi_u32 s75, s74, {(2**32+85)//86} ; dtile
s_mul_i32 s76, s75, 86
s_sub_u32 s76, s74, s76                 ; ks
s_lshl_b32 s76, s76, 14
s_lshl_b32 s75, s75, 6
s_add_u32 s76, s76, s75
v_lshrrev_b32 v69, 2, v1
v_lshlrev_b32 v69, 10, v69
v_and_b32 v70, 3, v1
v_lshlrev_b32 v70, 4, v70
v_add_u32 v69, v69, v70
buffer_load_dwordx4 v[168:171], v69, s[{SRD_C}:{SRD_C+3}], s76 offen
s_add_u32 s74, s74, 1024                ; g2
s_mul_hi_u32 s75, s74, {(2**32+85)//86}
s_mul_i32 s76, s75, 86
s_sub_u32 s76, s74, s76
s_lshl_b32 s76, s76, 14
s_lshl_b32 s75, s75, 6
s_add_u32 s76, s76, s75
buffer_load_dwordx4 v[172:175], v69, s[{SRD_C}:{SRD_C+3}], s76 offen""")

def w2_prep(a):
    a(f"""s_sub_u32 s28, s{S_WAVE}, 4
s_lshl_b32 s33, s28, 8
s_add_u32 s33, s33, s2                  ; g
s_lshl_b32 s34, s28, 10
s_add_u32 s34, s34, {L_W2S}
v_lshlrev_b32 v4, 4, v1
v_add_u32 v4, s34, v4                   ; staging write addr
v_lshrrev_b32 v7, 5, v1                 ; hi
v_lshlrev_b32 v7, 2, v7
v_bfe_u32 v8, v1, 2, 2                  ; r
v_add_u32 v7, v7, v8
v_lshlrev_b32 v7, 6, v7                 ; (4hi+r)*64
v_bfe_u32 v8, v1, 4, 1                  ; nh
v_lshlrev_b32 v8, 5, v8
v_and_b32 v9, 3, v1
v_lshlrev_b32 v9, 3, v9
v_add3_u32 v7, v7, v8, v9
v_add_u32 v7, s34, v7
v_lshlrev_b32 v8, 4, v1
s_lshl_b32 s35, s33, 10
s_add_u32 s35, s35, {OFF_W2F}
ds_write_b128 v4, v[168:171]
s_waitcnt lgkmcnt(0)
ds_read_b64_tr_b16 v[28:29], v7
ds_read_b64_tr_b16 v[30:31], v7 offset:512
s_waitcnt lgkmcnt(0)
buffer_store_dwordx4 v[28:31], v8, s[{SRD_WS}:{SRD_WS+3}], s35 offen sc1""")
    l2=a.lab("L_now2")
    a(f"""s_add_u32 s74, s33, 1024
s_cmp_ge_u32 s74, 1376
s_cbranch_scc1 {l2}
s_add_u32 s35, s35, {1024*1024}
ds_write_b128 v4, v[172:175]
s_waitcnt lgkmcnt(0)
ds_read_b64_tr_b16 v[32:33], v7
ds_read_b64_tr_b16 v[34:35], v7 offset:512
s_waitcnt lgkmcnt(0)
buffer_store_dwordx4 v[32:35], v8, s[{SRD_WS}:{SRD_WS+3}], s35 offen sc1
{l2}:""")

def ev_add(a, off, t=(7,8)):
    a(f"""v_mov_b32 v{t[0]}, 1
v_mov_b32 v{t[1]}, {L_CNT+off}
s_waitcnt lgkmcnt(0)
s_mov_b64 exec, 1
ds_add_u32 v{t[1]}, v{t[0]}
s_mov_b64 exec, -1""")

def ev_wait(a, off, val, t=(8,9)):
    ls=a.lab("L_evs"); lk=a.lab("L_evk")
    a(f"""v_mov_b32 v{t[0]}, {L_CNT+off}
s_mov_b32 s99, {SPIN*8}
{ls}:
ds_read_b32 v{t[1]}, v{t[0]}
s_waitcnt lgkmcnt(0)
v_readfirstlane_b32 s79, v{t[1]}
s_cmp_ge_u32 s79, {val}
s_cbranch_scc1 {lk}
s_sub_u32 s99, s99, 1
s_cmp_eq_u32 s99, 0
s_cbranch_scc1 {lk}
s_sleep 1
s_branch {ls}
{lk}:""")

def last_arriver(a, cnt_off, n, lab_not_last):
    a(f"""v_mov_b32 v7, 1
v_mov_b32 v8, {L_CNT+cnt_off}
s_waitcnt lgkmcnt(0)
s_mov_b64 exec, 1
ds_add_rtn_u32 v9, v8, v7
s_mov_b64 exec, -1
s_waitcnt lgkmcnt(0)
v_readfirstlane_b32 s30, v9
s_cmp_eq_u32 s30, {n-1}
s_cbranch_scc0 {lab_not_last}""")

def store_flag(a, off):
    a(f"""s_lshl_b32 s30, s2, 4
s_add_u32 s30, s30, {off}
v_mov_b32 v2, s{S_TAG}
v_mov_b32 v3, 0
s_mov_b64 exec, 1
buffer_store_dword v2, v3, s[{SRD_WS}:{SRD_WS+3}], s30 offen sc1
s_mov_b64 exec, -1""")

def poll_flags256(a, off, lab):
    lr=a.lab(lab+"r"); ok=a.lab(lab+"k")
    a(f"""v_lshlrev_b32 v2, 4, v1
s_mov_b32 s31, {off}
{lr}:""")
    for i in range(4): a(f"buffer_load_dword v{10+i}, v2, s[{SRD_WS}:{SRD_WS+3}], s31 offen offset:{1024*i} sc1")
    a("s_waitcnt vmcnt(0)")
    tagcheck(a,[10,11,12,13],ok,lr)

def side_compute(a):
    for l in dpp_reduce_rows([128,130]): a(l)
    a(f"""v_cvt_pk_bf16_f32 v206, v128, v130
s_nop 0
v_readlane_b32 s74, v206, 15
v_readlane_b32 s75, v206, 31
v_readlane_b32 s76, v206, 47
v_readlane_b32 s77, v206, 63
s_lshl_b32 s32, s76, 16
s_and_b32 s33, s76, 0xffff0000
v_add_f32 v180, s32, 1.0
v_add_f32 v181, s33, 1.0
v_cvt_pk_bf16_f32 v182, v180, v181
v_lshlrev_b32 v180, 16, v182
v_and_b32 v181, 0xffff0000, v182          ; c1 pair
v_mov_b32 v183, 0x21800000               ; 2^-60 stands in for an exact zero scale
v_cmp_eq_f32 vcc, 0, v180
v_cndmask_b32 v180, v180, v183, vcc
v_cmp_eq_f32 vcc, 0, v181
v_cndmask_b32 v181, v181, v183, vcc
s_lshr_b32 s29, s28, 1
s_cmp_eq_u32 s29, 0
s_cselect_b64 s[32:33], -1, 0
v_cndmask_b32 v186, v181, v180, s[32:33]""")
    for h in range(2):
        for k in range(4):
            r=160+4*h+k
            a(f"""v_lshlrev_b32 v190, 16, v{r}
v_and_b32 v191, 0xffff0000, v{r}
v_mul_f32 v190, v190, v186
v_mul_f32 v191, v191, v186
v_cvt_pk_bf16_f32 v{r}, v190, v191""")
    a(f"""s_lshl_b32 s30, s{S_P}, 1
s_add_u32 s30, s30, s29
s_mul_i32 s31, s30, 192
s_add_u32 s31, s31, {OFF_W1P}
s_and_b32 s32, s28, 1
s_mul_i32 s32, s32, 86
v_add_u32 v210, s32, v1
v_add_u32 v215, 64, v210""")
    for r in (210,215):
        a(f"""v_mul_u32_u24 v216, 5462, v{r}
v_lshrrev_b32 v216, 16, v216            ; c/12
v_mul_u32_u24 v217, 12, v216
v_sub_u32 v217, v{r}, v217
v_mul_u32_u24 v216, 98304, v216
v_lshlrev_b32 v217, 4, v217
v_add_u32 v{r}, v216, v217""")
    a(f"""buffer_store_dwordx4 v[160:163], v210, s[{SRD_WS}:{SRD_WS+3}], s31 offen sc1
s_mov_b64 exec, 0x3fffff
buffer_store_dwordx4 v[164:167], v215, s[{SRD_WS}:{SRD_WS+3}], s31 offen sc1
s_mov_b64 exec, -1""")
    lw=a.lab("L_notw4")
    a(f"""s_cmp_lg_u32 s28, 0
s_cbranch_scc1 {lw}
s_lshl_b32 s32, s75, 16
s_and_b32 s33, s75, 0xffff0000
v_rcp_f32 v184, v180
v_rcp_f32 v185, v181
v_mov_b32 v187, s32
v_mov_b32 v188, s33
v_mul_f32 v189, v187, v184
v_mul_f32 v190, v188, v185
v_fma_f32 v191, -v189, v180, v187
v_fma_f32 v192, -v190, v181, v188
v_fmac_f32 v189, v191, v184
v_fmac_f32 v190, v192, v185
v_cvt_pk_bf16_f32 v193, v189, v190
v_lshlrev_b32 v191, 16, v193
v_and_b32 v192, 0xffff0000, v193
v_sub_f32 v189, v189, v191
v_sub_f32 v190, v190, v192
v_cvt_pk_bf16_f32 v194, v189, v190
s_mov_b32 s32, 0x05040100
s_mov_b32 s33, 0x07060302
v_perm_b32 v196, v194, v193, s32
v_perm_b32 v197, v194, v193, s33           ; ch1
s_lshl_b32 s32, s77, 16
s_and_b32 s33, s77, 0xffff0000
v_mov_b32 v198, s32
v_mov_b32 v199, s33
s_lshl_b32 s32, s74, 16
s_and_b32 s33, s74, 0xffff0000
v_mov_b32 v200, s32
v_mov_b32 v201, s33
v_mov_b32 v211, 0
v_mov_b32 v212, {L_GA}
s_lshl_b32 s30, s{S_P}, 3
s_add_u32 s31, s30, {OFF_FING}
s_add_u32 s30, s30, {OFF_FINS}
s_mov_b64 exec, 1
buffer_store_dwordx2 v[196:197], v211, s[{SRD_WS}:{SRD_WS+3}], s30 offen sc1
buffer_store_dwordx2 v[198:199], v211, s[{SRD_WS}:{SRD_WS+3}], s31 offen sc1
ds_write_b64 v212, v[200:201]
s_mov_b64 exec, -1""")
    ev_add(a,E_GA,t=(213,214))
    a(f"{lw}:")

def h_side(a):
    lnf=a.lab("L_nof2w")
    a("s_waitcnt vmcnt(0)")
    last_arriver(a,E_SIDE,4,lnf)
    store_flag(a,OFF_F2W)
    a(f"{lnf}:")
    stamp(a,8)

def w1_stream(a,g0,g1):
    a(f"""v_lshlrev_b32 v10, 4, v1
s_sub_u32 s74, s30, 1
s_lshl_b32 s74, s74, 10
s_add_u32 s33, s74, {g0*3072}
s_mul_i32 s31, s29, 98304
s_add_u32 s31, s31, {OFF_W1P}
s_add_u32 s31, s31, s33""")
    for g in range(g0,g1):
        a(f"""s_mov_b32 m0, s33
buffer_load_dwordx4 v10, s[{SRD_WS}:{SRD_WS+3}], s31 offen{BS} lds""")
        if g<g1-1: a(f"s_add_u32 s31, s31, 3072\ns_add_u32 s33, s33, 3072")

def m_epilogue(a):
    a(f"""v_and_b32 v2, 255, v0                   ; tb
v_lshrrev_b32 v3, 2, v2                 ; a
v_and_b32 v4, 3, v2
v_mul_u32_u24 v5, 144, v3
v_lshlrev_b32 v6, 5, v4
v_add3_u32 v5, v5, v6, s78              ; placeholder""".replace("v_add3_u32 v5, v5, v6, s78              ; placeholder",f"v_add_u32 v5, v5, v6\nv_add_u32 v5, {L_Y}, v5"))
    a(f"""v_mul_u32_u24 v6, {PL}, v4
v_lshlrev_b32 v7, 4, v3
v_add_u32 v6, v6, v7
v_add_u32 v6, {L_HP+512}, v6            ; h addr
v_lshlrev_b32 v7, 4, v2
v_add_u32 v8, {L_XP}, v7                ; x addr""")
    for ch in range(2):
        b=80+24*ch
        a(f"""ds_read_b128 v[{b}:{b+3}], v5 offset:{2*ch*YW}
ds_read_b128 v[{b+4}:{b+7}], v5 offset:{2*ch*YW+16}
ds_read_b128 v[{b+8}:{b+11}], v5 offset:{(2*ch+1)*YW}
ds_read_b128 v[{b+12}:{b+15}], v5 offset:{(2*ch+1)*YW+16}
ds_read_b128 v[{b+16}:{b+19}], v6 offset:{ch*HCH}
ds_read_b128 v[{b+20}:{b+23}], v8 offset:{ch*4096}""")
    a(f"""v_mov_b32 v9, {L_GA}
ds_read_b64 v[132:133], v9
s_waitcnt vmcnt(0)""")
    a(f"""v_lshlrev_b32 v138, 16, v136
v_and_b32 v139, 0xffff0000, v136""")
    for ch in range(2):
        b=80+24*ch; ga=132+ch; dk=138+ch
        a(f"s_waitcnt lgkmcnt({7 if ch==0 else 0})" if False else ("s_waitcnt lgkmcnt(0)" if ch==0 else "s_nop 0"))
        for k in range(4):
            y=b+2*k
            a(f"""v_add_f32 v{y}, v{y}, v{y+8}
v_add_f32 v{y+1}, v{y+1}, v{y+9}
v_lshlrev_b32 v140, 16, v{b+16+k}
v_and_b32 v141, 0xffff0000, v{b+16+k}
v_lshlrev_b32 v142, 16, v{b+20+k}
v_and_b32 v143, 0xffff0000, v{b+20+k}
v_fmac_f32 v{y}, v140, v{dk}
v_fmac_f32 v{y+1}, v141, v{dk}
v_fma_f32 v{y}, v{y}, v{ga}, v142
v_fma_f32 v{y+1}, v{y+1}, v{ga}, v143
v_cvt_pk_bf16_f32 v{144+4*ch+k}, v{y}, v{y+1}""")
        a(f"""s_lshl_b32 s30, s{S_P}, 13
s_add_u32 s30, s30, {OFF_X2T+4096*ch}
buffer_store_dwordx4 v[{144+4*ch}:{147+4*ch}], v7, s[{SRD_WS}:{SRD_WS+3}], s30 offen sc1""")
    ev_add(a,E_STI)
    stamp(a,10)
    a("s_waitcnt vmcnt(0)")
    stamp(a,11)
    lnf=a.lab("L_nof2")
    last_arriver(a,E_EPI,4,lnf)
    store_flag(a,OFF_F2)
    a(f"{lnf}:")
    stamp(a,12)

L_W1=0
L_RING=98304
NSLOT=6
L_ST=L_STV
def poll_flags(a, off, nflag_regs, lab):
    pass

def p3_common(a):
    a(f"""s_and_b32 s28, s{S_IDX}, 3
s_and_b32 s29, s{S_XCD}, 3
s_lshl_b32 s29, s29, 2
s_add_u32 s28, s28, s29
s_lshr_b32 s29, s{S_IDX}, 2
s_lshr_b32 s79, s{S_XCD}, 2
s_lshl_b32 s79, s79, 3
s_add_u32 s29, s29, s79""")

def h_p3(a):
    p3_common(a)
    a(f"""s_mov_b32 s99, {SPIN}
s_sub_u32 s30, s{S_WAVE}, 4             ; hw""")
    lw=a.lab("L_h3w567"); lj=a.lab("L_h3join"); lidle=a.lab("L_h3idle"); lidle2=a.lab("L_h3idle2")
    a(f"""s_cmp_lg_u32 s30, 0
s_cbranch_scc1 {lw}""")
    poll_flags256(a,OFF_F1W,"L_f1w")
    NPF0=int(os.environ.get('NPF0','6'))
    a(f"""s_mul_i32 s74, s{S_IDX}, {352*128}
s_add_u32 s74, s74, {OFF_W2F}
v_lshlrev_b32 v15, 7, v1
s_mov_b32 s75, {NPF0}""")
    for i in range(NPF0):
        a(f"buffer_load_dword v14, v15, s[{SRD_WS}:{SRD_WS+3}], s74 offen{BS}\ns_add_u32 s74, s74, 8192")
    a(f"s_mov_b32 s99, {SPIN}")
    poll_flags256(a,OFF_F2W,"L_f2w")
    stamp(a,18)
    a(f"""v_lshlrev_b32 v5, 5, v1
s_mov_b32 s34, {OFF_FINS}
buffer_load_dwordx4 v[20:23], v5, s[{SRD_WS}:{SRD_WS+3}], s34 offen{BS}
buffer_load_dwordx4 v[24:27], v5, s[{SRD_WS}:{SRD_WS+3}], s34 offen offset:16{BS}""")
    ev_add(a,E_F2W)
    stamp(a,19)
    a(f"""s_mov_b32 s32, 0x05040100
s_mov_b32 s33, 0x07060302
v_mov_b32 v36, 0x3f803f80
v_mov_b32 v37, 0x3f803f80
v_mov_b32 v38, 0x3f803f80
v_mov_b32 v39, 0x3f803f80
v_mov_b32 v40, 0
v_mov_b32 v41, 0
v_mov_b32 v42, 0
v_mov_b32 v43, 0
v_lshlrev_b32 v5, 4, v1
v_add_u32 v5, {L_PB}, v5
s_waitcnt vmcnt(0)""")
    for k in range(4):
        a(f"v_perm_b32 v{28+k}, v{21+2*k}, v{20+2*k}, s32")
        a(f"v_perm_b32 v{32+k}, v{21+2*k}, v{20+2*k}, s33")
    a(f"""ds_write_b128 v5, v[36:39]
ds_write_b128 v5, v[28:31] offset:1024
ds_write_b128 v5, v[32:35] offset:2048
ds_write_b128 v5, v[40:43] offset:3072""")
    ev_add(a,E_PB)
    ev_wait(a,E_W1,3)
    ev_wait(a,E_WE,4)
    stamp(a,33)
    lq=a.lab("L_pfrest"); lqe=a.lab("L_pfdone")
    a(f"""{lq}:
s_cmp_ge_u32 s75, {int(os.environ.get('NPF1','5'))}
s_cbranch_scc1 {lqe}
buffer_load_dword v14, v15, s[{SRD_WS}:{SRD_WS+3}], s74 offen{BS}
s_add_u32 s74, s74, 8192
s_add_u32 s75, s75, 1
s_branch {lq}
{lqe}:
s_mov_b32 s99, {SPIN}""")
    stamp(a,34)
    poll_flags256(a,OFF_F2,"L_f2")
    stamp(a,35)
    if STAMPS: a("v_writelane_b32 v254, s99, 36")
    a(f"""v_lshrrev_b32 v2, 1, v1
s_lshr_b32 s31, s{S_IDX}, 2
s_lshl_b32 s31, s31, 6
v_add_u32 v2, s31, v2
v_lshlrev_b32 v2, 12, v2
v_and_b32 v3, 1, v1
v_lshlrev_b32 v3, 7, v3
v_add_u32 v2, v2, v3
s_lshl_b32 s31, s28, 8
s_add_u32 s31, s31, {OFF_X2T}
buffer_load_dword v14, v2, s[{SRD_WS}:{SRD_WS+3}], s31 offen{BS}
s_add_u32 s31, s31, {32*4096}
buffer_load_dword v14, v2, s[{SRD_WS}:{SRD_WS+3}], s31 offen{BS}""")
    le=a.lab("L_noep")
    a(f"""s_cmp_lg_u32 s2, 0
s_cbranch_scc1 {le}
v_mov_b32 v3, s{S_TAG}
v_mov_b32 v4, 0
s_mov_b64 exec, 1
buffer_store_dword v3, v4, s[{SRD_WS}:{SRD_WS+3}], 0 offen sc1
s_mov_b64 exec, -1
{le}:""")
    ev_add(a,E_F2)
    a(f"s_branch {lj}")
    a(f"{lw}:")
    a(f"s_cmp_eq_u32 s29, 15\ns_cbranch_scc1 {lidle2}")
    ev_wait(a,E_F2W,1)
    stamp(a,30)
    w1_stream(a,12,32)
    ev_wait(a,E_STI,4)
    stamp(a,31)
    w1_stream(a,0,12)
    a(f"{lidle2}:")
    stamp(a,16)
    a("s_waitcnt vmcnt(0)")
    stamp(a,32)
    ev_add(a,E_W1)
    a(f"{lj}:")
    a(f"s_cmp_eq_u32 s29, 15\ns_cbranch_scc1 {lidle}")
    ev_wait(a,E_F2,1)
    ev_wait(a,E_EPI,4)
    stamp(a,13)
    a(f"""v_lshrrev_b32 v2, 4, v1                 ; rho
v_and_b32 v3, 15, v1                    ; kappa
v_lshlrev_b32 v4, 2, v2
v_xor_b32 v3, v3, v4                    ; kappa'
v_lshlrev_b32 v3, 4, v3
v_lshlrev_b32 v2, 12, v2                ; rho*4096
v_add_u32 v20, v2, v3
v_add_u32 v21, {4*4096}, v20
s_lshl_b32 s31, s28, 8
s_add_u32 s31, s31, {OFF_X2T}
s_lshl_b32 s32, s30, 15                 ; 8 rows * 4096
s_add_u32 s31, s31, s32
s_lshl_b32 s33, s30, 11                 ; 8 rows * 256B
s_add_u32 s33, s33, {L_RING}""")
    def issue(s):
        if 'nodma3' in EXP: return
        a(f"""s_add_u32 m0, s33, {(s%NSLOT)*8192}
s_add_u32 s34, s29, {s}
s_and_b32 s34, s34, 15
s_lshl_b32 s34, s34, 17
s_add_u32 s34, s34, s31
buffer_load_dwordx4 v20, s[{SRD_WS}:{SRD_WS+3}], s34 offen{BS} lds
s_add_u32 m0, s33, {(s%NSLOT)*8192+1024}
buffer_load_dwordx4 v21, s[{SRD_WS}:{SRD_WS+3}], s34 offen{BS} lds""")
    AHEAD=NSLOT-2
    for s in range(AHEAD): issue(s)
    for s in range(16):
        issued=min(16,s+AHEAD)
        a(f"s_waitcnt vmcnt({2*(issued-s-1)})\ns_barrier")
        if s+AHEAD<16: issue(s+AHEAD)
    a(f"s_branch L_H_P3_done\n{lidle}:")
    for s in range(16): a("s_barrier")
    a("L_H_P3_done:")

def m_p3(a):
    p3_common(a)
    lidle=a.lab("L_m3idle"); lst=a.lab("L_m3nost")
    a(f"""v_lshrrev_b32 v2, 5, v1                 ; hi
v_bfe_u32 v3, v1, 2, 2                  ; r
v_bfe_u32 v4, v1, 4, 1                  ; nh
v_and_b32 v5, 3, v1                     ; c
v_lshlrev_b32 v6, 3, v2
v_add_u32 v6, v6, v3                    ; 8hi + r
v_lshlrev_b32 v7, 5, v4
v_lshlrev_b32 v8, 3, v5
v_add_u32 v7, v7, v8                    ; nh*32 + c*8
v_mul_u32_u24 v10, 192, v6
v_add_u32 v10, v10, v7                  ; A base (W1')
v_add_u32 v11, {16*3072}, v10
v_lshlrev_b32 v12, 8, v6
v_xor_b32 v8, s{S_WAVE}, v3
v_lshlrev_b32 v8, 6, v8
v_add3_u32 v12, v12, v8, v7
v_add_u32 v12, {L_RING}, v12""")
    srd(a,SRD_A,P_B1,2752)
    a(f"""s_mul_i32 s30, s29, 192
s_lshl_b32 s31, s{S_WAVE}, 6
s_add_u32 s30, s30, s31
v_lshlrev_b32 v13, 3, v2""")
    for g in range(4): a(f"buffer_load_dwordx2 v[{64+2*g}:{65+2*g}], v13, s[{SRD_A}:{SRD_A+3}], s30 offen offset:{16*g}")
    ev_wait(a,E_F2W,1,t=(76,77))
    stamp(a,28)
    w2f_loads(a,16,43)
    a("s_waitcnt vmcnt(0)")
    ev_add(a,E_WE,t=(76,77))
    stamp(a,29)
    ev_wait(a,E_W1,3,t=(76,77))
    ev_wait(a,E_PB,1,t=(76,77))
    stamp(a,14)
    a(f"""s_cmp_eq_u32 s29, 15
s_cbranch_scc1 {lst}
s_cmp_eq_u32 s{S_WAVE}, 3
s_cbranch_scc1 {lst}
v_and_b32 v13, 31, v1                   ; n
v_min_u32 v14, 3, v13
v_lshlrev_b32 v14, 10, v14
v_lshlrev_b32 v15, 4, v2
v_add3_u32 v14, v14, v15, s78""".replace(", s78",", v249").replace("v_add3_u32 v14, v14, v15, v249",f"v_add_u32 v14, v14, v15\nv_add_u32 v14, {L_PB}, v14"))
    a(f"""s_lshl_b32 s31, s{S_WAVE}, 6
v_add_u32 v72, s31, v10
v_add_u32 v73, s31, v11
v_cmp_eq_u32 vcc, 1, v13
s_waitcnt vmcnt(0)""")
    for r in range(16):
        g=r>>2;k=r&3; src=64+2*g+(k>>1)
        a(f"v_lshlrev_b32 v74, 16, v{src}" if k%2==0 else f"v_and_b32 v74, 0xffff0000, v{src}")
        a(f"v_cndmask_b32 v{16+r}, 0, v74, vcc")
    def rd(ks):
        b=80+8*(ks%4); av=72 if ks<16 else 73; ko=(ks%16)*3072
        return [f"ds_read_b64_tr_b16 v[{b}:{b+1}], v{av} offset:{ko}", f"ds_read_b64_tr_b16 v[{b+2}:{b+3}], v{av} offset:{ko+768}",
                f"ds_read_b128 v[{b+4}:{b+7}], v14 offset:{32*ks}"]
    for k in range(3):
        for l in rd(k): a(l)
    for ks in range(32):
        b=80+8*(ks%4)
        n=0
        if ks+3<32:
            for l in rd(ks+3): a(l)
        a(f"s_waitcnt lgkmcnt({3*min(3,31-ks)})")
        a(f"v_mfma_f32_32x32x16_bf16 v[16:31], v[{b}:{b+3}], v[{b+4}:{b+7}], v[16:31]")
    a("s_nop 7\ns_nop 3")
    for r in range(16): a(f"v_mov_b32_dpp v{32+r}, v{16+r} row_shl:1 row_mask:0xf bank_mask:0xf bound_ctrl:1")
    for r in range(16): a(f"v_add_f32 v{32+r}, v{32+r}, v{16+r}")
    a(f"""v_lshlrev_b32 v75, 4, v2
s_lshl_b32 s31, s{S_WAVE}, 7
v_add_u32 v75, s31, v75
v_add_u32 v75, {L_ST}, v75
s_mov_b32 exec_lo, 1
s_mov_b32 exec_hi, 1""")
    for g in range(4): a(f"ds_write_b128 v75, v[{16+4*g}:{19+4*g}] offset:{32*g}")
    a("s_mov_b32 exec_lo, 2\ns_mov_b32 exec_hi, 2")
    for g in range(4): a(f"ds_write_b128 v75, v[{32+4*g}:{35+4*g}] offset:{384+32*g}")
    a(f"s_mov_b64 exec, -1\ns_waitcnt lgkmcnt(0)\n{lst}:")
    stamp(a,13)
    a(f"s_cmp_eq_u32 s29, 15\ns_cbranch_scc1 {lidle}")
    a(f"""v_mov_b32 v13, 0
v_mov_b32 v14, 0
s_mov_b32 s31, 0x3f803f80
s_lshl_b32 s32, s28, 4                  ; tt*16
s_lshl_b32 s33, s{S_WAVE}, 9            ; 32w*16B
s_lshl_b32 s34, s32, 11                 ; tt*16*128*16B
s_add_u32 s33, s33, s34
s_add_u32 s33, s33, {OFF_LNP}
v_and_b32 v11, 31, v1
v_lshlrev_b32 v11, 4, v11               ; n*16""")
    ACC=16; FB=64; NBUF=3
    def setA(S):
        a(f"""s_add_u32 s34, s29, {S}
s_and_b32 s34, s34, 15
s_mul_i32 s34, s34, 6144
v_add_u32 v{8+(S&1)}, s34, v10""")
    def reads(ks):
        b=FB+16*(ks%NBUF)
        av=8+((ks//2)&1)
        ko=(ks%2)*3072
        slot=(ks//2)%NSLOT
        bo=slot*8192+(ks%2)*4096
        o=[f"ds_read_b64_tr_b16 v[{b+12}:{b+13}], v12 offset:{bo}",
           f"ds_read_b64_tr_b16 v[{b+14}:{b+15}], v12 offset:{bo+1024}"]
        for ft in range(3):
            o+=[f"ds_read_b64_tr_b16 v[{b+4*ft}:{b+4*ft+1}], v{av} offset:{ko+64*ft}",
                f"ds_read_b64_tr_b16 v[{b+4*ft+2}:{b+4*ft+3}], v{av} offset:{ko+768+64*ft}"]
        return o
    def dots(b):
        for k in range(4):
            a(f"v_dot2c_f32_bf16 v13, s31, v{b+12+k}")
            a(f"v_dot2c_f32_bf16 v14, v{b+12+k}, v{b+12+k}")
    def publish(sig):
        a(f"""v_mov_b32 v2, v13
v_mov_b32 v3, v14
s_nop 1
v_permlane32_swap_b32 v2, v13
v_permlane32_swap_b32 v3, v14
s_lshl_b32 s35, s35, 11
s_add_u32 s35, s35, s33
v_add_f32 v4, v13, v2
v_add_f32 v6, v14, v3
v_mov_b32 v5, s{S_TAG}
v_mov_b32 v7, s{S_TAG}
s_mov_b32 exec_hi, 0
buffer_store_dwordx4 v[4:7], v11, s[{SRD_WS}:{SRD_WS+3}], s35 offen sc1
s_mov_b32 exec_hi, -1
v_mov_b32 v13, 0
v_mov_b32 v14, 0""")
    setA(0); setA(1)
    a("s_barrier")
    stamp(a,16)
    for l in reads(0)+reads(1)[:6]: a(l)
    a("s_waitcnt lgkmcnt(12)")
    for l in reads(1)[6:]: a(l)
    lg=None
    for ks in range(32):
        b=FB+16*(ks%NBUF)
        if ks%2==0 and ks+2<32:
            a("s_barrier")
        a(f"s_waitcnt lgkmcnt({8 if ks<31 else 0})")
        nxt=reads(ks+2) if ks+2<32 else []
        for ft in range(3):
            c="0" if ks==0 else f"v[{ACC+16*ft}:{ACC+16*ft+15}]"
            a(f"v_mfma_f32_32x32x16_bf16 v[{ACC+16*ft}:{ACC+16*ft+15}], v[{b+4*ft}:{b+4*ft+3}], v[{b+12}:{b+15}], {c}")
            if ft==2 and nxt: a("s_waitcnt lgkmcnt(13)")
            for l in (nxt[3*ft:3*ft+3] if ft<2 else nxt[6:]): a(l)
        if ks%2==1 and ks//2+2<16: setA(ks//2+2)
        if ks in (0,1): dots(b)
        if ks==1:
            a("s_mov_b32 s35, s29"); publish(0)
        if ks in (2,3):
            l=a.lab("L_nost14"); a(f"s_cmp_eq_u32 s29, 14\ns_cbranch_scc0 {l}")
            dots(b)
            if ks==3:
                a("s_mov_b32 s35, 15"); publish(0)
            a(f"{l}:")
        if ks==24:
            a(f"""v_lshrrev_b32 v2, 5, v1
v_lshlrev_b32 v2, 14, v2                ; hi*8*2048
v_add_u32 v15, v2, v11
s_mov_b32 s35, s33""")
            for i in range(8):
                a(f"buffer_load_dwordx4 v[{112+4*i}:{115+4*i}], v15, s[{SRD_WS}:{SRD_WS+3}], s35 offen offset:{2048*(i&1)} sc1")
                if i&1 and i<7: a("s_add_u32 s35, s35, 4096")
    stamp(a,27)
    lr=a.lab("L_lnr"); ok=a.lab("L_lnk"); lf=a.lab("L_lnf")
    a(f"""s_mov_b32 s99, {SPIN}
s_waitcnt vmcnt(0)
s_branch {lf}
{lr}:
s_mov_b32 s35, s33""")
    for i in range(8):
        a(f"buffer_load_dwordx4 v[{112+4*i}:{115+4*i}], v15, s[{SRD_WS}:{SRD_WS+3}], s35 offen offset:{2048*(i&1)} sc1")
        if i&1 and i<7: a("s_add_u32 s35, s35, 4096")
    a(f"s_waitcnt vmcnt(0)\n{lf}:")
    tagcheck(a,[113+2*k for k in range(16)],ok,lr,T=(2,3,4))
    a("v_add_f32 v13, v112, v116\nv_add_f32 v14, v114, v118")
    for i in range(2,8): a(f"v_add_f32 v13, v13, v{112+4*i}\nv_add_f32 v14, v14, v{114+4*i}")
    a(f"""v_mov_b32 v2, v13
v_mov_b32 v3, v14
s_nop 1
v_permlane32_swap_b32 v2, v13
v_permlane32_swap_b32 v3, v14
s_nop 1
v_add_f32 v13, v13, v2
v_add_f32 v14, v14, v3
v_mul_f32 v13, {f32(1/512)}, v13        ; mean
v_mul_f32 v14, {f32(1/512)}, v14
v_fma_f32 v14, -v13, v13, v14           ; var
v_max_f32 v14, 0, v14
v_cvt_pk_bf16_f32 v2, v13, v14
v_lshlrev_b32 v6, 16, v2                ; m (bf16)
v_and_b32 v14, 0xffff0000, v2
v_add_f32 v14, {f32(1e-5)}, v14
v_cvt_pk_bf16_f32 v14, v14, v14
v_lshlrev_b32 v14, 16, v14
v_sqrt_f32 v14, v14
s_nop 0
v_cvt_pk_bf16_f32 v14, v14, v14
v_lshlrev_b32 v14, 16, v14
v_rcp_f32 v7, v14                       ; r
v_lshrrev_b32 v2, 5, v1
v_lshlrev_b32 v2, 4, v2
v_add_u32 v2, {L_ST}, v2
v_lshlrev_b32 v3, 4, v1                 ; store lane offset
s_lshl_b32 s30, s28, 2
s_add_u32 s30, s30, s{S_WAVE}           ; T32
s_mul_i32 s30, s30, {86*1024}
s_mul_i32 s31, s29, {6*1024}
s_add_u32 s30, s30, s31
s_add_u32 s30, s30, {OFF_H}""")
    residual_loads(a)
    grp=[(ft,g) for ft in range(3) for g in range(4)]
    def rdst(i):
        ft,g=grp[i]; b=64+8*(i%2)
        return [f"ds_read_b128 v[{b}:{b+3}], v2 offset:{128*ft+32*g}", f"ds_read_b128 v[{b+4}:{b+7}], v2 offset:{384+128*ft+32*g}"]
    for l in rdst(0): a(l)
    skip_lab=None
    for i,(ft,g) in enumerate(grp):
        if g==0 and ft==1:
            skip_lab=a.lab("L_skipft"); a(f"s_cmp_eq_u32 s29, 14\ns_cbranch_scc1 {skip_lab}")
        b=64+8*(i%2)
        if i+1<len(grp):
            for l in rdst(i+1): a(l)
            a("s_waitcnt lgkmcnt(2)")
        else: a("s_waitcnt lgkmcnt(0)")
        A=ACC+16*ft+4*g
        for k in range(4): a(f"v_fma_f32 v{A+k}, -v6, v{b+k}, v{A+k}")
        for k in range(4): a(f"v_fma_f32 v{A+k}, v7, v{A+k}, v{b+4+k}")
        for k in range(4): a(f"v_max_f32 v{A+k}, 0, v{A+k}")
        for k in range(4): a(f"v_mul_f32 v{A+k}, v{A+k}, v{A+k}")
        o=8+2*g
        a(f"v_cvt_pk_bf16_f32 v{o}, v{A}, v{A+1}\nv_cvt_pk_bf16_f32 v{o+1}, v{A+2}, v{A+3}")
        if g==1 or g==3:
            half=g>>1
            off=2048*ft+1024*half
            if off<4096: a(f"buffer_store_dwordx4 v[{8+4*half}:{11+4*half}], v3, s[{SRD_WS}:{SRD_WS+3}], s30 offen offset:{off} sc1")
            else: a(f"s_add_u32 s31, s30, 4096\nbuffer_store_dwordx4 v[{8+4*half}:{11+4*half}], v3, s[{SRD_WS}:{SRD_WS+3}], s31 offen offset:{off-4096} sc1")
    a(f"{skip_lab}:\ns_waitcnt lgkmcnt(0)")
    stamp(a,17)
    a(f"s_branch L_M_P3_done\n{lidle}:")
    for s in range(16): a("s_barrier")
    residual_loads(a)
    a("L_M_P3_done:")

def residual_loads(a):
    a(f"""s_and_b32 s74, s{S_IDX}, 3
s_lshl_b32 s75, s{S_XCD}, 2
s_add_u32 s74, s74, s75                 ; t64
s_lshr_b32 s75, s{S_IDX}, 2             ; dc
s_lshl_b32 s75, s75, 1
s_and_b32 s76, s{S_WAVE}, 1
s_add_u32 s75, s75, s76                 ; dtile
s_lshl_b32 s75, s75, 5                  ; d0
s_lshl_b32 s74, s74, 6
s_lshr_b32 s76, s{S_WAVE}, 1
s_lshl_b32 s76, s76, 5
s_add_u32 s74, s74, s76                 ; t0
v_lshrrev_b32 v112, 5, v1
v_lshlrev_b32 v112, 2, v112
v_add_u32 v112, s75, v112               ; d0 + 4hi
v_lshlrev_b32 v112, 12, v112
v_and_b32 v113, 31, v1
v_add_u32 v113, s74, v113
v_lshlrev_b32 v113, 1, v113
v_add_u32 v112, v112, v113
s_mov_b32 s75, {OFF_X2T}""")
    for r in range(16):
        dd=(r&3)+8*(r>>2)
        if dd==0: so="s75"
        else:
            a(f"s_add_u32 s74, s75, {dd*4096}"); so="s74"
        a(f"buffer_load_ushort v{96+r}, v112, s[{SRD_WS}:{SRD_WS+3}], {so} offen{BS}")

def wf_reg(j):
    return 144+4*(j-16) if j>=16 else 80+4*j
def w2f_loads(a,j0,j1):
    a(f"""s_lshr_b32 s74, s{S_IDX}, 2             ; dc
s_and_b32 s75, s{S_WAVE}, 1             ; dt
s_lshr_b32 s76, s{S_WAVE}, 1            ; kh
s_lshl_b32 s74, s74, 1
s_add_u32 s74, s74, s75                 ; dtile
s_mul_i32 s74, s74, 86
s_mul_i32 s76, s76, 43
s_add_u32 s74, s74, s76
s_add_u32 s74, s74, {j0}
s_lshl_b32 s74, s74, 10
s_add_u32 s74, s74, {OFF_W2F}
v_lshlrev_b32 v252, 4, v1""")
    for n,j in enumerate(range(j0,j1)):
        if n%4==0 and n>0: a(f"s_add_u32 s74, s74, 4096")
        a(f"buffer_load_dwordx4 v[{wf_reg(j)}:{wf_reg(j)+3}], v252, s[{SRD_WS}:{SRD_WS+3}], s74 offen offset:{1024*(n%4)}{BS}")

WF=80
def p3_publish(a,role):
    if role=='H': return
    a("s_waitcnt vmcnt(0)")
    stamp(a,15)
    lf=a.lab("L_nof3")
    last_arriver(a,E_F3,4,lf)
    store_flag(a,OFF_F3)
    a(f"{lf}:")
    for i in range(8): a(f"v_lshl_or_b32 v{64+i}, v{97+2*i}, 16, v{96+2*i}")
    stamp(a,37)
    w2f_loads(a,0,16)
    stamp(a,39)

L_HR=0 ; HSLOTS=36
L_EX2=HSLOTS*4096
GRP=4
PERM=list(range(16,43))+list(range(16))
def h_p4(a):
    a(f"""s_mov_b32 s99, {SPIN}
s_and_b32 s28, s{S_IDX}, 3
s_lshl_b32 s29, s{S_XCD}, 2
s_add_u32 s28, s28, s29                 ; t64
s_sub_u32 s30, s{S_WAVE}, 4             ; hw""")
    lw=a.lab("L_f3w"); lr=a.lab("L_f3r"); ok=a.lab("L_f3k")
    a(f"""s_cmp_lg_u32 s30, 0
s_cbranch_scc1 {lw}
s_lshr_b32 s31, s28, 1                  ; tt
s_and_b32 s32, s31, 3
s_lshl_b32 s32, s32, 3                  ; 8*(tt&3)
s_lshr_b32 s31, s31, 2
s_add_u32 s32, s32, s31                 ; + (tt>>2)
s_lshl_b32 s32, s32, 4
s_add_u32 s32, s32, {OFF_F3}
v_min_u32 v3, 14, v1                    ; fc
v_and_b32 v2, 7, v3
v_lshlrev_b32 v2, 5, v2                 ; 32*(fc&7)
v_lshrrev_b32 v3, 3, v3
v_lshlrev_b32 v3, 2, v3                 ; 4*(fc>>3)
v_add_u32 v2, v2, v3
v_lshlrev_b32 v2, 4, v2                 ; wg*16B
s_waitcnt vmcnt(0)""")
    ev_wait(a,E_WF,4)
    a(f"""s_mov_b32 s99, {SPIN}
{lr}:
buffer_load_dword v10, v2, s[{SRD_WS}:{SRD_WS+3}], s32 offen sc1
s_waitcnt vmcnt(0)""")
    tagcheck(a,[10],ok,lr)
    stamp(a,20)
    a(f"{lw}:\ns_barrier")
    stamp(a,21)
    a(f"""s_lshl_b32 s31, s28, 1
s_and_b32 s32, s30, 1
s_add_u32 s31, s31, s32                 ; T32
s_mul_i32 s31, s31, {86*1024}
s_lshr_b32 s32, s30, 1
s_mul_i32 s32, s32, {43*1024}
s_add_u32 s31, s31, s32
s_add_u32 s31, s31, {OFF_H}
s_lshl_b32 s33, s30, 10                 ; LDS offset inside a step
v_lshlrev_b32 v20, 4, v1""")
    def issue(j):
        a(f"""s_add_u32 m0, s33, {(j%HSLOTS)*4096+L_HR}
s_add_u32 s34, s31, {PERM[j]*1024}
buffer_load_dwordx4 v20, s[{SRD_WS}:{SRD_WS+3}], s34 offen{BS} lds""")
    FIRST=8
    for j in range(FIRST): issue(j)
    stamp(a,22)
    ngrp=(43+GRP-1)//GRP
    issued=FIRST
    for g in range(ngrp):
        need=min(43,(g+1)*GRP)
        a(f"s_waitcnt vmcnt({issued-need})\ns_barrier")
        tgt=min(43,issued+ (8 if g<3 else 5))
        while issued<tgt and issued-HSLOTS < g*GRP-1:
            issue(issued); issued+=1
    assert issued==43

def m_p4(a):
    a(f"""s_and_b32 s28, s{S_IDX}, 3
s_lshl_b32 s29, s{S_XCD}, 2
s_add_u32 s28, s28, s29                 ; t64
s_lshr_b32 s29, s{S_IDX}, 2             ; dc
s_and_b32 s30, s{S_WAVE}, 1             ; dt
s_lshr_b32 s31, s{S_WAVE}, 1            ; kh
s_lshl_b32 s32, s29, 1
s_add_u32 s32, s32, s30                 ; dtile
v_lshlrev_b32 v2, 4, v1""")
    X=64
    a(f"""v_and_b32 v3, 31, v1
v_lshrrev_b32 v4, 5, v1                 ; hi
s_lshl_b32 s33, s32, 5                  ; d0 = 32*dtile
s_lshl_b32 s34, s28, 6
s_lshl_b32 s35, s31, 5
s_add_u32 s34, s34, s35                 ; t0 = 64*t64 + 32*kh
v_lshlrev_b32 v5, 2, v4                 ; 4hi
v_add_u32 v6, s33, v5                   ; d0 + 4hi
s_nop 0""")
    a("s_waitcnt vmcnt(0)")
    ev_add(a,E_WF,t=(11,12))
    stamp(a,20)
    a("s_barrier")
    stamp(a,21)
    a(f"""s_lshl_b32 s35, s31, 11                 ; kh*2048
v_add_u32 v9, s35, v2                   ; H frag address inside a step
v_add_u32 v10, 0x10000, v9
v_add_u32 v13, 0x20000, v9""")
    ACC=16; FB=48
    def reads(j):
        b=FB+8*(j%2); sl=(j%HSLOTS)*4096+L_HR
        av=[9,10,13][sl>>16]
        o=sl&0xffff
        return [f"ds_read_b128 v[{b}:{b+3}], v{av} offset:{o}", f"ds_read_b128 v[{b+4}:{b+7}], v{av} offset:{o+1024}"]
    stamp(a,22)
    a("s_barrier")
    stamp(a,23)
    for l in reads(0): a(l)
    for j in range(43):
        b=FB+8*(j%2)
        if j+1<43:
            if (j+1)%GRP==0: a("s_barrier")
            for l in reads(j+1): a(l)
            a("s_waitcnt lgkmcnt(2)")
        else: a("s_waitcnt lgkmcnt(0)")
        for tt in range(2):
            c="0" if j==0 else f"v[{ACC+16*tt}:{ACC+16*tt+15}]"
            a(f"v_mfma_f32_32x32x16_bf16 v[{ACC+16*tt}:{ACC+16*tt+15}], v[{wf_reg(PERM[j])}:{wf_reg(PERM[j])+3}], v[{b+4*tt}:{b+4*tt+3}], {c}")
        if j==30:
            srd(a,SRD_A,P_B2,1024)
            srd(a,SRD_OUT,P_OUT,2097152)
            a(f"""v_lshlrev_b32 v11, 2, v6
s_mov_b32 s35, {OFF_FING}
v_lshlrev_b32 v12, 1, v6""")
            for g in range(4):
                a(f"buffer_load_dwordx4 v[{160+4*g}:{163+4*g}], v11, s[{SRD_WS}:{SRD_WS+3}], s35 offen offset:{32*g}{BS}")
                a(f"buffer_load_dwordx2 v[{152+2*g}:{153+2*g}], v12, s[{SRD_A}:{SRD_A+3}], 0 offen offset:{16*g}")
    stamp(a,24)
    a(f"""s_lshl_b32 s35, s{S_WAVE}, 12
s_add_u32 s35, s35, {L_EX2}
v_add_u32 v4, s35, v2
s_xor_b32 s35, s{S_WAVE}, 2
s_lshl_b32 s35, s35, 12
s_add_u32 s35, s35, {L_EX2}
v_add_u32 v5, s35, v2""")
    lk=a.lab("L_kh1"); lj=a.lab("L_khj")
    a(f"s_cmp_eq_u32 s31, 0\ns_cbranch_scc0 {lk}")
    for g in range(4): a(f"ds_write_b128 v4, v[{ACC+16+4*g}:{ACC+16+4*g+3}] offset:{1024*g}")
    a(f"s_branch {lj}\n{lk}:")
    for g in range(4): a(f"ds_write_b128 v4, v[{ACC+4*g}:{ACC+4*g+3}] offset:{1024*g}")
    for i in range(16): a(f"v_mov_b32 v{ACC+i}, v{ACC+16+i}")
    a(f"{lj}:\ns_waitcnt lgkmcnt(0)\ns_barrier")
    for g in range(4): a(f"ds_read_b128 v[{48+4*g}:{48+4*g+3}], v5 offset:{1024*g}")
    a("s_waitcnt vmcnt(0) lgkmcnt(0)")
    for r in range(16):
        g=r>>2; k=r&3
        b2r=152+2*g+(k>>1)
        unp = f"v_lshlrev_b32 v2, 16, v{b2r}" if k%2==0 else f"v_and_b32 v2, 0xffff0000, v{b2r}"
        a(f"""v_add_f32 v{ACC+r}, v{ACC+r}, v{48+r}
{unp}
{"v_lshlrev_b32 v4, 16, v%d"%(X+r//2) if r%2==0 else "v_and_b32 v4, 0xffff0000, v%d"%(X+r//2)}
v_add_f32 v{ACC+r}, v{ACC+r}, v2
v_fma_f32 v{ACC+r}, v{160+r}, v{ACC+r}, v4""")
    for p in range(8): a(f"v_cvt_pk_bf16_f32 v{176+p}, v{ACC+2*p}, v{ACC+2*p+1}")
    a(f"""s_nop 1
v_permlane32_swap_b32 v176, v178
v_permlane32_swap_b32 v177, v179
v_permlane32_swap_b32 v180, v182
v_permlane32_swap_b32 v181, v183
v_add_u32 v8, s34, v3
v_lshlrev_b32 v8, 10, v8                ; t*1024
v_lshrrev_b32 v4, 5, v1
v_lshlrev_b32 v4, 4, v4                 ; hi*16B
s_lshl_b32 s35, s33, 1
v_add3_u32 v8, v8, v4, s35
buffer_store_dwordx4 v[176:179], v8, s[{SRD_OUT}:{SRD_OUT+3}], 0 offen
buffer_store_dwordx4 v[180:183], v8, s[{SRD_OUT}:{SRD_OUT+3}], 0 offen offset:32""")
    stamp(a,25)
    if STAMPS:
        a("s_waitcnt vmcnt(0)")
        stamp(a,26)

def h_p4_tail(a):
    a("s_barrier")

def dump_lds(a, nbytes):
    a(f"""s_mul_i32 s30, s2, {LDS_BYTES}
s_add_u32 s30, s30, {OFF_DBG}
v_lshlrev_b32 v2, 4, v0""")
    n=(nbytes+8191)//8192
    for i in range(n):
        a(f"""ds_read_b128 v[4:7], v2 offset:0
s_waitcnt lgkmcnt(0)
buffer_store_dwordx4 v[4:7], v2, s[{SRD_WS}:{SRD_WS+3}], s30 offen
v_add_u32 v2, 8192, v2
s_waitcnt vmcnt(0)""")

def build(stop):
    a=Asm()
    prologue(a)
    m_p1(a)
    m_conv(a)
    m_epilogue(a)
    m_p3(a)
    p3_publish(a,'M')
    m_p4(a)
    a("s_branch L_fin")
    h_p1(a)
    h_side(a)
    h_p3(a)
    p3_publish(a,'H')
    h_p4(a)
    h_p4_tail(a)
    a("L_fin:")
    if STAMPS: a("s_memrealtime s[78:79]\ns_waitcnt lgkmcnt(0)\nv_writelane_b32 v254, s78, 61")
    dump_stamps(a,64)
    a("L_end:\ns_endpgm")
    return finish(a, f"; @launch grid=(256,1,1) block=(512,1,1) lds={LDS_BYTES}")

if __name__=="__main__":
    stop=int(sys.argv[1]) if len(sys.argv)>1 else 99
    if len(sys.argv)>3 and sys.argv[3]=='st': STAMPS=True
    out=sys.argv[2] if len(sys.argv)>2 else "out.s"
    open(out,"w").write(build(stop))
```

```python
import sys, os
from base import *
EXP=set(os.environ.get('EXP','allearly').split(','))
if 'base' not in EXP: EXP.add('allearly')
BS=' sc1' if 'bulksc1' in EXP else ''

OFF_E   =0x0
OFF_F2  =0x1000
OFF_F3  =0x2000
OFF_F2W =0x3000
OFF_F1W =0x88000
OFF_STAT=0x4000
OFF_MOD =0x8000
OFF_S   =0x10000
OFF_T   =0x12000
OFF_MODP=0x20000
OFF_FINS=0x80000
OFF_FING=0x81000
OFF_LNP =0x90000
OFF_XT  =0x110000
OFF_W1P =0x500000
OFF_W2F =0x700000
OFF_X2T =0x900000
OFF_H   =0xB00000
OFF_DBG =0x2000000
WS_SIZE =268435456
CS=4416; KCH=4*CS
L_KC=0
PL=1568; HCH=4*PL
L_EG=35328; EGW=17408
L_EX=104960
L_Y=98304; YW=9216
L_HP=135168
L_XP=147712
L_MISC=155904
L_MODP=L_MISC
L_CNT=L_MISC+512
L_W2S=L_MISC+1024
L_STV=161024
L_GA=L_CNT+56
E_W2=0; E_F2=4; E_SIDE=8; E_KX=12; E_EPI=16; E_F3=20; E_F2W=24; E_Y=28; E_GA=36; E_W1=40; E_PB=44; E_WF=48; E_STI=52; E_WE=32
L_PB=156928
LDS_BYTES=163840
SPIN=4000
PSL=int(os.environ.get('PSL','1'))
TAGC=0x9E3779B9

S_WAVE=3; S_TAG=4; S_P=5; S_XCD=6; S_IDX=7
SRD_WS=8; SRD_OUT=12; SRD_A=16; SRD_B=20; SRD_C=24
P_X=36;P_ARE=38;P_AIM=40;P_BRE=42;P_BIM=44;P_CRE=46;P_CIM=48;P_LDT=50
P_DSK=52;P_BX=54;P_W1=56;P_B1=58;P_W2=60;P_B2=62;P_C=64;P_WM=66;P_OUT=68;P_DBG=70;P_WS=72
LOG2E=0x3fb8aa3b; LOG2E_LO=0x32a57060; LN2=0x3f317218; INV2PI=0x3e22f983

def srd(a, r, p, size):
    a(f"""s_mov_b32 s{r}, s{p}
s_and_b32 s{r+1}, s{p+1}, 0xffff
s_mov_b32 s{r+2}, {size}
s_mov_b32 s{r+3}, 0x20000""")

def cmul(dst,x,y,tmp):
    return [f"v_pk_mul_f32 v[{tmp}:{tmp+1}], v[{x}:{x+1}], v[{y}:{y+1}] op_sel_hi:[1,0]",
            f"v_pk_fma_f32 v[{dst}:{dst+1}], v[{x}:{x+1}], v[{y}:{y+1}], v[{tmp}:{tmp+1}] op_sel:[1,1,0] op_sel_hi:[0,1,1] neg_lo:[1,0,0]"]

def cexp(dst,q,va,vb,t0,t1,t2):
    return [f"v_mul_f32 v{t0}, {q}, v{va}",
            f"v_mul_f32 v{t1}, {q}, v{vb}",
            f"v_exp_f32 v{t0}, v{t0}",
            f"v_fract_f32 v{t1}, v{t1}",
            f"v_cos_f32 v{t2}, v{t1}",
            f"v_sin_f32 v{t1}, v{t1}",
            f"v_mul_f32 v{dst}, v{t0}, v{t2}",
            f"v_mul_f32 v{dst+1}, v{t0}, v{t1}"]

def f32(x):
    import struct
    return "0x%08x"%struct.unpack('<I',struct.pack('<f',x))[0]

def rho(r,hi): return (r&3)+8*(r>>2)+4*hi
ROWS=[[0,1,2,3,4,5,6,7,512,516,520,1024,1032,1280,1288],
      [256,256,258,260,260,260,262,264,768,772,776,1536,1544,1792,1800]]
GROWS={}
for hi in (0,1):
    for r,q in enumerate(ROWS[hi]): GROWS.setdefault(q,[]).append(rho(r,hi))

STAMPS=False
def stamp(a,i):
    if not STAMPS: return
    a(f"""s_memtime s[78:79]
s_waitcnt lgkmcnt(0)
v_writelane_b32 v254, s78, {i}""")
def dump_stamps(a,n):
    if not STAMPS: return
    a(f"""s_lshl_b32 s30, s{S_WAVE}, 8
s_lshl_b32 s31, s2, 11
s_add_u32 s30, s30, s31
s_add_u32 s30, s30, {OFF_DBG+0x3000000}
v_lshlrev_b32 v2, 2, v1
buffer_store_dword v254, v2, s[{SRD_WS}:{SRD_WS+3}], s30 offen""")

def prologue(a):
    a(f"""s_cmp_ge_u32 s2, 256
s_cbranch_scc1 L_end
s_memtime s[80:81]
s_load_dwordx16 s[36:51], s[0:1], 0
s_load_dwordx16 s[52:67], s[0:1], 64
s_load_dwordx4 s[68:71], s[0:1], 128
s_load_dwordx2 s[72:73], s[0:1], 144
v_lshrrev_b32 v2, 6, v0
v_and_b32 v1, 63, v0
s_and_b32 s{S_XCD}, s2, 7
v_readfirstlane_b32 s{S_WAVE}, v2
s_lshr_b32 s{S_IDX}, s2, 3
s_lshl_b32 s{S_P}, s{S_XCD}, 5
s_add_u32 s{S_P}, s{S_P}, s{S_IDX}
s_waitcnt lgkmcnt(0)""")
    srd(a,SRD_WS,P_WS,WS_SIZE)
    if STAMPS:
        a("v_writelane_b32 v254, s80, 0")
        a("s_memrealtime s[78:79]\ns_waitcnt lgkmcnt(0)\nv_writelane_b32 v254, s78, 60")
    stamp(a,1)
    a(f"""v_mov_b32 v2, 0
buffer_load_dword v255, v2, s[{SRD_WS}:{SRD_WS+3}], 0 offen sc1
s_cmp_ge_u32 s{S_WAVE}, 4
s_cbranch_scc1 L_H_P1""")

def get_tag(a):
    a(f"""v_readfirstlane_b32 s{S_TAG}, v255
s_add_u32 s{S_TAG}, s{S_TAG}, {TAGC}""")

def m_p1(a):
    a(f"""s_lshr_b32 s28, s{S_WAVE}, 1          ; ch
s_lshl_b32 s29, s{S_P}, 1
s_add_u32 s29, s29, s28                ; d
s_and_b32 s30, s{S_WAVE}, 1
s_lshl_b32 s31, s29, 8
s_lshl_b32 s32, s30, 7
s_add_u32 s31, s31, s32                ; d*256 + half*128
v_lshlrev_b32 v9, 1, v1
v_add_u32 v9, s31, v9
global_load_ushort v2, v9, s[{P_ARE}:{P_ARE+1}]
global_load_ushort v3, v9, s[{P_AIM}:{P_AIM+1}]
global_load_ushort v4, v9, s[{P_BRE}:{P_BRE+1}]
global_load_ushort v5, v9, s[{P_BIM}:{P_BIM+1}]
global_load_ushort v6, v9, s[{P_CRE}:{P_CRE+1}]
global_load_ushort v7, v9, s[{P_CIM}:{P_CIM+1}]
s_lshl_b32 s32, s29, 1
v_mov_b32 v10, s32
global_load_ushort v8, v10, s[{P_LDT}:{P_LDT+1}]""")
    a(f"""v_mov_b32 v12, 0
v_mov_b32 v13, 0
v_mov_b32 v14, 0
v_mov_b32 v15, 0
v_lshrrev_b32 v10, 5, v1                ; 0/1
s_lshl_b32 s32, s{S_WAVE}, 1
v_add_u32 v10, s32, v10
v_mul_u32_u24 v10, {PL}, v10
v_and_b32 v11, 31, v1
v_lshlrev_b32 v11, 4, v11
v_add_u32 v10, v10, v11
v_add_u32 v10, {L_HP}, v10
ds_write_b128 v10, v[12:15]
v_lshrrev_b32 v10, 3, v1
v_mul_u32_u24 v10, {CS}, v10
v_and_b32 v11, 7, v1
v_lshlrev_b32 v11, 4, v11
v_add_u32 v10, v10, v11
ds_write_b128 v10, v[12:15] offset:{L_KC+16+4064}
s_waitcnt lgkmcnt(0)
s_barrier""")
    a(f"""s_mul_i32 s33, s{S_WAVE}, {EGW}
s_add_u32 s33, s33, {L_EG}
v_lshlrev_b32 v60, 2, v1
v_add_u32 v60, s33, v60
v_add_u32 v61, {32*272}, v60
s_mov_b32 s34, {LOG2E}
s_mov_b32 s35, {LOG2E_LO}
s_waitcnt vmcnt(0)""")
    stamp(a,2)
    get_tag(a)
    a(f"""v_lshlrev_b32 v2, 16, v2
v_lshlrev_b32 v3, 16, v3
v_lshlrev_b32 v4, 16, v4
v_lshlrev_b32 v5, 16, v5
v_lshlrev_b32 v6, 16, v6
v_lshlrev_b32 v7, 16, v7
v_lshlrev_b32 v8, 16, v8
v_mul_f32 v10, s34, v8
v_fma_f32 v11, v8, s34, -v10
v_fma_f32 v11, v8, s35, v11
v_exp_f32 v10, v10
v_mul_f32 v11, {LN2}, v11
v_fma_f32 v10, v10, v11, v10
v_cvt_pk_bf16_f32 v10, v10, v10
v_lshlrev_b32 v8, 16, v10
v_mul_f32 v2, v8, v2                    ; zr
v_mul_f32 v3, v8, v3                    ; zi
v_mul_f32 v4, v8, v4
v_mul_f32 v5, v8, v5
v_mul_f32 v10, v6, v4
v_mul_f32 v11, v6, v5
v_fma_f32 v10, -v7, v5, v10             ; wr
v_fma_f32 v11, v7, v4, v11              ; wi
v_mul_f32 v12, s34, v2
v_mul_f32 v13, {INV2PI}, v3""")
    W=10; U1=14;U2=16;U4=18;U8=20;U16=22;U256=24;U512=26;U1024=28
    a(f"""s_mov_b32 s74, {f32(8.0)}
s_mov_b32 s75, {f32(256.0)}
s_mov_b32 s76, {f32(512.0)}
s_mov_b32 s77, {f32(1024.0)}""")
    a.interleave(cexp(U8,"s74",12,13,38,39,40), cexp(U1,"1.0",12,13,41,42,43), cexp(U256,"s75",12,13,44,45,46))
    a.interleave(cexp(U512,"s76",12,13,38,39,40), cexp(U1024,"s77",12,13,41,42,43), cmul(U16,U8,U8,44)+cmul(U2,U1,U1,46))
    for l in cmul(U4,U2,U2,44): a(l)
    def emitG(q,reg,tmp):
        o=[f"v_cvt_pk_bf16_f32 v{tmp}, v{reg}, v{reg+1}"]
        if 'nods' in EXP: return o
        for r in GROWS[q]: o.append(f"ds_write_b32 v60, v{tmp} offset:{r*272}")
        return o
    def emitE(b,reg,tmp):
        if 'nods' in EXP: return [f"v_cvt_pk_bf16_f32 v{tmp}, v{reg}, -v{reg+1}"]
        return [f"v_cvt_pk_bf16_f32 v{tmp}, v{reg}, -v{reg+1}", f"ds_write_b32 v61, v{tmp} offset:{b*272}"]
    EA=30; EB=32
    sE=[]; sO=[]
    sE+=[f"v_mov_b32 v54, 0x3f80", f"ds_write_b32 v61, v54 offset:0"]
    sE+=[f"v_mov_b32 v{EA}, v{U16}", f"v_mov_b32 v{EA+1}, v{U16+1}"]+emitE(2,EA,54)
    for b in range(4,32,2): sE+=cmul(EA,EA,U16,48)+emitE(b,EA,54)
    sO+=[f"v_mov_b32 v{EB}, v{U8}", f"v_mov_b32 v{EB+1}, v{U8+1}"]+emitE(1,EB,55)
    for b in range(3,32,2): sO+=cmul(EB,EB,U16,50)+emitE(b,EB,55)
    GA=34; GB=36; GC=58
    sG=[]
    sG+=emitG(0,W,56)+cmul(GA,W,U1,52)+emitG(1,GA,56)
    for c in range(2,8): sG+=cmul(GA,GA,U1,52)+emitG(c,GA,56)
    sG+=cmul(GA,W,U256,52)+emitG(256,GA,56)
    sG+=cmul(GB,GA,U8,52)+emitG(264,GB,56)
    for q in (258,260,262): sG+=cmul(GA,GA,U2,52)+emitG(q,GA,56)
    sG+=cmul(GA,W,U512,52)+emitG(512,GA,56)
    sG+=cmul(GB,GA,U4,52)+emitG(516,GB,56)+cmul(GB,GA,U8,52)+emitG(520,GB,56)
    sG+=cmul(GA,GA,U256,52)+emitG(768,GA,56)
    sG+=cmul(GB,GA,U4,52)+emitG(772,GB,56)+cmul(GB,GA,U8,52)+emitG(776,GB,56)
    sG+=cmul(GA,W,U1024,52)+emitG(1024,GA,56)+cmul(GB,GA,U8,52)+emitG(1032,GB,56)
    sG+=cmul(GC,GA,U256,52)+emitG(1280,GC,56)+cmul(GB,GC,U8,52)+emitG(1288,GB,56)
    sG+=cmul(GA,GA,U512,52)+emitG(1536,GA,56)+cmul(GB,GA,U8,52)+emitG(1544,GB,56)
    sG+=cmul(GA,GA,U256,52)+emitG(1792,GA,56)+cmul(GB,GA,U8,52)+emitG(1800,GB,56)
    a.interleave(sE,sO,sG[:len(sG)//2],sG[len(sG)//2:]) if False else a.interleave(sE,sO,sG)
    stamp(a,3)
    if 'hwait' in EXP: a("s_barrier")
    a(f"""v_and_b32 v62, 31, v1
v_mul_u32_u24 v62, 272, v62
v_lshrrev_b32 v63, 5, v1
v_lshlrev_b32 v63, 4, v63
v_add3_u32 v62, v62, v63, s33
v_add_u32 v63, {32*272}, v62
s_waitcnt lgkmcnt(0)""")
    FA=64
    for s in range(7):
        a(f"ds_read_b128 v[{FA+8*s}:{FA+8*s+3}], v62 offset:{32*s}")
        a(f"ds_read_b128 v[{FA+8*s+4}:{FA+8*s+7}], v63 offset:{32*s}")
    ACC=128
    for s in range(8):
        if s==0:
            a("s_waitcnt lgkmcnt(12)")
        elif s==1:
            a(f"ds_read_b128 v[{FA+56}:{FA+59}], v62 offset:{32*7}")
            a(f"ds_read_b128 v[{FA+60}:{FA+63}], v63 offset:{32*7}")
            a("s_waitcnt lgkmcnt(12)")
        else:
            a(f"s_waitcnt lgkmcnt({2*(7-s)})")
        c = "0" if s==0 else f"v[{ACC}:{ACC+15}]"
        a(f"v_mfma_f32_32x32x16_bf16 v[{ACC}:{ACC+15}], v[{FA+8*s}:{FA+8*s+3}], v[{FA+8*s+4}:{FA+8*s+7}], {c}")
    a(f"""s_lshl_b32 s34, s{S_WAVE}, 12
s_add_u32 s34, s34, {L_EX}
v_lshlrev_b32 v62, 4, v1
v_add_u32 v63, s34, v62
s_xor_b32 s35, s34, 4096
v_add_u32 v62, s35, v62""")
    for g in range(4): a(f"ds_write_b128 v63, v[{ACC+4*g}:{ACC+4*g+3}] offset:{1024*g}")
    a(f"""s_xor_b32 s35, s{S_WAVE}, 1
s_lshl_b32 s35, s35, 12
s_add_u32 s35, s35, {L_EX}
v_lshlrev_b32 v62, 4, v1
v_add_u32 v62, s35, v62
s_waitcnt lgkmcnt(0)""")
    stamp(a,4)
    ev_add(a,E_KX)
    ev_wait(a,E_KX,4)
    stamp(a,5)
    for g in range(4): a(f"ds_read_b128 v[{FA+4*g}:{FA+4*g+3}], v62 offset:{1024*g}")
    a(f"""s_lshr_b32 s28, s{S_WAVE}, 1
s_mul_i32 s28, s28, {KCH}
s_add_u32 s28, s28, {L_KC+16+4080-8}
v_and_b32 v2, 31, v1
v_lshlrev_b32 v2, 4, v2                 ; 16c
v_sub_u32 v2, s28, v2                   ; base - 16c
v_lshrrev_b32 v3, 5, v1                 ; hi
s_mov_b32 s30, 0xaaaaaaaa
s_mov_b32 s31, 0xaaaaaaaa
s_waitcnt lgkmcnt(0)""")
    for i in range(16): a(f"v_add_f32 v{ACC+i}, v{ACC+i}, v{FA+i}")
    def chunk(e, base0, basehi):
        D=84; O=88; K0=4
        a(f"""v_mul_u32_u24 v{K0}, {2*basehi}, v3
v_add_u32 v{K0}, {2*base0}, v{K0}
v_sub_u32 v{K0}, v2, v{K0}
v_add_u32 v{K0+1}, {CS}, v{K0}
v_add_u32 v{K0+2}, {2*CS}, v{K0}
v_add_u32 v{K0+3}, {3*CS}, v{K0}""")
        f=[e[7-j] for j in range(8)]
        for j in range(4): a(f"v_cvt_pk_bf16_f32 v{D+j}, v{f[2*j]}, v{f[2*j+1]}")
        for j in range(3): a(f"v_cvt_pk_bf16_f32 v{O+j}, v{f[2*j+1]}, v{f[2*j+2]}")
        a(f"""ds_write_b128 v{K0}, v[{D}:{D+3}] offset:8
ds_write2_b32 v{K0+2}, v{D}, v{D+1} offset0:1 offset1:2
ds_write2_b32 v{K0+2}, v{D+2}, v{D+3} offset0:3 offset1:4
ds_write_b16 v{K0+1}, v{D} offset:6
ds_write_b96 v{K0+1}, v[{O}:{O+2}] offset:8
ds_write_b16_d16_hi v{K0+1}, v{D+3} offset:20
ds_write_b16 v{K0+3}, v{D} offset:2
ds_write2_b32 v{K0+3}, v{O}, v{O+1} offset0:1 offset1:2
ds_write_b32 v{K0+3}, v{O+2} offset:12
ds_write_b16_d16_hi v{K0+3}, v{D+3} offset:16""")
    R=lambda r: ACC+r
    lo=a.lab("L_kodd"); le=a.lab("L_kend")
    a(f"""s_bitcmp1_b32 s{S_WAVE}, 0
s_cbranch_scc1 {lo}""")
    chunk([R(i) for i in range(8)],0,256)
    a(f"v_cndmask_b32 v8, v{R(11)}, v{R(12)}, s[30:31]")
    chunk([R(11)]*4+[8]+[R(12)]*3,1024,512)
    a(f"s_branch {le}\n{lo}:")
    chunk([R(8)]*3+[R(9)]*3+[R(10)]*2,512,256)
    a(f"v_cndmask_b32 v8, v{R(13)}, v{R(14)}, s[30:31]")
    chunk([R(13)]*4+[8]+[R(14)]*3,1280,512)
    a(f"{le}:")
    a("s_waitcnt lgkmcnt(0)")
    stamp(a,6)
    a("s_barrier")
    stamp(a,7)

def dpp_reduce(regs, full=True):
    o=[]
    for sh in (1,2,4,8):
        for r in regs: o.append(f"v_add_f32_dpp v{r}, v{r}, v{r} row_shr:{sh} row_mask:0xf bank_mask:0xf")
    for r in regs: o.append(f"v_add_f32_dpp v{r}, v{r}, v{r} row_bcast:15 row_mask:0xa bank_mask:0xf")
    if full:
        for r in regs: o.append(f"v_add_f32_dpp v{r}, v{r}, v{r} row_bcast:31 row_mask:0xc bank_mask:0xf")
    return o

def dpp_reduce_rows(regs):
    o=[]
    for sh in (1,2,4,8):
        for r in regs: o.append(f"v_add_f32_dpp v{r}, v{r}, v{r} row_shr:{sh} row_mask:0xf bank_mask:0xf")
    return o

def gemv16(a, nvec, vecregs, wregs, accbase):
    for v in range(nvec):
        for k in range(8): a(f"v_mov_b32 v{accbase+8*v+k}, 0")
    for i in range(4):
        for v in range(nvec):
            lo,hi=vecregs[v][i]
            for k in range(4):
                a(f"v_dot2c_f32_bf16 v{accbase+8*v+2*k}, v{wregs[i]+k}, v{lo}")
                a(f"v_dot2c_f32_bf16 v{accbase+8*v+2*k+1}, v{wregs[i]+k}, v{hi}")

def silu_pack(a,c,lo,hi,t):
    a(f"""v_lshlrev_b32 v{c}, 16, v{c}
v_mul_f32 v{t}, {f32(-1.4426950408889634)}, v{c}
v_exp_f32 v{t}, v{t}
v_add_f32 v{t}, 1.0, v{t}
v_rcp_f32 v{t}, v{t}
v_mul_f32 v{t}, v{c}, v{t}
v_cvt_pk_bf16_f32 v{lo}, v{t}, 0
v_lshlrev_b32 v{hi}, 16, v{lo}""")

def mod_tile_loads(a):
    a(f"""v_lshrrev_b32 v4, 3, v1
s_lshl_b32 s34, s35, 5
v_add_u32 v4, s34, v4
v_mul_u32_u24 v5, 6144, v4
v_and_b32 v6, 7, v1
v_lshlrev_b32 v6, 4, v6
v_add_u32 v5, v5, v6
v_lshlrev_b32 v4, 1, v4
s_lshl_b32 s34, s33, 7""")
    for i in range(4):
        a(f"buffer_load_dwordx4 v[{36+4*i}:{39+4*i}], v5, s[{SRD_B}:{SRD_B+3}], s34 offen")
        if i<3: a(f"s_add_u32 s34, s34, {8*6144}")
    for i in range(4):
        a(f"buffer_load_ushort v{52+i}, v4, s[{SRD_C}:{SRD_C+3}], 0 offen offset:{16*i}")

def mod_tile_compute(a):
    for i in range(4): silu_pack(a,52+i,100+2*i,101+2*i,56)
    gemv16(a,1,[[(100+2*i,101+2*i) for i in range(4)]],[36+4*i for i in range(4)],110)
    a("s_nop 1")
    for k in range(4): a(f"v_permlane32_swap_b32 v{110+2*k}, v{111+2*k}")
    for k in range(4): a(f"v_add_f32 v{110+2*k}, v{110+2*k}, v{111+2*k}")
    a("""s_nop 1
v_permlane16_swap_b32 v110, v112
v_permlane16_swap_b32 v114, v116
v_add_f32 v110, v110, v112
v_add_f32 v114, v114, v116
s_nop 1
v_add_f32_dpp v110, v110, v110 row_ror:8 row_mask:0xf bank_mask:0xf
v_add_f32_dpp v114, v114, v114 row_ror:8 row_mask:0xf bank_mask:0xf""")
    a(f"""v_bfe_u32 v6, v1, 3, 1
v_cmp_eq_u32 vcc, 1, v6
v_cndmask_b32 v118, v110, v114, vcc
v_mov_b32 v119, s{S_TAG}
v_and_b32 v7, 7, v1
v_lshlrev_b32 v7, 3, v7
v_lshlrev_b32 v6, 2, v6
v_bfe_u32 v8, v1, 4, 1
v_lshlrev_b32 v8, 1, v8
v_lshrrev_b32 v9, 5, v1
v_add3_u32 v7, v7, v6, v8
v_add_u32 v7, v7, v9
v_lshlrev_b32 v7, 3, v7                 ; *8 bytes
s_mul_i32 s30, s35, {3072*8}
s_lshl_b32 s31, s33, 9
s_add_u32 s30, s30, s31
s_add_u32 s30, s30, {OFF_MODP}
buffer_store_dwordx2 v[118:119], v7, s[{SRD_WS}:{SRD_WS+3}], s30 offen sc1""")

def h_p1(a):
    a("L_H_P1:")
    if 'noprio' not in EXP: a("s_setprio 3")
    a(f"s_sub_u32 s28, s{S_WAVE}, 4            ; hw")
    srd(a,SRD_A,P_X,2097152)
    a(f"""v_and_b32 v2, 1, v1
v_lshlrev_b32 v2, 12, v2                ; 4*(l&1)*1024
v_lshrrev_b32 v3, 1, v1
s_lshl_b32 s29, s28, 6
v_add_u32 v3, s29, v3
v_lshlrev_b32 v3, 2, v3
v_add_u32 v2, v2, v3
s_lshl_b32 s30, s2, 13                  ; j*8192""")
    if 'gather' not in EXP:
        for i in range(2):
            for k in range(4):
                a(f"buffer_load_dword v{10+4*i+k}, v2, s[{SRD_A}:{SRD_A+3}], s30 offen offset:{128*i+1024*k}")
    a(f"""s_lshl_b32 s32, s28, 11
s_add_u32 s32, s32, s30
v_lshlrev_b32 v3, 4, v1
buffer_load_dwordx4 v[26:29], v3, s[{SRD_A}:{SRD_A+3}], s32 offen
buffer_load_dwordx4 v[30:33], v3, s[{SRD_A}:{SRD_A+3}], s32 offen offset:1024""")
    if 'w2late' not in EXP: w2_loads(a)
    srd(a,SRD_B,P_WM,3145728)
    srd(a,SRD_C,P_C,1024)
    l7=a.lab("L_t7"); lt=a.lab("L_tj")
    a(f"""s_cmp_eq_u32 s28, 3
s_cbranch_scc1 {l7}
s_lshl_b32 s33, s2, 1
s_add_u32 s33, s33, s28
s_sub_u32 s33, s33, 1                   ; tau
s_lshr_b32 s35, s33, 5
s_and_b32 s33, s33, 31
s_add_u32 s33, s33, 16
s_branch {lt if 'allearly' not in EXP else lt+'x'}
{l7}:
s_and_b32 s33, s2, 15
s_lshr_b32 s35, s2, 4""")
    if 'allearly' in EXP:
        lz=a.lab("L_tz")
        a(f"{lt}x:\ns_cmp_eq_u32 s28, 0\ns_cbranch_scc1 {lt}")
    mod_tile_loads(a)
    a(f"""{lt}:
v_mov_b32 v8, 0
v_mov_b32 v9, 0
v_mov_b32 v34, {L_CNT}
ds_write_b64 v34, v[8:9]
ds_write_b64 v34, v[8:9] offset:8
ds_write_b64 v34, v[8:9] offset:16
ds_write_b64 v34, v[8:9] offset:24
ds_write_b64 v34, v[8:9] offset:32
ds_write_b64 v34, v[8:9] offset:40
ds_write_b64 v34, v[8:9] offset:48
s_waitcnt lgkmcnt(0)
s_barrier""")
    lm=a.lab("L_hasmod"); lm2=a.lab("L_w")
    a(f"""{'s_cmp_lg_u32 s28, 0' if 'allearly' in EXP else 's_cmp_eq_u32 s28, 3'}
s_cbranch_scc1 {lm}
s_waitcnt vmcnt({2 if 'gather' in EXP else 4})
s_branch {lm2}
{lm}:
s_waitcnt vmcnt({10 if 'gather' in EXP else 12})
{lm2}:""")
    stamp(a,2)
    a(f"""v_lshlrev_b32 v2, 4, v1
s_lshl_b32 s30, s2, 13
s_lshl_b32 s31, s28, 11
s_add_u32 s30, s30, s31
s_add_u32 s30, s30, {OFF_XT}""")
    if 'gather' not in EXP:
        for i in range(2):
            a(f"buffer_store_dwordx4 v[{10+4*i}:{13+4*i}], v2, s[{SRD_WS}:{SRD_WS+3}], s30 offen offset:{1024*i} sc1")
    get_tag(a)
    ln=a.lab("L_no56"); l1=a.lab("L_w56"); l2=a.lab("L_w7"); l3=a.lab("L_wj")
    if 'allearly' in EXP:
        a(f"s_cmp_eq_u32 s28, 0\ns_cbranch_scc1 {ln}\ns_branch {l2}")
    else:
        a(f"""s_cmp_eq_u32 s28, 0
s_cbranch_scc1 {ln}
s_cmp_eq_u32 s28, 3
s_cbranch_scc1 {l2}""")
        mod_tile_loads(a)
    if 'w2late' in EXP:
        a(f"""{l2}:
s_waitcnt vmcnt(10)
s_branch {l3}
{ln}:
s_waitcnt vmcnt(2)
{l3}:""")
    elif 'gather' in EXP:
        a(f"{l2}:\n{ln}:")
    else:
        a(f"""{l2}:
s_waitcnt vmcnt(12)
s_branch {l3}
{ln}:
s_waitcnt vmcnt(4)
{l3}:""")
    X=60
    for t in range(2):
        for k in range(4):
            a(f"v_lshlrev_b32 v{X+8*t+2*k}, 16, v{26+4*t+k}")
            a(f"v_and_b32 v{X+8*t+2*k+1}, 0xffff0000, v{26+4*t+k}")
    for t in range(2):
        a(f"v_add_f32 v{84+t}, v{X+8*t}, v{X+8*t+1}")
    for k in range(2,8):
        for t in range(2): a(f"v_add_f32 v{84+t}, v{84+t}, v{X+8*t+k}")
    for l in dpp_reduce([84,85]): a(l)
    a(f"""v_readlane_b32 s74, v84, 63
v_readlane_b32 s75, v85, 63
s_mov_b32 s76, {f32(1/512)}
v_mov_b32 v84, s74
v_mov_b32 v85, s75
v_mul_f32 v84, s76, v84
v_mul_f32 v85, s76, v85""")
    for k in range(8):
        for t in range(2): a(f"v_sub_f32 v{X+8*t+k}, v{X+8*t+k}, v{84+t}")
    for t in range(2):
        a(f"v_mul_f32 v{86+t}, v{X+8*t}, v{X+8*t}")
    for k in range(1,8):
        for t in range(2): a(f"v_fmac_f32 v{86+t}, v{X+8*t+k}, v{X+8*t+k}")
    for l in dpp_reduce([86,87]): a(l)
    a(f"""v_mul_f32 v86, s76, v86
v_mul_f32 v87, s76, v87
v_cvt_pk_bf16_f32 v88, v86, v87         ; bf16(var)
v_lshlrev_b32 v86, 16, v88
v_and_b32 v87, 0xffff0000, v88
v_add_f32 v86, {f32(1e-5)}, v86
v_add_f32 v87, {f32(1e-5)}, v87
v_cvt_pk_bf16_f32 v88, v86, v87
v_lshlrev_b32 v86, 16, v88
v_and_b32 v87, 0xffff0000, v88
v_sqrt_f32 v86, v86
v_sqrt_f32 v87, v87
v_cvt_pk_bf16_f32 v90, v84, v86         ; token0: (m, s)
v_cvt_pk_bf16_f32 v92, v85, v87         ; token1
v_mov_b32 v91, s{S_TAG}
v_mov_b32 v93, s{S_TAG}
s_lshl_b32 s30, s2, 6
s_lshl_b32 s31, s28, 4
s_add_u32 s30, s30, s31
s_add_u32 s30, s30, {OFF_STAT}
v_mov_b32 v94, 0""")
    lx=a.lab("L_x8"); ly=a.lab("L_x0")
    a(f"""s_cmp_eq_u32 s28, {1 if 'allearly' not in EXP else 9}
s_cbranch_scc1 {lx}
s_cmp_eq_u32 s28, {2 if 'allearly' not in EXP else 9}
s_cbranch_scc1 {lx}
{'s_nop 0' if 'gather' in EXP else 's_waitcnt vmcnt(0)'}
s_branch {ly}
{lx}:
s_waitcnt vmcnt(8)
{ly}:
s_mov_b32 exec_lo, 0
s_mov_b32 exec_hi, 0x80000000
buffer_store_dwordx4 v[90:93], v94, s[{SRD_WS}:{SRD_WS+3}], s30 offen sc1
s_mov_b64 exec, -1""")
    stamp(a,3)
    lend=a.lab("L_nomodc"); lw2=a.lab("L_w2go")
    a(f"s_cmp_eq_u32 s28, 0\ns_cbranch_scc1 {lend}")
    a("s_waitcnt vmcnt(1)")
    mod_tile_compute(a)
    a(f"{lend}:")
    w1_loads(a)
    if 'gather' in EXP: a("s_waitcnt vmcnt(3)")
    w2_prep(a)
    if 'gather' in EXP:
        srd(a,SRD_A,P_X,2097152)
        a(f"""v_lshlrev_b32 v2, 11, v1                ; 2l*1024
s_lshl_b32 s30, s28, 19                 ; 512hw*1024
s_lshl_b32 s31, s{S_P}, 2
s_add_u32 s30, s30, s31""")
        for i in range(4):
            a(f"buffer_load_dword v{10+2*i}, v2, s[{SRD_A}:{SRD_A+3}], s30 offen")
            a(f"buffer_load_dword v{11+2*i}, v2, s[{SRD_A}:{SRD_A+3}], s30 offen offset:1024")
            if i<3: a(f"s_add_u32 s30, s30, {128*1024}")
    stamp(a,4)
    h_build(a)

def tagcheck(a, regs, lab_ok, lab_retry, T=(250,251,252)):
    t0,t1,t2=T
    a(f"v_xor_b32 v{t0}, s{S_TAG}, v{regs[0]}")
    rest=regs[1:]
    i=0
    while i<len(rest):
        a(f"v_xor_b32 v{t1}, s{S_TAG}, v{rest[i]}")
        if i+1<len(rest):
            a(f"v_xor_b32 v{t2}, s{S_TAG}, v{rest[i+1]}\nv_or3_b32 v{t0}, v{t0}, v{t1}, v{t2}"); i+=2
        else:
            a(f"v_or_b32 v{t0}, v{t0}, v{t1}"); i+=1
    a(f"""v_cmp_ne_u32 vcc, 0, v{t0}
s_cbranch_vccz {lab_ok}
s_sub_u32 s99, s99, 1
s_cmp_eq_u32 s99, 0
s_cbranch_scc1 {lab_ok}
s_sleep {PSL}
s_branch {lab_retry}
{lab_ok}:""")

def h_build(a):
    a(f"""s_mov_b32 s99, {SPIN}
v_lshrrev_b32 v2, 2, v1                 ; l>>2
s_lshl_b32 s29, s28, 6
v_add_u32 v2, s29, v2
v_and_b32 v3, 3, v1                     ; q
v_lshlrev_b32 v4, 13, v2
v_lshlrev_b32 v5, 3, v3
v_add_u32 v4, v4, v5                    ; tb*8192 + 8q
v_lshlrev_b32 v5, 4, v3
s_lshl_b32 s33, s{S_P}, 5
s_add_u32 s33, s33, {OFF_XT}
v_lshlrev_b32 v6, 6, v2
v_add_u32 v6, v6, v5                    ; tb*64 + 16q
v_and_b32 v7, 15, v1
v_mul_u32_u24 v7, {3072*8}, v7          ; rb
v_lshrrev_b32 v8, 4, v1
v_lshlrev_b32 v9, 12, v8
v_add_u32 v70, v7, v9                   ; groups 2..5
v_and_b32 v9, 0x1000, v9
v_add_u32 v7, v7, v9                    ; groups 0,1
s_lshl_b32 s31, s{S_P}, 4
s_add_u32 s31, s31, {OFF_MODP}
s_add_u32 s30, s31, {2*4096}""")
    lr=a.lab("L_pollx"); ok=a.lab("L_okx"); lf1=a.lab("L_nof1w")
    a("s_waitcnt vmcnt(8)" if 'gather' in EXP else "s_waitcnt vmcnt(0)")
    stamp(a,40)
    a("v_mov_b32 v71, v7\nv_mov_b32 v72, v8\nv_mov_b32 v73, v9\nv_mov_b32 v74, v2\nv_mov_b32 v75, v3\ns_mov_b32 s96, s30")
    last_arriver(a,E_W2,4,lf1)
    store_flag(a,OFF_F1W)
    a(f"{lf1}:")
    a("v_mov_b32 v7, v71\nv_mov_b32 v8, v72\nv_mov_b32 v9, v73\nv_mov_b32 v2, v74\nv_mov_b32 v3, v75\ns_mov_b32 s30, s96")
    if 'xsl' in EXP: a(f"s_sleep {os.environ.get('XSL','8')}")
    a(f"{lr}:")
    a(f"s_mov_b32 s32, {OFF_STAT}")
    for i in range(4):
        a(f"buffer_load_dwordx4 v[{26+4*i}:{29+4*i}], v6, s[{SRD_WS}:{SRD_WS+3}], s32 offen offset:{1024*i} sc1")
    a(f"""buffer_load_dwordx4 v[42:45], v7, s[{SRD_WS}:{SRD_WS+3}], s31 offen sc1
buffer_load_dwordx4 v[128:131], v70, s[{SRD_WS}:{SRD_WS+3}], s30 offen sc1
s_waitcnt vmcnt(0)""")
    tagcheck(a,[27+2*k for k in range(10)]+[129,131],ok,lr)
    stamp(a,6)
    if STAMPS: a("v_writelane_b32 v254, s99, 41")
    if 'gather' not in EXP:
        a("s_mov_b32 s32, s33")
        for i in range(4):
            a(f"buffer_load_dwordx2 v[{10+2*i}:{11+2*i}], v4, s[{SRD_WS}:{SRD_WS+3}], s32 offen{BS}")
            if i<3: a(f"s_add_u32 s32, s32, {16*8192}")
    side_compute(a)
    stamp(a,42)
    for l in dpp_reduce_rows([42,44]): a(l)
    a(f"""v_cvt_pk_bf16_f32 v46, v42, v44
s_nop 0
v_readlane_b32 s74, v46, 15
v_readlane_b32 s75, v46, 31
s_lshl_b32 s76, s74, 16
s_and_b32 s77, s74, 0xffff0000
v_mov_b32 v54, s76
v_mov_b32 v55, s77
s_lshl_b32 s76, s75, 16
s_and_b32 s77, s75, 0xffff0000
v_add_f32 v46, s76, 1.0
v_add_f32 v48, s77, 1.0
v_cvt_pk_bf16_f32 v50, v46, v48
v_lshlrev_b32 v52, 16, v50
v_and_b32 v53, 0xffff0000, v50          ; c1 pair v[52:53]
v_and_b32 v8, 3, v2
v_mul_u32_u24 v8, {PL}, v8
v_lshrrev_b32 v9, 2, v2
v_lshlrev_b32 v9, 4, v9
v_lshlrev_b32 v5, 2, v3
v_add3_u32 v8, v8, v9, v5
v_add_u32 v8, {L_HP+512}, v8
v_lshlrev_b32 v9, 4, v2
v_add_u32 v9, v9, v5                    ; tb*16 + 4q
v_add_u32 v9, {L_XP}, v9
s_mov_b32 s74, 0x05040100
s_mov_b32 s75, 0x07060302""")
    for i in range(4):
        X0=10+2*i; X1=X0+1; S0=26+4*i; S1=S0+2
        if i==0:
            lq=a.lab("L_xq"); lq2=a.lab("L_xq2")
            if 'gather' not in EXP: a(f"s_cmp_eq_u32 s28, 0\ns_cbranch_scc1 {lq}\ns_waitcnt vmcnt(2)\ns_branch {lq2}\n{lq}:\ns_waitcnt vmcnt(4)\n{lq2}:")
            stamp(a,43)
        a(f"""v_lshlrev_b32 v56, 16, v{S0}
v_and_b32 v57, 0xffff0000, v{S0}
v_lshlrev_b32 v58, 16, v{S1}
v_and_b32 v59, 0xffff0000, v{S1}
v_rcp_f32 v57, v57
v_rcp_f32 v59, v59
v_lshlrev_b32 v60, 16, v{X0}
v_and_b32 v61, 0xffff0000, v{X0}
v_lshlrev_b32 v62, 16, v{X1}
v_and_b32 v63, 0xffff0000, v{X1}
v_pk_add_f32 v[60:61], v[60:61], v[56:57] op_sel_hi:[1,0] neg_lo:[0,1] neg_hi:[0,1]
v_pk_add_f32 v[62:63], v[62:63], v[58:59] op_sel_hi:[1,0] neg_lo:[0,1] neg_hi:[0,1]
v_pk_mul_f32 v[60:61], v[60:61], v[56:57] op_sel:[0,1] op_sel_hi:[1,1]
v_pk_mul_f32 v[62:63], v[62:63], v[58:59] op_sel:[0,1] op_sel_hi:[1,1]
v_pk_fma_f32 v[60:61], v[60:61], v[52:53], v[54:55]
v_pk_fma_f32 v[62:63], v[62:63], v[52:53], v[54:55]
v_perm_b32 v66, v{X1}, v{X0}, s74
v_perm_b32 v67, v{X1}, v{X0}, s75
v_cvt_pk_bf16_f32 v64, v60, v62
v_cvt_pk_bf16_f32 v65, v61, v63
ds_write_b32 v8, v64 offset:{64*i}
ds_write_b32 v8, v65 offset:{HCH+64*i}
ds_write_b32 v9, v66 offset:{256*i}
ds_write_b32 v9, v67 offset:{4096+256*i}""")
    a("s_waitcnt lgkmcnt(0)")
    if 'noprio' not in EXP: a("s_setprio 0")
    stamp(a,44)
    a("s_barrier")
    stamp(a,7)


def m_conv(a):
    a(f"""s_lshr_b32 s28, s{S_WAVE}, 1          ; ch
s_and_b32 s29, s{S_WAVE}, 1             ; m half
v_and_b32 v2, 31, v1                    ; i / a'
v_lshrrev_b32 v3, 5, v1                 ; hi
v_sub_u32 v4, 3, v2
v_and_b32 v4, 3, v4                     ; s = (3-i)&3
v_mul_u32_u24 v5, {CS}, v4
v_lshlrev_b32 v6, 3, v3                 ; 8hi
v_sub_u32 v6, v6, v2
v_sub_u32 v6, v6, v4
v_add_u32 v6, 2047, v6                  ; 2047 - i + 8hi - s
v_lshlrev_b32 v6, 1, v6
s_mul_i32 s30, s28, {KCH}
s_mul_i32 s31, s29, {32*32}
s_sub_u32 s30, s30, s31
s_add_u32 s30, s30, {L_KC+16+32-32*31-2048}
v_add3_u32 v10, v5, v6, s30             ; A base
v_mul_u32_u24 v5, {PL}, v3
v_lshlrev_b32 v6, 4, v2
s_mul_i32 s30, s28, {HCH}
s_lshl_b32 s31, s29, 8                  ; 16 entries * 16B
s_sub_u32 s30, s30, s31
s_add_u32 s30, s30, {L_HP+(32-15)*16}
v_add3_u32 v11, v5, v6, s30             ; B base""")
    a(f"""s_lshl_b32 s34, s{S_P}, 2
v_mov_b32 v137, s34
global_load_dword v136, v137, s[{P_DSK}:{P_DSK+1}]""")
    NB=3; FB=48
    def reads(it):
        b=FB+16*(it%NB)
        oa=32*(31-it)
        ob=(15-it//2)*16+(2*PL if it%2==0 else 0)
        return [f"ds_read_b64 v[{b}:{b+1}], v10 offset:{oa+2048}",
                f"ds_read_b64 v[{b+2}:{b+3}], v10 offset:{oa+2048+8}",
                f"ds_read_b128 v[{b+8}:{b+11}], v11 offset:{ob}",
                f"ds_read_b128 v[{b+12}:{b+15}], v11 offset:{ob+512}",
                f"ds_read_b64 v[{b+4}:{b+5}], v10 offset:{oa}",
                f"ds_read_b64 v[{b+6}:{b+7}], v10 offset:{oa+8}"]
    A0=16; A1=32
    if 'cprio' in EXP: a("s_setprio 2")
    for l in reads(0)+reads(1): a(l)
    for it in range(32):
        b=FB+16*(it%NB)
        nxt=reads(it+2) if it+2<32 else []
        c0="0" if it==0 else f"v[{A0}:{A0+15}]"
        c1="0" if it==0 else f"v[{A1}:{A1+15}]"
        m0=f"v_mfma_f32_32x32x16_bf16 v[{A0}:{A0+15}], v[{b}:{b+3}], v[{b+8}:{b+11}], {c0}"
        m1=f"v_mfma_f32_32x32x16_bf16 v[{A1}:{A1+15}], v[{b}:{b+3}], v[{b+12}:{b+15}], {c1}"
        m2=f"v_mfma_f32_32x32x16_bf16 v[{A1}:{A1+15}], v[{b+4}:{b+7}], v[{b+8}:{b+11}], v[{A1}:{A1+15}]"
        rem = 6 if it+1<32 else 0
        a(f"s_waitcnt lgkmcnt({rem})")
        if 'cord1' in EXP:
            a(m1)
            for l in nxt[:2]: a(l)
            a(m0)
            for l in nxt[2:4]: a(l)
            a(m2)
            for l in nxt[4:]: a(l)
        elif 'cord2' in EXP:
            a(m0); a(m1)
            for l in nxt[:3]: a(l)
            a(m2)
            for l in nxt[3:]: a(l)
        else:
            a(m0)
            for l in nxt[:2]: a(l)
            a(m1)
            for l in nxt[2:4]: a(l)
            a(m2)
            for l in nxt[4:]: a(l)
    if 'cprio' in EXP: a("s_setprio 0")
    a(f"""v_mul_u32_u24 v4, 144, v2
v_lshlrev_b32 v5, 4, v3
s_mul_i32 s30, s{S_WAVE}, {YW}
s_add_u32 s30, s30, {L_Y}
v_add3_u32 v4, v4, v5, s30""")
    for g in range(4): a(f"ds_write_b128 v4, v[{A0+4*g}:{A0+4*g+3}] offset:{32*g}")
    for g in range(4): a(f"ds_write_b128 v4, v[{A1+4*g}:{A1+4*g+3}] offset:{4608+32*g}")
    stamp(a,8)
    ev_add(a,E_Y)
    ev_wait(a,E_Y,4)
    ev_wait(a,E_GA,1)
    stamp(a,9)

def poll16(a, dst, soff_expr_sgpr, lab):
    lr=a.lab(lab+"r"); ok=a.lab(lab+"k")
    a(f"""{lr}:
buffer_load_dwordx4 v[{dst}:{dst+3}], v249, s[{SRD_WS}:{SRD_WS+3}], {soff_expr_sgpr} offen sc1
s_waitcnt vmcnt(0)""")
    tagcheck(a,[dst+1,dst+3],ok,lr)

def w1_loads(a):
    srd(a,SRD_A,P_W1,512*2752)
    a(f"""s_lshr_b32 s29, s28, 1
s_lshl_b32 s30, s{S_P}, 1
s_add_u32 s30, s30, s29                 ; d
s_mul_i32 s31, s30, 2752
s_and_b32 s32, s28, 1
s_mul_i32 s32, s32, {86*16}
s_add_u32 s31, s31, s32
v_lshlrev_b32 v68, 4, v1
buffer_load_dwordx4 v[160:163], v68, s[{SRD_A}:{SRD_A+3}], s31 offen
buffer_load_dwordx4 v[164:167], v68, s[{SRD_A}:{SRD_A+3}], s31 offen offset:1024""")

def w2_loads(a):
    srd(a,SRD_C,P_W2,1376*1024)
    a(f"""s_lshl_b32 s74, s28, 8
s_add_u32 s74, s74, s2                  ; g
s_mul_hi_u32 s75, s74, {(2**32+85)//86} ; dtile
s_mul_i32 s76, s75, 86
s_sub_u32 s76, s74, s76                 ; ks
s_lshl_b32 s76, s76, 14
s_lshl_b32 s75, s75, 6
s_add_u32 s76, s76, s75
v_lshrrev_b32 v69, 2, v1
v_lshlrev_b32 v69, 10, v69
v_and_b32 v70, 3, v1
v_lshlrev_b32 v70, 4, v70
v_add_u32 v69, v69, v70
buffer_load_dwordx4 v[168:171], v69, s[{SRD_C}:{SRD_C+3}], s76 offen
s_add_u32 s74, s74, 1024                ; g2
s_mul_hi_u32 s75, s74, {(2**32+85)//86}
s_mul_i32 s76, s75, 86
s_sub_u32 s76, s74, s76
s_lshl_b32 s76, s76, 14
s_lshl_b32 s75, s75, 6
s_add_u32 s76, s76, s75
buffer_load_dwordx4 v[172:175], v69, s[{SRD_C}:{SRD_C+3}], s76 offen""")

def w2_prep(a):
    a(f"""s_sub_u32 s28, s{S_WAVE}, 4
s_lshl_b32 s33, s28, 8
s_add_u32 s33, s33, s2                  ; g
s_lshl_b32 s34, s28, 10
s_add_u32 s34, s34, {L_W2S}
v_lshlrev_b32 v4, 4, v1
v_add_u32 v4, s34, v4                   ; staging write addr
v_lshrrev_b32 v7, 5, v1                 ; hi
v_lshlrev_b32 v7, 2, v7
v_bfe_u32 v8, v1, 2, 2                  ; r
v_add_u32 v7, v7, v8
v_lshlrev_b32 v7, 6, v7                 ; (4hi+r)*64
v_bfe_u32 v8, v1, 4, 1                  ; nh
v_lshlrev_b32 v8, 5, v8
v_and_b32 v9, 3, v1
v_lshlrev_b32 v9, 3, v9
v_add3_u32 v7, v7, v8, v9
v_add_u32 v7, s34, v7
v_lshlrev_b32 v8, 4, v1
s_lshl_b32 s35, s33, 10
s_add_u32 s35, s35, {OFF_W2F}
ds_write_b128 v4, v[168:171]
s_waitcnt lgkmcnt(0)
ds_read_b64_tr_b16 v[28:29], v7
ds_read_b64_tr_b16 v[30:31], v7 offset:512
s_waitcnt lgkmcnt(0)
buffer_store_dwordx4 v[28:31], v8, s[{SRD_WS}:{SRD_WS+3}], s35 offen sc1""")
    l2=a.lab("L_now2")
    a(f"""s_add_u32 s74, s33, 1024
s_cmp_ge_u32 s74, 1376
s_cbranch_scc1 {l2}
s_add_u32 s35, s35, {1024*1024}
ds_write_b128 v4, v[172:175]
s_waitcnt lgkmcnt(0)
ds_read_b64_tr_b16 v[32:33], v7
ds_read_b64_tr_b16 v[34:35], v7 offset:512
s_waitcnt lgkmcnt(0)
buffer_store_dwordx4 v[32:35], v8, s[{SRD_WS}:{SRD_WS+3}], s35 offen sc1
{l2}:""")

def ev_add(a, off, t=(7,8)):
    a(f"""v_mov_b32 v{t[0]}, 1
v_mov_b32 v{t[1]}, {L_CNT+off}
s_waitcnt lgkmcnt(0)
s_mov_b64 exec, 1
ds_add_u32 v{t[1]}, v{t[0]}
s_mov_b64 exec, -1""")

def ev_wait(a, off, val, t=(8,9), slp=1):
    ls=a.lab("L_evs"); lk=a.lab("L_evk")
    a(f"""v_mov_b32 v{t[0]}, {L_CNT+off}
s_mov_b32 s99, {SPIN*8}
{ls}:
ds_read_b32 v{t[1]}, v{t[0]}
s_waitcnt lgkmcnt(0)
v_readfirstlane_b32 s79, v{t[1]}
s_cmp_ge_u32 s79, {val}
s_cbranch_scc1 {lk}
s_sub_u32 s99, s99, 1
s_cmp_eq_u32 s99, 0
s_cbranch_scc1 {lk}
{"s_sleep 1" if slp else "s_nop 0"}
s_branch {ls}
{lk}:""")

def last_arriver(a, cnt_off, n, lab_not_last):
    a(f"""v_mov_b32 v7, 1
v_mov_b32 v8, {L_CNT+cnt_off}
s_waitcnt lgkmcnt(0)
s_mov_b64 exec, 1
ds_add_rtn_u32 v9, v8, v7
s_mov_b64 exec, -1
s_waitcnt lgkmcnt(0)
v_readfirstlane_b32 s30, v9
s_cmp_eq_u32 s30, {n-1}
s_cbranch_scc0 {lab_not_last}""")

def store_flag(a, off):
    a(f"""s_lshl_b32 s30, s2, 4
s_add_u32 s30, s30, {off}
v_mov_b32 v2, s{S_TAG}
v_mov_b32 v3, 0
s_mov_b64 exec, 1
buffer_store_dword v2, v3, s[{SRD_WS}:{SRD_WS+3}], s30 offen sc1
s_mov_b64 exec, -1""")

def poll_flags256(a, off, lab):
    lr=a.lab(lab+"r"); ok=a.lab(lab+"k")
    a(f"""v_lshlrev_b32 v2, 4, v1
s_mov_b32 s31, {off}
{lr}:""")
    for i in range(4): a(f"buffer_load_dword v{10+i}, v2, s[{SRD_WS}:{SRD_WS+3}], s31 offen offset:{1024*i} sc1")
    a("s_waitcnt vmcnt(0)")
    tagcheck(a,[10,11,12,13],ok,lr)

def side_compute(a):
    for l in dpp_reduce_rows([128,130]): a(l)
    a(f"""v_cvt_pk_bf16_f32 v206, v128, v130
s_nop 0
v_readlane_b32 s74, v206, 15
v_readlane_b32 s75, v206, 31
v_readlane_b32 s76, v206, 47
v_readlane_b32 s77, v206, 63
s_lshl_b32 s32, s76, 16
s_and_b32 s33, s76, 0xffff0000
v_add_f32 v180, s32, 1.0
v_add_f32 v181, s33, 1.0
v_cvt_pk_bf16_f32 v182, v180, v181
v_lshlrev_b32 v180, 16, v182
v_and_b32 v181, 0xffff0000, v182          ; c1 pair
v_mov_b32 v183, 0x21800000               ; 2^-60 stands in for an exact zero scale
v_cmp_eq_f32 vcc, 0, v180
v_cndmask_b32 v180, v180, v183, vcc
v_cmp_eq_f32 vcc, 0, v181
v_cndmask_b32 v181, v181, v183, vcc
s_lshr_b32 s29, s28, 1
s_cmp_eq_u32 s29, 0
s_cselect_b64 s[32:33], -1, 0
v_cndmask_b32 v186, v181, v180, s[32:33]""")
    for h in range(2):
        for k in range(4):
            r=160+4*h+k
            a(f"""v_lshlrev_b32 v190, 16, v{r}
v_and_b32 v191, 0xffff0000, v{r}
v_mul_f32 v190, v190, v186
v_mul_f32 v191, v191, v186
v_cvt_pk_bf16_f32 v{r}, v190, v191""")
    a(f"""s_lshl_b32 s30, s{S_P}, 1
s_add_u32 s30, s30, s29
s_mul_i32 s31, s30, 192
s_add_u32 s31, s31, {OFF_W1P}
s_and_b32 s32, s28, 1
s_mul_i32 s32, s32, 86
v_add_u32 v210, s32, v1
v_add_u32 v215, 64, v210""")
    for r in (210,215):
        a(f"""v_mul_u32_u24 v216, 5462, v{r}
v_lshrrev_b32 v216, 16, v216            ; c/12
v_mul_u32_u24 v217, 12, v216
v_sub_u32 v217, v{r}, v217
v_mul_u32_u24 v216, 98304, v216
v_lshlrev_b32 v217, 4, v217
v_add_u32 v{r}, v216, v217""")
    a(f"""buffer_store_dwordx4 v[160:163], v210, s[{SRD_WS}:{SRD_WS+3}], s31 offen sc1
s_mov_b64 exec, 0x3fffff
buffer_store_dwordx4 v[164:167], v215, s[{SRD_WS}:{SRD_WS+3}], s31 offen sc1
s_mov_b64 exec, -1""")
    lw=a.lab("L_notw4")
    a(f"""s_cmp_lg_u32 s28, 0
s_cbranch_scc1 {lw}
s_lshl_b32 s32, s75, 16
s_and_b32 s33, s75, 0xffff0000
v_rcp_f32 v184, v180
v_rcp_f32 v185, v181
v_mov_b32 v187, s32
v_mov_b32 v188, s33
v_mul_f32 v189, v187, v184
v_mul_f32 v190, v188, v185
v_fma_f32 v191, -v189, v180, v187
v_fma_f32 v192, -v190, v181, v188
v_fmac_f32 v189, v191, v184
v_fmac_f32 v190, v192, v185
v_cvt_pk_bf16_f32 v193, v189, v190
v_lshlrev_b32 v191, 16, v193
v_and_b32 v192, 0xffff0000, v193
v_sub_f32 v189, v189, v191
v_sub_f32 v190, v190, v192
v_cvt_pk_bf16_f32 v194, v189, v190
s_mov_b32 s32, 0x05040100
s_mov_b32 s33, 0x07060302
v_perm_b32 v196, v194, v193, s32
v_perm_b32 v197, v194, v193, s33           ; ch1
s_lshl_b32 s32, s77, 16
s_and_b32 s33, s77, 0xffff0000
v_mov_b32 v198, s32
v_mov_b32 v199, s33
s_lshl_b32 s32, s74, 16
s_and_b32 s33, s74, 0xffff0000
v_mov_b32 v200, s32
v_mov_b32 v201, s33
v_mov_b32 v211, 0
v_mov_b32 v212, {L_GA}
s_lshl_b32 s30, s{S_P}, 3
s_add_u32 s31, s30, {OFF_FING}
s_add_u32 s30, s30, {OFF_FINS}
s_mov_b64 exec, 1
buffer_store_dwordx2 v[196:197], v211, s[{SRD_WS}:{SRD_WS+3}], s30 offen sc1
buffer_store_dwordx2 v[198:199], v211, s[{SRD_WS}:{SRD_WS+3}], s31 offen sc1
ds_write_b64 v212, v[200:201]
s_mov_b64 exec, -1""")
    ev_add(a,E_GA,t=(213,214))
    a(f"{lw}:")

def h_side(a):
    lnf=a.lab("L_nof2w")
    a("s_waitcnt vmcnt(0)")
    last_arriver(a,E_SIDE,4,lnf)
    store_flag(a,OFF_F2W)
    a(f"{lnf}:")
    stamp(a,8)

def w1_stream(a,g0,g1):
    a(f"""v_lshlrev_b32 v10, 4, v1
s_sub_u32 s74, s30, 1
s_lshl_b32 s74, s74, 10
s_add_u32 s33, s74, {g0*3072}
s_mul_i32 s31, s29, 98304
s_add_u32 s31, s31, {OFF_W1P}
s_add_u32 s31, s31, s33""")
    for g in range(g0,g1):
        a(f"""s_mov_b32 m0, s33
buffer_load_dwordx4 v10, s[{SRD_WS}:{SRD_WS+3}], s31 offen{BS} lds""")
        if g<g1-1: a(f"s_add_u32 s31, s31, 3072\ns_add_u32 s33, s33, 3072")

def m_epilogue(a):
    a(f"""v_and_b32 v2, 255, v0                   ; tb
v_lshrrev_b32 v3, 2, v2                 ; a
v_and_b32 v4, 3, v2
v_mul_u32_u24 v5, 144, v3
v_lshlrev_b32 v6, 5, v4
v_add3_u32 v5, v5, v6, s78              ; placeholder""".replace("v_add3_u32 v5, v5, v6, s78              ; placeholder",f"v_add_u32 v5, v5, v6\nv_add_u32 v5, {L_Y}, v5"))
    a(f"""v_mul_u32_u24 v6, {PL}, v4
v_lshlrev_b32 v7, 4, v3
v_add_u32 v6, v6, v7
v_add_u32 v6, {L_HP+512}, v6            ; h addr
v_lshlrev_b32 v7, 4, v2
v_add_u32 v8, {L_XP}, v7                ; x addr""")
    for ch in range(2):
        b=80+24*ch
        a(f"""ds_read_b128 v[{b}:{b+3}], v5 offset:{2*ch*YW}
ds_read_b128 v[{b+4}:{b+7}], v5 offset:{2*ch*YW+16}
ds_read_b128 v[{b+8}:{b+11}], v5 offset:{(2*ch+1)*YW}
ds_read_b128 v[{b+12}:{b+15}], v5 offset:{(2*ch+1)*YW+16}
ds_read_b128 v[{b+16}:{b+19}], v6 offset:{ch*HCH}
ds_read_b128 v[{b+20}:{b+23}], v8 offset:{ch*4096}""")
    a(f"""v_mov_b32 v9, {L_GA}
ds_read_b64 v[132:133], v9
s_waitcnt vmcnt(0)""")
    a(f"""v_lshlrev_b32 v138, 16, v136
v_and_b32 v139, 0xffff0000, v136""")
    for ch in range(2):
        b=80+24*ch; ga=132+ch; dk=138+ch
        a(f"s_waitcnt lgkmcnt({7 if ch==0 else 0})" if False else ("s_waitcnt lgkmcnt(0)" if ch==0 else "s_nop 0"))
        for k in range(4):
            y=b+2*k
            a(f"""v_add_f32 v{y}, v{y}, v{y+8}
v_add_f32 v{y+1}, v{y+1}, v{y+9}
v_lshlrev_b32 v140, 16, v{b+16+k}
v_and_b32 v141, 0xffff0000, v{b+16+k}
v_lshlrev_b32 v142, 16, v{b+20+k}
v_and_b32 v143, 0xffff0000, v{b+20+k}
v_fmac_f32 v{y}, v140, v{dk}
v_fmac_f32 v{y+1}, v141, v{dk}
v_fma_f32 v{y}, v{y}, v{ga}, v142
v_fma_f32 v{y+1}, v{y+1}, v{ga}, v143
v_cvt_pk_bf16_f32 v{144+4*ch+k}, v{y}, v{y+1}""")
        a(f"""s_lshl_b32 s30, s{S_P}, 13
s_add_u32 s30, s30, {OFF_X2T+4096*ch}
buffer_store_dwordx4 v[{144+4*ch}:{147+4*ch}], v7, s[{SRD_WS}:{SRD_WS+3}], s30 offen sc1""")
    ev_add(a,E_STI)
    stamp(a,10)
    a("s_waitcnt vmcnt(0)")
    stamp(a,11)
    lnf=a.lab("L_nof2")
    last_arriver(a,E_EPI,4,lnf)
    store_flag(a,OFF_F2)
    a(f"{lnf}:")
    stamp(a,12)

L_W1=0
L_RING=98304
NSLOT=6
L_ST=L_STV
def poll_flags(a, off, nflag_regs, lab):
    pass

def p3_common(a):
    a(f"""s_and_b32 s28, s{S_IDX}, 3
s_and_b32 s29, s{S_XCD}, 3
s_lshl_b32 s29, s29, 2
s_add_u32 s28, s28, s29
s_lshr_b32 s29, s{S_IDX}, 2
s_lshr_b32 s79, s{S_XCD}, 2
s_lshl_b32 s79, s79, 3
s_add_u32 s29, s29, s79""")

def st_columns(a):
    lst=a.lab("L_nost")
    a(f"""s_cmp_eq_u32 s29, 15
s_cbranch_scc1 {lst}
s_sub_u32 s74, s30, 1                   ; ft
v_lshrrev_b32 v2, 5, v1                 ; hi
v_bfe_u32 v3, v1, 2, 2                  ; r
v_bfe_u32 v4, v1, 4, 1                  ; nh
v_and_b32 v5, 3, v1                     ; c
v_lshlrev_b32 v6, 3, v2
v_add_u32 v6, v6, v3                    ; 8hi + r
v_lshlrev_b32 v7, 5, v4
v_lshlrev_b32 v8, 3, v5
v_add_u32 v7, v7, v8
v_mul_u32_u24 v10, 192, v6
v_add_u32 v10, v10, v7
s_lshl_b32 s75, s74, 6
v_add_u32 v72, s75, v10                 ; A address, k-steps 0..15
v_add_u32 v73, {16*3072}, v72
v_and_b32 v13, 31, v1                   ; n
v_min_u32 v14, 3, v13
v_lshlrev_b32 v14, 10, v14
v_lshlrev_b32 v15, 4, v2
v_add_u32 v14, v14, v15
v_add_u32 v14, {L_PB}, v14
v_cmp_eq_u32 vcc, 1, v13
s_waitcnt vmcnt(0)""")
    for r in range(16):
        g=r>>2;k=r&3; src=64+2*g+(k>>1)
        a(f"v_lshlrev_b32 v74, 16, v{src}" if k%2==0 else f"v_and_b32 v74, 0xffff0000, v{src}")
        a(f"v_cndmask_b32 v{16+r}, 0, v74, vcc")
    ev_wait(a,E_W1,3,t=(76,77))
    ev_wait(a,E_PB,1,t=(76,77))
    def rd(ks):
        b=80+8*(ks%4); av=72 if ks<16 else 73; ko=(ks%16)*3072
        return [f"ds_read_b64_tr_b16 v[{b}:{b+1}], v{av} offset:{ko}", f"ds_read_b64_tr_b16 v[{b+2}:{b+3}], v{av} offset:{ko+768}",
                f"ds_read_b128 v[{b+4}:{b+7}], v14 offset:{32*ks}"]
    for k in range(3):
        for l in rd(k): a(l)
    for ks in range(32):
        b=80+8*(ks%4)
        if ks+3<32:
            for l in rd(ks+3): a(l)
        a(f"s_waitcnt lgkmcnt({3*min(3,31-ks)})")
        a(f"v_mfma_f32_32x32x16_bf16 v[16:31], v[{b}:{b+3}], v[{b+4}:{b+7}], v[16:31]")
    for r in range(16): a(f"v_mov_b32_dpp v{32+r}, v{16+r} row_shl:1 row_mask:0xf bank_mask:0xf bound_ctrl:1")
    for r in range(16): a(f"v_add_f32 v{32+r}, v{32+r}, v{16+r}")
    a(f"""v_lshlrev_b32 v75, 4, v2
s_lshl_b32 s75, s74, 7
v_add_u32 v75, s75, v75
v_add_u32 v75, {L_ST}, v75
s_mov_b32 exec_lo, 1
s_mov_b32 exec_hi, 1""")
    for g in range(4): a(f"ds_write_b128 v75, v[{16+4*g}:{19+4*g}] offset:{32*g}")
    a("s_mov_b32 exec_lo, 2\ns_mov_b32 exec_hi, 2")
    for g in range(4): a(f"ds_write_b128 v75, v[{32+4*g}:{35+4*g}] offset:{384+32*g}")
    a(f"s_mov_b64 exec, -1\ns_waitcnt lgkmcnt(0)\n{lst}:")

def h_p3(a):
    p3_common(a)
    a(f"""s_mov_b32 s99, {SPIN}
s_sub_u32 s30, s{S_WAVE}, 4             ; hw""")
    lw=a.lab("L_h3w567"); lj=a.lab("L_h3join"); lidle=a.lab("L_h3idle"); lidle2=a.lab("L_h3idle2"); lgo=a.lab("L_h3go")
    a(f"""v_lshrrev_b32 v2, 4, v1                 ; rho
v_and_b32 v3, 15, v1                    ; kappa
v_lshlrev_b32 v4, 2, v2
v_xor_b32 v3, v3, v4                    ; kappa'
v_lshlrev_b32 v3, 4, v3
v_lshlrev_b32 v2, 12, v2                ; rho*4096
v_add_u32 v120, v2, v3
v_add_u32 v121, {4*4096}, v120
s_lshl_b32 s95, s28, 8
s_add_u32 s95, s95, {OFF_X2T}
s_lshl_b32 s32, s30, 15                 ; 8 rows * 4096
s_add_u32 s95, s95, s32
s_lshl_b32 s96, s30, 11                 ; 8 rows * 256B
s_add_u32 s96, s96, {L_RING}""")
    a(f"""s_cmp_lg_u32 s30, 0
s_cbranch_scc1 {lw}""")
    poll_flags256(a,OFF_F1W,"L_f1w")
    NPF0=int(os.environ.get('NPF0','6'))
    a(f"""s_mul_i32 s74, s{S_IDX}, {352*128}
s_add_u32 s74, s74, {OFF_W2F}
v_lshlrev_b32 v15, 7, v1
s_mov_b32 s75, {NPF0}""")
    for i in range(NPF0):
        a(f"buffer_load_dword v14, v15, s[{SRD_WS}:{SRD_WS+3}], s74 offen{BS}\ns_add_u32 s74, s74, 8192")
    a(f"s_mov_b32 s99, {SPIN}")
    poll_flags256(a,OFF_F2W,"L_f2w")
    stamp(a,18)
    a(f"""v_lshlrev_b32 v5, 5, v1
s_mov_b32 s34, {OFF_FINS}
buffer_load_dwordx4 v[20:23], v5, s[{SRD_WS}:{SRD_WS+3}], s34 offen{BS}
buffer_load_dwordx4 v[24:27], v5, s[{SRD_WS}:{SRD_WS+3}], s34 offen offset:16{BS}""")
    ev_add(a,E_F2W)
    stamp(a,19)
    a(f"""s_mov_b32 s32, 0x05040100
s_mov_b32 s33, 0x07060302
v_mov_b32 v36, 0x3f803f80
v_mov_b32 v37, 0x3f803f80
v_mov_b32 v38, 0x3f803f80
v_mov_b32 v39, 0x3f803f80
v_mov_b32 v40, 0
v_mov_b32 v41, 0
v_mov_b32 v42, 0
v_mov_b32 v43, 0
v_lshlrev_b32 v5, 4, v1
v_add_u32 v5, {L_PB}, v5
s_waitcnt vmcnt(0)""")
    for k in range(4):
        a(f"v_perm_b32 v{28+k}, v{21+2*k}, v{20+2*k}, s32")
        a(f"v_perm_b32 v{32+k}, v{21+2*k}, v{20+2*k}, s33")
    a(f"""ds_write_b128 v5, v[36:39]
ds_write_b128 v5, v[28:31] offset:1024
ds_write_b128 v5, v[32:35] offset:2048
ds_write_b128 v5, v[40:43] offset:3072""")
    ev_add(a,E_PB)
    ev_wait(a,E_WE,4)
    stamp(a,33)
    lq=a.lab("L_pfrest"); lqe=a.lab("L_pfdone")
    a(f"""{lq}:
s_cmp_ge_u32 s75, {int(os.environ.get('NPF1','5'))}
s_cbranch_scc1 {lqe}
buffer_load_dword v14, v15, s[{SRD_WS}:{SRD_WS+3}], s74 offen{BS}
s_add_u32 s74, s74, 8192
s_add_u32 s75, s75, 1
s_branch {lq}
{lqe}:
s_mov_b32 s99, {SPIN}""")
    ev_wait(a,E_EPI,4)
    stamp(a,34)
    a(f"s_mov_b32 s99, {SPIN}")
    poll_flags256(a,OFF_F2,"L_f2")
    a(f"""v_mov_b32 v7, 1
v_mov_b32 v8, {L_CNT+E_F2}
s_mov_b64 exec, 1
ds_write_b32 v8, v7
s_mov_b64 exec, -1""")
    stamp(a,35)
    a(f"s_cmp_eq_u32 s29, 15\ns_cbranch_scc1 {lidle}\ns_branch {lgo}")
    a(f"{lw}:")
    a(f"s_cmp_eq_u32 s29, 15\ns_cbranch_scc1 {lidle2}")
    srd(a,SRD_A,P_B1,2752)
    a(f"""s_mul_i32 s74, s29, 192
s_sub_u32 s75, s30, 1
s_lshl_b32 s75, s75, 6
s_add_u32 s74, s74, s75
v_lshrrev_b32 v13, 5, v1
v_lshlrev_b32 v13, 3, v13""")
    for g in range(4): a(f"buffer_load_dwordx2 v[{64+2*g}:{65+2*g}], v13, s[{SRD_A}:{SRD_A+3}], s74 offen offset:{16*g}")
    ev_wait(a,E_F2W,1)
    stamp(a,30)
    w1_stream(a,12,32)
    ev_wait(a,E_STI,4)
    stamp(a,31)
    w1_stream(a,0,12)
    a(f"{lidle2}:")
    stamp(a,16)
    a("s_waitcnt vmcnt(0)")
    stamp(a,32)
    ev_add(a,E_W1)
    st_columns(a)
    stamp(a,33)
    a(f"{lj}:")
    a(f"s_cmp_eq_u32 s29, 15\ns_cbranch_scc1 {lidle}")
    ev_wait(a,E_EPI,4)
    ev_wait(a,E_F2,1,slp=0)
    a(f"{lgo}:")
    stamp(a,13)
    def issue(s):
        if 'nodma3' in EXP: return
        a(f"""s_add_u32 m0, s96, {(s%NSLOT)*8192}
s_add_u32 s34, s29, {s}
s_and_b32 s34, s34, 15
s_lshl_b32 s34, s34, 17
s_add_u32 s34, s34, s95
buffer_load_dwordx4 v120, s[{SRD_WS}:{SRD_WS+3}], s34 offen{BS} lds
s_add_u32 m0, s96, {(s%NSLOT)*8192+1024}
buffer_load_dwordx4 v121, s[{SRD_WS}:{SRD_WS+3}], s34 offen{BS} lds""")
    def x2_prefetch():
        l=a.lab("L_nox2pf")
        a(f"""s_cmp_lg_u32 s30, 0
s_cbranch_scc1 {l}
v_lshrrev_b32 v2, 1, v1
s_lshr_b32 s74, s{S_IDX}, 2
s_lshl_b32 s74, s74, 6
v_add_u32 v2, s74, v2
v_lshlrev_b32 v2, 12, v2
v_and_b32 v3, 1, v1
v_lshlrev_b32 v3, 7, v3
v_add_u32 v2, v2, v3
s_lshl_b32 s74, s28, 8
s_add_u32 s74, s74, {OFF_X2T}
buffer_load_dword v14, v2, s[{SRD_WS}:{SRD_WS+3}], s74 offen{BS}
s_add_u32 s74, s74, {32*4096}
buffer_load_dword v14, v2, s[{SRD_WS}:{SRD_WS+3}], s74 offen{BS}
{l}:""")
    AHEAD=NSLOT-2
    NB4=int(os.environ.get('NB4','2'))
    for s in range(NB4): issue(s)
    x2_prefetch()
    for s in range(NB4,AHEAD): issue(s)
    for s in range(16):
        issued=min(16,s+AHEAD)
        n=2*(issued-s-1)
        if s<NB4:
            l1=a.lab("L_s4"); l2=a.lab("L_s4b")
            a(f"s_cmp_eq_u32 s30, 0\ns_cbranch_scc1 {l1}\ns_waitcnt vmcnt({n})\ns_branch {l2}\n{l1}:\ns_waitcnt vmcnt({n+2})\n{l2}:\ns_barrier")
        else:
            a(f"s_waitcnt vmcnt({n})\ns_barrier")
        if s+AHEAD<16: issue(s+AHEAD)
    a(f"s_branch L_H_P3_done\n{lidle}:")
    for s in range(16): a("s_barrier")
    a("L_H_P3_done:")
    a(f"""s_sub_u32 s30, s{S_WAVE}, 4
s_lshr_b32 s74, s{S_IDX}, 2             ; dc
s_lshl_b32 s74, s74, 6
s_lshl_b32 s75, s30, 4
s_add_u32 s74, s74, s75                 ; first row
s_lshl_b32 s74, s74, 12
s_and_b32 s75, s{S_IDX}, 3
s_lshl_b32 s76, s{S_XCD}, 2
s_add_u32 s75, s75, s76                 ; t64
s_lshl_b32 s75, s75, 7
s_add_u32 s74, s74, s75
s_add_u32 s74, s74, {OFF_X2T}
v_lshrrev_b32 v2, 3, v1
v_lshlrev_b32 v2, 12, v2
v_and_b32 v3, 7, v1
v_lshlrev_b32 v3, 4, v3
v_add_u32 v2, v2, v3
s_lshl_b32 s75, s30, 11
s_add_u32 m0, s75, {139264}
buffer_load_dwordx4 v2, s[{SRD_WS}:{SRD_WS+3}], s74 offen{BS} lds
s_add_u32 m0, s75, {139264+1024}
s_add_u32 s74, s74, {8*4096}
buffer_load_dwordx4 v2, s[{SRD_WS}:{SRD_WS+3}], s74 offen{BS} lds""")

def m_p3(a):
    p3_common(a)
    lidle=a.lab("L_m3idle"); lst=a.lab("L_m3nost")
    a(f"""v_lshrrev_b32 v2, 5, v1                 ; hi
v_bfe_u32 v3, v1, 2, 2                  ; r
v_bfe_u32 v4, v1, 4, 1                  ; nh
v_and_b32 v5, 3, v1                     ; c
v_lshlrev_b32 v6, 3, v2
v_add_u32 v6, v6, v3                    ; 8hi + r
v_lshlrev_b32 v7, 5, v4
v_lshlrev_b32 v8, 3, v5
v_add_u32 v7, v7, v8                    ; nh*32 + c*8
v_mul_u32_u24 v10, 192, v6
v_add_u32 v10, v10, v7                  ; A base (W1')
v_add_u32 v11, {16*3072}, v10           ; A base second half
v_lshlrev_b32 v12, 8, v6
v_xor_b32 v8, s{S_WAVE}, v3
v_lshlrev_b32 v8, 6, v8
v_add3_u32 v12, v12, v8, v7
v_add_u32 v12, {L_RING}, v12            ; B base (x2 ring)""")
    ev_wait(a,E_F2W,1,t=(76,77))
    ev_wait(a,E_W1,3,t=(76,77))
    stamp(a,28)
    w2f_loads(a,16,43)
    a("s_waitcnt vmcnt(0)")
    ev_add(a,E_WE,t=(76,77))
    stamp(a,29)
    stamp(a,13)
    a(f"s_cmp_eq_u32 s29, 15\ns_cbranch_scc1 {lidle}")
    a(f"""v_mov_b32 v13, 0
v_mov_b32 v14, 0
s_mov_b32 s31, 0x3f803f80
s_lshl_b32 s32, s28, 4                  ; tt*16
s_lshl_b32 s33, s{S_WAVE}, 9            ; 32w*16B
s_lshl_b32 s34, s32, 11                 ; tt*16*128*16B
s_add_u32 s33, s33, s34
s_add_u32 s33, s33, {OFF_LNP}           ; base of this wave's tokens in partial slot 0
v_and_b32 v11, 31, v1
v_lshlrev_b32 v11, 4, v11               ; n*16""")
    ACC=16; FB=64; NBUF=3
    def setA(S):
        a(f"""s_add_u32 s34, s29, {S}
s_and_b32 s34, s34, 15
s_mul_i32 s34, s34, 6144
v_add_u32 v{8+(S&1)}, s34, v10""")
    def reads(ks):
        b=FB+16*(ks%NBUF)
        av=8+((ks//2)&1)
        ko=(ks%2)*3072
        slot=(ks//2)%NSLOT
        bo=slot*8192+(ks%2)*4096
        o=[f"ds_read_b64_tr_b16 v[{b+12}:{b+13}], v12 offset:{bo}",
           f"ds_read_b64_tr_b16 v[{b+14}:{b+15}], v12 offset:{bo+1024}"]
        for ft in range(3):
            o+=[f"ds_read_b64_tr_b16 v[{b+4*ft}:{b+4*ft+1}], v{av} offset:{ko+64*ft}",
                f"ds_read_b64_tr_b16 v[{b+4*ft+2}:{b+4*ft+3}], v{av} offset:{ko+768+64*ft}"]
        return o
    def dots(b):
        for k in range(4):
            a(f"v_dot2c_f32_bf16 v13, s31, v{b+12+k}")
            a(f"v_dot2c_f32_bf16 v14, v{b+12+k}, v{b+12+k}")
    def publish(sig):
        a(f"""v_mov_b32 v2, v13
v_mov_b32 v3, v14
s_nop 1
v_permlane32_swap_b32 v2, v13
v_permlane32_swap_b32 v3, v14
s_lshl_b32 s35, s35, 11
s_add_u32 s35, s35, s33
v_add_f32 v4, v13, v2
v_add_f32 v6, v14, v3
v_mov_b32 v5, s{S_TAG}
v_mov_b32 v7, s{S_TAG}
s_mov_b32 exec_hi, 0
buffer_store_dwordx4 v[4:7], v11, s[{SRD_WS}:{SRD_WS+3}], s35 offen sc1
s_mov_b32 exec_hi, -1
v_mov_b32 v13, 0
v_mov_b32 v14, 0""")
    setA(0); setA(1)
    a("s_barrier")
    stamp(a,16)
    for l in reads(0)+reads(1)[:6]: a(l)
    a("s_waitcnt lgkmcnt(12)")
    for l in reads(1)[6:]: a(l)
    lg=None
    for ks in range(32):
        b=FB+16*(ks%NBUF)
        if ks%2==0 and ks+2<32:
            a("s_barrier")
        a(f"s_waitcnt lgkmcnt({8 if ks<31 else 0})")
        nxt=reads(ks+2) if ks+2<32 else []
        for ft in range(3):
            c="0" if ks==0 else f"v[{ACC+16*ft}:{ACC+16*ft+15}]"
            a(f"v_mfma_f32_32x32x16_bf16 v[{ACC+16*ft}:{ACC+16*ft+15}], v[{b+4*ft}:{b+4*ft+3}], v[{b+12}:{b+15}], {c}")
            if ft==2 and nxt: a("s_waitcnt lgkmcnt(13)")
            for l in (nxt[3*ft:3*ft+3] if ft<2 else nxt[6:]): a(l)
        if ks%2==1 and ks//2+2<16: setA(ks//2+2)
        if ks in (0,1): dots(b)
        if ks==1:
            a("s_mov_b32 s35, s29"); publish(0)
        if ks in (2,3):
            l=a.lab("L_nost14"); a(f"s_cmp_eq_u32 s29, 14\ns_cbranch_scc0 {l}")
            dots(b)
            if ks==3:
                a("s_mov_b32 s35, 15"); publish(0)
            a(f"{l}:")
        if ks==24:
            a(f"""v_lshrrev_b32 v2, 5, v1
v_lshlrev_b32 v2, 14, v2                ; hi*8*2048
v_add_u32 v15, v2, v11
s_mov_b32 s35, s33""")
            for i in range(8):
                a(f"buffer_load_dwordx4 v[{112+4*i}:{115+4*i}], v15, s[{SRD_WS}:{SRD_WS+3}], s35 offen offset:{2048*(i&1)} sc1")
                if i&1 and i<7: a("s_add_u32 s35, s35, 4096")
    stamp(a,27)
    lr=a.lab("L_lnr"); ok=a.lab("L_lnk"); lf=a.lab("L_lnf")
    a(f"""s_mov_b32 s99, {SPIN}
s_waitcnt vmcnt(0)
s_branch {lf}
{lr}:
s_mov_b32 s35, s33""")
    for i in range(8):
        a(f"buffer_load_dwordx4 v[{112+4*i}:{115+4*i}], v15, s[{SRD_WS}:{SRD_WS+3}], s35 offen offset:{2048*(i&1)} sc1")
        if i&1 and i<7: a("s_add_u32 s35, s35, 4096")
    a(f"s_waitcnt vmcnt(0)\n{lf}:")
    tagcheck(a,[113+2*k for k in range(16)],ok,lr,T=(2,3,4))
    a("v_add_f32 v13, v112, v116\nv_add_f32 v14, v114, v118")
    for i in range(2,8): a(f"v_add_f32 v13, v13, v{112+4*i}\nv_add_f32 v14, v14, v{114+4*i}")
    a(f"""v_mov_b32 v2, v13
v_mov_b32 v3, v14
s_nop 1
v_permlane32_swap_b32 v2, v13
v_permlane32_swap_b32 v3, v14
s_nop 1
v_add_f32 v13, v13, v2
v_add_f32 v14, v14, v3
v_mul_f32 v13, {f32(1/512)}, v13        ; mean
v_mul_f32 v14, {f32(1/512)}, v14
v_fma_f32 v14, -v13, v13, v14           ; var
v_max_f32 v14, 0, v14
v_cvt_pk_bf16_f32 v2, v13, v14
v_lshlrev_b32 v6, 16, v2                ; m (bf16)
v_and_b32 v14, 0xffff0000, v2
v_add_f32 v14, {f32(1e-5)}, v14
v_cvt_pk_bf16_f32 v14, v14, v14
v_lshlrev_b32 v14, 16, v14
v_sqrt_f32 v14, v14
s_nop 0
v_cvt_pk_bf16_f32 v14, v14, v14
v_lshlrev_b32 v14, 16, v14
v_rcp_f32 v7, v14                       ; r
v_lshrrev_b32 v2, 5, v1
v_lshlrev_b32 v2, 4, v2
v_add_u32 v2, {L_ST}, v2
v_lshlrev_b32 v3, 4, v1                 ; store lane offset
s_lshl_b32 s30, s28, 2
s_add_u32 s30, s30, s{S_WAVE}           ; T32
s_mul_i32 s30, s30, {86*1024}
s_mul_i32 s31, s29, {6*1024}
s_add_u32 s30, s30, s31
s_add_u32 s30, s30, {OFF_H}""")
    grp=[(ft,g) for ft in range(3) for g in range(4)]
    def rdst(i):
        ft,g=grp[i]; b=64+8*(i%2)
        return [f"ds_read_b128 v[{b}:{b+3}], v2 offset:{128*ft+32*g}", f"ds_read_b128 v[{b+4}:{b+7}], v2 offset:{384+128*ft+32*g}"]
    for l in rdst(0): a(l)
    skip_lab=None
    for i,(ft,g) in enumerate(grp):
        if g==0 and ft==1:
            skip_lab=a.lab("L_skipft"); a(f"s_cmp_eq_u32 s29, 14\ns_cbranch_scc1 {skip_lab}")
        b=64+8*(i%2)
        if i+1<len(grp):
            for l in rdst(i+1): a(l)
            a("s_waitcnt lgkmcnt(2)")
        else: a("s_waitcnt lgkmcnt(0)")
        A=ACC+16*ft+4*g
        for k in (0,2): a(f"v_pk_fma_f32 v[{A+k}:{A+k+1}], v[6:7], v[{b+k}:{b+k+1}], v[{A+k}:{A+k+1}] op_sel_hi:[0,1,1] neg_lo:[1,0,0] neg_hi:[1,0,0]")
        for k in (0,2): a(f"v_pk_fma_f32 v[{A+k}:{A+k+1}], v[6:7], v[{A+k}:{A+k+1}], v[{b+4+k}:{b+5+k}] op_sel:[1,0,0] op_sel_hi:[1,1,1]")
        for k in range(4): a(f"v_max_f32 v{A+k}, 0, v{A+k}")
        for k in (0,2): a(f"v_pk_mul_f32 v[{A+k}:{A+k+1}], v[{A+k}:{A+k+1}], v[{A+k}:{A+k+1}]")
        o=8+2*g
        a(f"v_cvt_pk_bf16_f32 v{o}, v{A}, v{A+1}\nv_cvt_pk_bf16_f32 v{o+1}, v{A+2}, v{A+3}")
        if g==1 or g==3:
            half=g>>1
            off=2048*ft+1024*half
            if off<4096: a(f"buffer_store_dwordx4 v[{8+4*half}:{11+4*half}], v3, s[{SRD_WS}:{SRD_WS+3}], s30 offen offset:{off} sc1")
            else: a(f"s_add_u32 s31, s30, 4096\nbuffer_store_dwordx4 v[{8+4*half}:{11+4*half}], v3, s[{SRD_WS}:{SRD_WS+3}], s31 offen offset:{off-4096} sc1")
    a(f"{skip_lab}:\ns_waitcnt lgkmcnt(0)")
    stamp(a,17)
    a(f"s_branch L_M_P3_done\n{lidle}:")
    for s in range(16): a("s_barrier")
    a("L_M_P3_done:")

def residual_loads(a):
    a(f"""s_and_b32 s74, s{S_IDX}, 3
s_lshl_b32 s75, s{S_XCD}, 2
s_add_u32 s74, s74, s75                 ; t64
s_lshr_b32 s75, s{S_IDX}, 2             ; dc
s_lshl_b32 s75, s75, 1
s_and_b32 s76, s{S_WAVE}, 1
s_add_u32 s75, s75, s76                 ; dtile
s_lshl_b32 s75, s75, 5                  ; d0
s_lshl_b32 s74, s74, 6
s_lshr_b32 s76, s{S_WAVE}, 1
s_lshl_b32 s76, s76, 5
s_add_u32 s74, s74, s76                 ; t0
v_lshrrev_b32 v112, 5, v1
v_lshlrev_b32 v112, 2, v112
v_add_u32 v112, s75, v112               ; d0 + 4hi
v_lshlrev_b32 v112, 12, v112
v_and_b32 v113, 31, v1
v_add_u32 v113, s74, v113
v_lshlrev_b32 v113, 1, v113
v_add_u32 v112, v112, v113
s_mov_b32 s75, {OFF_X2T}""")
    for r in range(16):
        dd=(r&3)+8*(r>>2)
        if dd==0: so="s75"
        else:
            a(f"s_add_u32 s74, s75, {dd*4096}"); so="s74"
        a(f"buffer_load_ushort v{96+r}, v112, s[{SRD_WS}:{SRD_WS+3}], {so} offen{BS}")

def wf_reg(j):
    return 144+4*(j-16) if j>=16 else 80+4*j
def w2f_loads(a,j0,j1):
    a(f"""s_lshr_b32 s74, s{S_IDX}, 2             ; dc
s_and_b32 s75, s{S_WAVE}, 1             ; dt
s_lshr_b32 s76, s{S_WAVE}, 1            ; kh
s_lshl_b32 s74, s74, 1
s_add_u32 s74, s74, s75                 ; dtile
s_mul_i32 s74, s74, 86
s_mul_i32 s76, s76, 43
s_add_u32 s74, s74, s76
s_add_u32 s74, s74, {j0}
s_lshl_b32 s74, s74, 10
s_add_u32 s74, s74, {OFF_W2F}
v_lshlrev_b32 v252, 4, v1""")
    for n,j in enumerate(range(j0,j1)):
        if n%4==0 and n>0: a(f"s_add_u32 s74, s74, 4096")
        a(f"buffer_load_dwordx4 v[{wf_reg(j)}:{wf_reg(j)+3}], v252, s[{SRD_WS}:{SRD_WS+3}], s74 offen offset:{1024*(n%4)}{BS}")

WF=80
def p3_publish(a,role):
    if role=='H':
        le=a.lab("L_noep")
        a(f"""s_cmp_lg_u32 s2, 0
s_cbranch_scc1 {le}
s_cmp_lg_u32 s{S_WAVE}, 4
s_cbranch_scc1 {le}
v_mov_b32 v3, s{S_TAG}
v_mov_b32 v4, 0
s_mov_b64 exec, 1
buffer_store_dword v3, v4, s[{SRD_WS}:{SRD_WS+3}], 0 offen sc1
s_mov_b64 exec, -1
{le}:""")
        return
    a("s_waitcnt vmcnt(0)")
    stamp(a,15)
    lf=a.lab("L_nof3")
    last_arriver(a,E_F3,4,lf)
    store_flag(a,OFF_F3)
    a(f"{lf}:")
    stamp(a,37)
    w2f_loads(a,0,16)
    stamp(a,39)

L_HR=0 ; HSLOTS=34
L_RES=HSLOTS*4096
L_EX2=147456
GRP=4
PERM=list(range(16,43))+list(range(16))
def h_p4(a):
    a(f"""s_mov_b32 s99, {SPIN}
s_and_b32 s28, s{S_IDX}, 3
s_lshl_b32 s29, s{S_XCD}, 2
s_add_u32 s28, s28, s29                 ; t64
s_sub_u32 s30, s{S_WAVE}, 4             ; hw""")
    lw=a.lab("L_f3w"); lr=a.lab("L_f3r"); ok=a.lab("L_f3k")
    a(f"""s_cmp_lg_u32 s30, 0
s_cbranch_scc1 {lw}
s_lshr_b32 s31, s28, 1                  ; tt
s_and_b32 s32, s31, 3
s_lshl_b32 s32, s32, 3                  ; 8*(tt&3)
s_lshr_b32 s31, s31, 2
s_add_u32 s32, s32, s31                 ; + (tt>>2)
s_lshl_b32 s32, s32, 4
s_add_u32 s32, s32, {OFF_F3}
v_min_u32 v3, 14, v1                    ; fc
v_and_b32 v2, 7, v3
v_lshlrev_b32 v2, 5, v2                 ; 32*(fc&7)
v_lshrrev_b32 v3, 3, v3
v_lshlrev_b32 v3, 2, v3                 ; 4*(fc>>3)
v_add_u32 v2, v2, v3
v_lshlrev_b32 v2, 4, v2                 ; wg*16B
s_waitcnt vmcnt(0)""")
    ev_wait(a,E_WF,4)
    a(f"""s_mov_b32 s99, {SPIN}
{lr}:
buffer_load_dword v10, v2, s[{SRD_WS}:{SRD_WS+3}], s32 offen sc1
s_waitcnt vmcnt(0)""")
    tagcheck(a,[10],ok,lr)
    stamp(a,20)
    a(f"{lw}:\ns_barrier")
    stamp(a,21)
    a(f"""s_lshl_b32 s31, s28, 1
s_and_b32 s32, s30, 1
s_add_u32 s31, s31, s32                 ; T32
s_mul_i32 s31, s31, {86*1024}
s_lshr_b32 s32, s30, 1
s_mul_i32 s32, s32, {43*1024}
s_add_u32 s31, s31, s32
s_add_u32 s31, s31, {OFF_H}
s_lshl_b32 s33, s30, 10                 ; LDS offset inside a step
v_lshlrev_b32 v20, 4, v1""")
    def issue(j):
        a(f"""s_add_u32 m0, s33, {(j%HSLOTS)*4096+L_HR}
s_add_u32 s34, s31, {PERM[j]*1024}
buffer_load_dwordx4 v20, s[{SRD_WS}:{SRD_WS+3}], s34 offen{BS} lds""")
    FIRST=8
    for j in range(FIRST): issue(j)
    stamp(a,22)
    ngrp=(43+GRP-1)//GRP
    issued=FIRST
    for g in range(ngrp):
        need=min(43,(g+1)*GRP)
        a(f"s_waitcnt vmcnt({issued-need})\ns_barrier")
        tgt=min(43,issued+ (8 if g<3 else 5))
        while issued<tgt and issued-HSLOTS < g*GRP-1:
            issue(issued); issued+=1
    assert issued==43

def m_p4(a):
    a(f"""s_and_b32 s28, s{S_IDX}, 3
s_lshl_b32 s29, s{S_XCD}, 2
s_add_u32 s28, s28, s29                 ; t64
s_lshr_b32 s29, s{S_IDX}, 2             ; dc
s_and_b32 s30, s{S_WAVE}, 1             ; dt
s_lshr_b32 s31, s{S_WAVE}, 1            ; kh
s_lshl_b32 s32, s29, 1
s_add_u32 s32, s32, s30                 ; dtile
v_lshlrev_b32 v2, 4, v1""")
    X=64
    a(f"""v_and_b32 v3, 31, v1
v_lshrrev_b32 v4, 5, v1                 ; hi
s_lshl_b32 s33, s32, 5                  ; d0 = 32*dtile
s_lshl_b32 s34, s28, 6
s_lshl_b32 s35, s31, 5
s_add_u32 s34, s34, s35                 ; t0 = 64*t64 + 32*kh
v_lshlrev_b32 v5, 2, v4                 ; 4hi
v_add_u32 v6, s33, v5                   ; d0 + 4hi
s_nop 0""")
    a("s_waitcnt vmcnt(0)")
    ev_add(a,E_WF,t=(11,12))
    stamp(a,20)
    a("s_barrier")
    stamp(a,21)
    a(f"""s_lshl_b32 s35, s31, 11                 ; kh*2048
v_add_u32 v9, s35, v2                   ; H frag address inside a step
v_add_u32 v10, 0x10000, v9
v_add_u32 v13, 0x20000, v9""")
    ACC=16; FB=48
    def reads(j):
        b=FB+8*(j%2); sl=(j%HSLOTS)*4096+L_HR
        av=[9,10,13][sl>>16]
        o=sl&0xffff
        return [f"ds_read_b128 v[{b}:{b+3}], v{av} offset:{o}", f"ds_read_b128 v[{b+4}:{b+7}], v{av} offset:{o+1024}"]
    stamp(a,22)
    a("s_barrier")
    stamp(a,23)
    for l in reads(0): a(l)
    for j in range(43):
        b=FB+8*(j%2)
        if j+1<43:
            if (j+1)%GRP==0: a("s_barrier")
            for l in reads(j+1): a(l)
            a("s_waitcnt lgkmcnt(2)")
        else: a("s_waitcnt lgkmcnt(0)")
        for tt in range(2):
            c="0" if j==0 else f"v[{ACC+16*tt}:{ACC+16*tt+15}]"
            a(f"v_mfma_f32_32x32x16_bf16 v[{ACC+16*tt}:{ACC+16*tt+15}], v[{wf_reg(PERM[j])}:{wf_reg(PERM[j])+3}], v[{b+4*tt}:{b+4*tt+3}], {c}")
        if j==30:
            srd(a,SRD_A,P_B2,1024)
            srd(a,SRD_OUT,P_OUT,2097152)
            a(f"""v_lshlrev_b32 v11, 2, v6
s_mov_b32 s35, {OFF_FING}
v_lshlrev_b32 v12, 1, v6""")
            for g in range(4):
                a(f"buffer_load_dwordx4 v[{160+4*g}:{163+4*g}], v11, s[{SRD_WS}:{SRD_WS+3}], s35 offen offset:{32*g}{BS}")
                a(f"buffer_load_dwordx2 v[{152+2*g}:{153+2*g}], v12, s[{SRD_A}:{SRD_A+3}], 0 offen offset:{16*g}")
    stamp(a,24)
    a(f"""s_lshl_b32 s35, s{S_WAVE}, 12
s_add_u32 s35, s35, {L_EX2}
v_add_u32 v4, s35, v2
s_xor_b32 s35, s{S_WAVE}, 2
s_lshl_b32 s35, s35, 12
s_add_u32 s35, s35, {L_EX2}
v_add_u32 v5, s35, v2""")
    lk=a.lab("L_kh1"); lj=a.lab("L_khj")
    a(f"s_cmp_eq_u32 s31, 0\ns_cbranch_scc0 {lk}")
    for g in range(4): a(f"ds_write_b128 v4, v[{ACC+16+4*g}:{ACC+16+4*g+3}] offset:{1024*g}")
    a(f"s_branch {lj}\n{lk}:")
    for g in range(4): a(f"ds_write_b128 v4, v[{ACC+4*g}:{ACC+4*g+3}] offset:{1024*g}")
    for i in range(16): a(f"v_mov_b32 v{ACC+i}, v{ACC+16+i}")
    a(f"{lj}:\ns_waitcnt lgkmcnt(0)\ns_barrier")
    for g in range(4): a(f"ds_read_b128 v[{48+4*g}:{48+4*g+3}], v5 offset:{1024*g}")
    a(f"""s_and_b32 s35, s{S_WAVE}, 1
s_lshl_b32 s35, s35, 5                  ; 32*dt
v_lshrrev_b32 v7, 5, v1
v_lshlrev_b32 v7, 2, v7
v_add_u32 v7, s35, v7
v_lshlrev_b32 v7, 7, v7
s_lshl_b32 s35, s31, 6
v_lshlrev_b32 v8, 1, v3
v_add3_u32 v7, v7, v8, s35
v_add_u32 v7, {L_RES}, v7
s_waitcnt lgkmcnt(0)""")
    for r in range(16): a(f"ds_read_u16 v{80+r}, v7 offset:{((r&3)+8*(r>>2))*128}")
    a("s_waitcnt vmcnt(0) lgkmcnt(0)")
    for r in range(16):
        g=r>>2; k=r&3
        b2r=152+2*g+(k>>1)
        unp = f"v_lshlrev_b32 v2, 16, v{b2r}" if k%2==0 else f"v_and_b32 v2, 0xffff0000, v{b2r}"
        a(f"""v_add_f32 v{ACC+r}, v{ACC+r}, v{48+r}
{unp}
v_lshlrev_b32 v4, 16, v{80+r}
v_add_f32 v{ACC+r}, v{ACC+r}, v2
v_fma_f32 v{ACC+r}, v{160+r}, v{ACC+r}, v4""")
    for p in range(8): a(f"v_cvt_pk_bf16_f32 v{176+p}, v{ACC+2*p}, v{ACC+2*p+1}")
    a(f"""s_nop 1
v_permlane32_swap_b32 v176, v178
v_permlane32_swap_b32 v177, v179
v_permlane32_swap_b32 v180, v182
v_permlane32_swap_b32 v181, v183
v_add_u32 v8, s34, v3
v_lshlrev_b32 v8, 10, v8                ; t*1024
v_lshrrev_b32 v4, 5, v1
v_lshlrev_b32 v4, 4, v4                 ; hi*16B
s_lshl_b32 s35, s33, 1
v_add3_u32 v8, v8, v4, s35
buffer_store_dwordx4 v[176:179], v8, s[{SRD_OUT}:{SRD_OUT+3}], 0 offen
buffer_store_dwordx4 v[180:183], v8, s[{SRD_OUT}:{SRD_OUT+3}], 0 offen offset:32""")
    stamp(a,25)
    if STAMPS:
        a("s_waitcnt vmcnt(0)")
        stamp(a,26)

def h_p4_tail(a):
    a("s_barrier")

def dump_lds(a, nbytes):
    a(f"""s_mul_i32 s30, s2, {LDS_BYTES}
s_add_u32 s30, s30, {OFF_DBG}
v_lshlrev_b32 v2, 4, v0""")
    n=(nbytes+8191)//8192
    for i in range(n):
        a(f"""ds_read_b128 v[4:7], v2 offset:0
s_waitcnt lgkmcnt(0)
buffer_store_dwordx4 v[4:7], v2, s[{SRD_WS}:{SRD_WS+3}], s30 offen
v_add_u32 v2, 8192, v2
s_waitcnt vmcnt(0)""")

def build(stop):
    a=Asm()
    prologue(a)
    m_p1(a)
    m_conv(a)
    m_epilogue(a)
    m_p3(a)
    p3_publish(a,'M')
    m_p4(a)
    a("s_branch L_fin")
    h_p1(a)
    h_side(a)
    h_p3(a)
    p3_publish(a,'H')
    h_p4(a)
    h_p4_tail(a)
    a("L_fin:")
    if STAMPS: a("s_memrealtime s[78:79]\ns_waitcnt lgkmcnt(0)\nv_writelane_b32 v254, s78, 61")
    dump_stamps(a,64)
    a("L_end:\ns_endpgm")
    return finish(a, f"; @launch grid=(256,1,1) block=(512,1,1) lds={LDS_BYTES}")

if __name__=="__main__":
    stop=int(sys.argv[1]) if len(sys.argv)>1 else 99
    if len(sys.argv)>3 and sys.argv[3]=='st': STAMPS=True
    out=sys.argv[2] if len(sys.argv)>2 else "out.s"
    open(out,"w").write(build(stop))
```

```python
import sys, os
from base import *
EXP=set(os.environ.get('EXP','allearly').split(','))
if 'base' not in EXP: EXP.add('allearly')
BS=' sc1' if 'bulksc1' in EXP else ''

OFF_E   =0x0
OFF_F2  =0x1000
OFF_F3  =0x2000
OFF_F2W =0x3000
OFF_F1W =0x88000
OFF_STAT=0x4000
OFF_MOD =0x8000
OFF_S   =0x10000
OFF_T   =0x12000
OFF_MODP=0x20000
OFF_FINS=0x80000
OFF_FING=0x81000
OFF_LNP =0x90000
OFF_XT  =0x110000
OFF_W1P =0x500000
OFF_W2F =0x700000
OFF_X2T =0x900000
OFF_H   =0xB00000
OFF_DBG =0x2000000
WS_SIZE =268435456
CS=4416; KCH=4*CS
L_KC=0
PL=1568; HCH=4*PL
L_EG=35328; EGW=17408
L_EX=104960
L_Y=98304; YW=9216
L_HP=135168
L_XP=147712
L_MISC=155904
L_MODP=L_MISC
L_CNT=L_MISC+512
L_W2S=L_MISC+1024
L_STV=161024
L_GA=L_CNT+56
E_W2=0; E_F2=4; E_SIDE=8; E_KX=12; E_EPI=16; E_F3=20; E_F2W=24; E_Y=28; E_GA=36; E_W1=40; E_PB=44; E_WF=48; E_STI=52; E_WE=32
L_PB=156928
LDS_BYTES=163840
SPIN=4000
PSL=int(os.environ.get('PSL','1'))
TAGC=0x9E3779B9

S_WAVE=3; S_TAG=4; S_P=5; S_XCD=6; S_IDX=7
SRD_WS=8; SRD_OUT=12; SRD_A=16; SRD_B=20; SRD_C=24
P_X=36;P_ARE=38;P_AIM=40;P_BRE=42;P_BIM=44;P_CRE=46;P_CIM=48;P_LDT=50
P_DSK=52;P_BX=54;P_W1=56;P_B1=58;P_W2=60;P_B2=62;P_C=64;P_WM=66;P_OUT=68;P_DBG=70;P_WS=72
LOG2E=0x3fb8aa3b; LOG2E_LO=0x32a57060; LN2=0x3f317218; INV2PI=0x3e22f983

def srd(a, r, p, size):
    a(f"""s_mov_b32 s{r}, s{p}
s_and_b32 s{r+1}, s{p+1}, 0xffff
s_mov_b32 s{r+2}, {size}
s_mov_b32 s{r+3}, 0x20000""")

def cmul(dst,x,y,tmp):
    return [f"v_pk_mul_f32 v[{tmp}:{tmp+1}], v[{x}:{x+1}], v[{y}:{y+1}] op_sel_hi:[1,0]",
            f"v_pk_fma_f32 v[{dst}:{dst+1}], v[{x}:{x+1}], v[{y}:{y+1}], v[{tmp}:{tmp+1}] op_sel:[1,1,0] op_sel_hi:[0,1,1] neg_lo:[1,0,0]"]

def cexp(dst,q,va,vb,t0,t1,t2):
    return [f"v_mul_f32 v{t0}, {q}, v{va}",
            f"v_mul_f32 v{t1}, {q}, v{vb}",
            f"v_exp_f32 v{t0}, v{t0}",
            f"v_fract_f32 v{t1}, v{t1}",
            f"v_cos_f32 v{t2}, v{t1}",
            f"v_sin_f32 v{t1}, v{t1}",
            f"v_mul_f32 v{dst}, v{t0}, v{t2}",
            f"v_mul_f32 v{dst+1}, v{t0}, v{t1}"]

def f32(x):
    import struct
    return "0x%08x"%struct.unpack('<I',struct.pack('<f',x))[0]

def rho(r,hi): return (r&3)+8*(r>>2)+4*hi
ROWS=[[0,1,2,3,4,5,6,7,512,516,520,1024,1032,1280,1288],
      [256,256,258,260,260,260,262,264,768,772,776,1536,1544,1792,1800]]
GROWS={}
for hi in (0,1):
    for r,q in enumerate(ROWS[hi]): GROWS.setdefault(q,[]).append(rho(r,hi))

STAMPS=False
def stamp(a,i):
    if not STAMPS: return
    a(f"""s_memtime s[78:79]
s_waitcnt lgkmcnt(0)
v_writelane_b32 v254, s78, {i}""")
def dump_stamps(a,n):
    if not STAMPS: return
    if 'dbg' in EXP:
        sel=[int(x) for x in os.environ.get('DBGSEL','2,7,8,12,16,27,17,15,21,23,24,26').split(',')]
        l=a.lab("L_nodbg")
        srd(a,SRD_A,P_DBG,256)
        a(f"""s_cmp_lg_u32 s2, {os.environ.get('DBGWG','0')}
s_cbranch_scc1 {l}
s_cmp_lg_u32 s{S_WAVE}, {os.environ.get('DBGWAVE','0')}
s_cbranch_scc1 {l}
v_readlane_b32 s30, v254, 0
v_mov_b32 v2, 0""")
        for i,k in enumerate(sel):
            a(f"""v_readlane_b32 s31, v254, {k}
s_sub_u32 s31, s31, s30
v_mov_b32 v3, s31
s_mov_b64 exec, 1
buffer_store_dword v3, v2, s[{SRD_A}:{SRD_A+3}], 0 offen offset:{4*i}
s_mov_b64 exec, -1""")
        a(f"{l}:")
        return
    a(f"""s_lshl_b32 s30, s{S_WAVE}, 8
s_lshl_b32 s31, s2, 11
s_add_u32 s30, s30, s31
s_add_u32 s30, s30, {OFF_DBG+0x3000000}
v_lshlrev_b32 v2, 2, v1
buffer_store_dword v254, v2, s[{SRD_WS}:{SRD_WS+3}], s30 offen""")

def prologue(a):
    a(f"""s_cmp_ge_u32 s2, 256
s_cbranch_scc1 L_end
s_memtime s[80:81]
s_load_dwordx16 s[36:51], s[0:1], 0
s_load_dwordx16 s[52:67], s[0:1], 64
s_load_dwordx4 s[68:71], s[0:1], 128
s_load_dwordx2 s[72:73], s[0:1], 144
v_lshrrev_b32 v2, 6, v0
v_and_b32 v1, 63, v0
s_and_b32 s{S_XCD}, s2, 7
v_readfirstlane_b32 s{S_WAVE}, v2
s_lshr_b32 s{S_IDX}, s2, 3
s_lshl_b32 s{S_P}, s{S_XCD}, 5
s_add_u32 s{S_P}, s{S_P}, s{S_IDX}
s_waitcnt lgkmcnt(0)""")
    srd(a,SRD_WS,P_WS,WS_SIZE)
    if STAMPS:
        a("v_writelane_b32 v254, s80, 0")
        a("s_memrealtime s[78:79]\ns_waitcnt lgkmcnt(0)\nv_writelane_b32 v254, s78, 60")
    stamp(a,1)
    a(f"""v_mov_b32 v2, 0
buffer_load_dword v255, v2, s[{SRD_WS}:{SRD_WS+3}], 0 offen sc1
s_cmp_ge_u32 s{S_WAVE}, 4
s_cbranch_scc1 L_H_P1""")

def get_tag(a):
    a(f"""v_readfirstlane_b32 s{S_TAG}, v255
s_add_u32 s{S_TAG}, s{S_TAG}, {TAGC}""")

def m_p1(a):
    a(f"""s_lshr_b32 s28, s{S_WAVE}, 1          ; ch
s_lshl_b32 s29, s{S_P}, 1
s_add_u32 s29, s29, s28                ; d
s_and_b32 s30, s{S_WAVE}, 1
s_lshl_b32 s31, s29, 8
s_lshl_b32 s32, s30, 7
s_add_u32 s31, s31, s32                ; d*256 + half*128
v_lshlrev_b32 v9, 1, v1
v_add_u32 v9, s31, v9
global_load_ushort v2, v9, s[{P_ARE}:{P_ARE+1}]
global_load_ushort v3, v9, s[{P_AIM}:{P_AIM+1}]
global_load_ushort v4, v9, s[{P_BRE}:{P_BRE+1}]
global_load_ushort v5, v9, s[{P_BIM}:{P_BIM+1}]
global_load_ushort v6, v9, s[{P_CRE}:{P_CRE+1}]
global_load_ushort v7, v9, s[{P_CIM}:{P_CIM+1}]
s_lshl_b32 s32, s29, 1
v_mov_b32 v10, s32
global_load_ushort v8, v10, s[{P_LDT}:{P_LDT+1}]""")
    a(f"""v_mov_b32 v12, 0
v_mov_b32 v13, 0
v_mov_b32 v14, 0
v_mov_b32 v15, 0
v_lshrrev_b32 v10, 5, v1                ; 0/1
s_lshl_b32 s32, s{S_WAVE}, 1
v_add_u32 v10, s32, v10
v_mul_u32_u24 v10, {PL}, v10
v_and_b32 v11, 31, v1
v_lshlrev_b32 v11, 4, v11
v_add_u32 v10, v10, v11
v_add_u32 v10, {L_HP}, v10
ds_write_b128 v10, v[12:15]
v_lshrrev_b32 v10, 3, v1
v_mul_u32_u24 v10, {CS}, v10
v_and_b32 v11, 7, v1
v_lshlrev_b32 v11, 4, v11
v_add_u32 v10, v10, v11
ds_write_b128 v10, v[12:15] offset:{L_KC+16+4064}
s_waitcnt lgkmcnt(0)
s_barrier""")
    a(f"""s_mul_i32 s33, s{S_WAVE}, {EGW}
s_add_u32 s33, s33, {L_EG}
v_lshlrev_b32 v60, 2, v1
v_add_u32 v60, s33, v60
v_add_u32 v61, {32*272}, v60
s_mov_b32 s34, {LOG2E}
s_mov_b32 s35, {LOG2E_LO}
s_waitcnt vmcnt(0)""")
    stamp(a,2)
    get_tag(a)
    a(f"""v_lshlrev_b32 v2, 16, v2
v_lshlrev_b32 v3, 16, v3
v_lshlrev_b32 v4, 16, v4
v_lshlrev_b32 v5, 16, v5
v_lshlrev_b32 v6, 16, v6
v_lshlrev_b32 v7, 16, v7
v_lshlrev_b32 v8, 16, v8
v_mul_f32 v10, s34, v8
v_fma_f32 v11, v8, s34, -v10
v_fma_f32 v11, v8, s35, v11
v_exp_f32 v10, v10
v_mul_f32 v11, {LN2}, v11
v_fma_f32 v10, v10, v11, v10
v_cvt_pk_bf16_f32 v10, v10, v10
v_lshlrev_b32 v8, 16, v10
v_mul_f32 v2, v8, v2                    ; zr
v_mul_f32 v3, v8, v3                    ; zi
v_mul_f32 v4, v8, v4
v_mul_f32 v5, v8, v5
v_mul_f32 v10, v6, v4
v_mul_f32 v11, v6, v5
v_fma_f32 v10, -v7, v5, v10             ; wr
v_fma_f32 v11, v7, v4, v11              ; wi
v_mul_f32 v12, s34, v2
v_mul_f32 v13, {INV2PI}, v3""")
    W=10; U1=14;U2=16;U4=18;U8=20;U16=22;U256=24;U512=26;U1024=28
    a(f"""s_mov_b32 s74, {f32(8.0)}
s_mov_b32 s75, {f32(256.0)}
s_mov_b32 s76, {f32(512.0)}
s_mov_b32 s77, {f32(1024.0)}""")
    a.interleave(cexp(U8,"s74",12,13,38,39,40), cexp(U1,"1.0",12,13,41,42,43), cexp(U256,"s75",12,13,44,45,46))
    a.interleave(cexp(U512,"s76",12,13,38,39,40), cexp(U1024,"s77",12,13,41,42,43), cmul(U16,U8,U8,44)+cmul(U2,U1,U1,46))
    for l in cmul(U4,U2,U2,44): a(l)
    def emitG(q,reg,tmp):
        o=[f"v_cvt_pk_bf16_f32 v{tmp}, v{reg}, v{reg+1}"]
        if 'nods' in EXP: return o
        for r in GROWS[q]: o.append(f"ds_write_b32 v60, v{tmp} offset:{r*272}")
        return o
    def emitE(b,reg,tmp):
        if 'nods' in EXP: return [f"v_cvt_pk_bf16_f32 v{tmp}, v{reg}, -v{reg+1}"]
        return [f"v_cvt_pk_bf16_f32 v{tmp}, v{reg}, -v{reg+1}", f"ds_write_b32 v61, v{tmp} offset:{b*272}"]
    EA=30; EB=32
    sE=[]; sO=[]
    sE+=[f"v_mov_b32 v54, 0x3f80", f"ds_write_b32 v61, v54 offset:0"]
    sE+=[f"v_mov_b32 v{EA}, v{U16}", f"v_mov_b32 v{EA+1}, v{U16+1}"]+emitE(2,EA,54)
    for b in range(4,32,2): sE+=cmul(EA,EA,U16,48)+emitE(b,EA,54)
    sO+=[f"v_mov_b32 v{EB}, v{U8}", f"v_mov_b32 v{EB+1}, v{U8+1}"]+emitE(1,EB,55)
    for b in range(3,32,2): sO+=cmul(EB,EB,U16,50)+emitE(b,EB,55)
    GA=34; GB=36; GC=58
    sG=[]
    sG+=emitG(0,W,56)+cmul(GA,W,U1,52)+emitG(1,GA,56)
    for c in range(2,8): sG+=cmul(GA,GA,U1,52)+emitG(c,GA,56)
    sG+=cmul(GA,W,U256,52)+emitG(256,GA,56)
    sG+=cmul(GB,GA,U8,52)+emitG(264,GB,56)
    for q in (258,260,262): sG+=cmul(GA,GA,U2,52)+emitG(q,GA,56)
    sG+=cmul(GA,W,U512,52)+emitG(512,GA,56)
    sG+=cmul(GB,GA,U4,52)+emitG(516,GB,56)+cmul(GB,GA,U8,52)+emitG(520,GB,56)
    sG+=cmul(GA,GA,U256,52)+emitG(768,GA,56)
    sG+=cmul(GB,GA,U4,52)+emitG(772,GB,56)+cmul(GB,GA,U8,52)+emitG(776,GB,56)
    sG+=cmul(GA,W,U1024,52)+emitG(1024,GA,56)+cmul(GB,GA,U8,52)+emitG(1032,GB,56)
    sG+=cmul(GC,GA,U256,52)+emitG(1280,GC,56)+cmul(GB,GC,U8,52)+emitG(1288,GB,56)
    sG+=cmul(GA,GA,U512,52)+emitG(1536,GA,56)+cmul(GB,GA,U8,52)+emitG(1544,GB,56)
    sG+=cmul(GA,GA,U256,52)+emitG(1792,GA,56)+cmul(GB,GA,U8,52)+emitG(1800,GB,56)
    a.interleave(sE,sO,sG[:len(sG)//2],sG[len(sG)//2:]) if False else a.interleave(sE,sO,sG)
    stamp(a,3)
    if 'hwait' in EXP: a("s_barrier")
    a(f"""v_and_b32 v62, 31, v1
v_mul_u32_u24 v62, 272, v62
v_lshrrev_b32 v63, 5, v1
v_lshlrev_b32 v63, 4, v63
v_add3_u32 v62, v62, v63, s33
v_add_u32 v63, {32*272}, v62
s_waitcnt lgkmcnt(0)""")
    FA=64
    for s in range(7):
        a(f"ds_read_b128 v[{FA+8*s}:{FA+8*s+3}], v62 offset:{32*s}")
        a(f"ds_read_b128 v[{FA+8*s+4}:{FA+8*s+7}], v63 offset:{32*s}")
    ACC=128
    for s in range(8):
        if s==0:
            a("s_waitcnt lgkmcnt(12)")
        elif s==1:
            a(f"ds_read_b128 v[{FA+56}:{FA+59}], v62 offset:{32*7}")
            a(f"ds_read_b128 v[{FA+60}:{FA+63}], v63 offset:{32*7}")
            a("s_waitcnt lgkmcnt(12)")
        else:
            a(f"s_waitcnt lgkmcnt({2*(7-s)})")
        c = "0" if s==0 else f"v[{ACC}:{ACC+15}]"
        a(f"v_mfma_f32_32x32x16_bf16 v[{ACC}:{ACC+15}], v[{FA+8*s}:{FA+8*s+3}], v[{FA+8*s+4}:{FA+8*s+7}], {c}")
    a(f"""s_lshl_b32 s34, s{S_WAVE}, 12
s_add_u32 s34, s34, {L_EX}
v_lshlrev_b32 v62, 4, v1
v_add_u32 v63, s34, v62
s_xor_b32 s35, s34, 4096
v_add_u32 v62, s35, v62""")
    for g in range(4): a(f"ds_write_b128 v63, v[{ACC+4*g}:{ACC+4*g+3}] offset:{1024*g}")
    a(f"""s_xor_b32 s35, s{S_WAVE}, 1
s_lshl_b32 s35, s35, 12
s_add_u32 s35, s35, {L_EX}
v_lshlrev_b32 v62, 4, v1
v_add_u32 v62, s35, v62
s_waitcnt lgkmcnt(0)""")
    stamp(a,4)
    ev_add(a,E_KX)
    ev_wait(a,E_KX,4)
    stamp(a,5)
    for g in range(4): a(f"ds_read_b128 v[{FA+4*g}:{FA+4*g+3}], v62 offset:{1024*g}")
    a(f"""s_lshr_b32 s28, s{S_WAVE}, 1
s_mul_i32 s28, s28, {KCH}
s_add_u32 s28, s28, {L_KC+16+4080-8}
v_and_b32 v2, 31, v1
v_lshlrev_b32 v2, 4, v2                 ; 16c
v_sub_u32 v2, s28, v2                   ; base - 16c
v_lshrrev_b32 v3, 5, v1                 ; hi
s_mov_b32 s30, 0xaaaaaaaa
s_mov_b32 s31, 0xaaaaaaaa
s_waitcnt lgkmcnt(0)""")
    for i in range(16): a(f"v_add_f32 v{ACC+i}, v{ACC+i}, v{FA+i}")
    def chunk(e, base0, basehi):
        D=84; O=88; K0=4
        a(f"""v_mul_u32_u24 v{K0}, {2*basehi}, v3
v_add_u32 v{K0}, {2*base0}, v{K0}
v_sub_u32 v{K0}, v2, v{K0}
v_add_u32 v{K0+1}, {CS}, v{K0}
v_add_u32 v{K0+2}, {2*CS}, v{K0}
v_add_u32 v{K0+3}, {3*CS}, v{K0}""")
        f=[e[7-j] for j in range(8)]
        for j in range(4): a(f"v_cvt_pk_bf16_f32 v{D+j}, v{f[2*j]}, v{f[2*j+1]}")
        for j in range(3): a(f"v_cvt_pk_bf16_f32 v{O+j}, v{f[2*j+1]}, v{f[2*j+2]}")
        a(f"""ds_write_b128 v{K0}, v[{D}:{D+3}] offset:8
ds_write2_b32 v{K0+2}, v{D}, v{D+1} offset0:1 offset1:2
ds_write2_b32 v{K0+2}, v{D+2}, v{D+3} offset0:3 offset1:4
ds_write_b16 v{K0+1}, v{D} offset:6
ds_write_b96 v{K0+1}, v[{O}:{O+2}] offset:8
ds_write_b16_d16_hi v{K0+1}, v{D+3} offset:20
ds_write_b16 v{K0+3}, v{D} offset:2
ds_write2_b32 v{K0+3}, v{O}, v{O+1} offset0:1 offset1:2
ds_write_b32 v{K0+3}, v{O+2} offset:12
ds_write_b16_d16_hi v{K0+3}, v{D+3} offset:16""")
    R=lambda r: ACC+r
    lo=a.lab("L_kodd"); le=a.lab("L_kend")
    a(f"""s_bitcmp1_b32 s{S_WAVE}, 0
s_cbranch_scc1 {lo}""")
    chunk([R(i) for i in range(8)],0,256)
    a(f"v_cndmask_b32 v8, v{R(11)}, v{R(12)}, s[30:31]")
    chunk([R(11)]*4+[8]+[R(12)]*3,1024,512)
    a(f"s_branch {le}\n{lo}:")
    chunk([R(8)]*3+[R(9)]*3+[R(10)]*2,512,256)
    a(f"v_cndmask_b32 v8, v{R(13)}, v{R(14)}, s[30:31]")
    chunk([R(13)]*4+[8]+[R(14)]*3,1280,512)
    a(f"{le}:")
    a("s_waitcnt lgkmcnt(0)")
    stamp(a,6)
    a("s_barrier")
    stamp(a,7)

def dpp_reduce(regs, full=True):
    o=[]
    for sh in (1,2,4,8):
        for r in regs: o.append(f"v_add_f32_dpp v{r}, v{r}, v{r} row_shr:{sh} row_mask:0xf bank_mask:0xf")
    for r in regs: o.append(f"v_add_f32_dpp v{r}, v{r}, v{r} row_bcast:15 row_mask:0xa bank_mask:0xf")
    if full:
        for r in regs: o.append(f"v_add_f32_dpp v{r}, v{r}, v{r} row_bcast:31 row_mask:0xc bank_mask:0xf")
    return o

def dpp_reduce_rows(regs):
    o=[]
    for sh in (1,2,4,8):
        for r in regs: o.append(f"v_add_f32_dpp v{r}, v{r}, v{r} row_shr:{sh} row_mask:0xf bank_mask:0xf")
    return o

def gemv16(a, nvec, vecregs, wregs, accbase):
    for v in range(nvec):
        for k in range(8): a(f"v_mov_b32 v{accbase+8*v+k}, 0")
    for i in range(4):
        for v in range(nvec):
            lo,hi=vecregs[v][i]
            for k in range(4):
                a(f"v_dot2c_f32_bf16 v{accbase+8*v+2*k}, v{wregs[i]+k}, v{lo}")
                a(f"v_dot2c_f32_bf16 v{accbase+8*v+2*k+1}, v{wregs[i]+k}, v{hi}")

def silu_pack(a,c,lo,hi,t):
    a(f"""v_lshlrev_b32 v{c}, 16, v{c}
v_mul_f32 v{t}, {f32(-1.4426950408889634)}, v{c}
v_exp_f32 v{t}, v{t}
v_add_f32 v{t}, 1.0, v{t}
v_rcp_f32 v{t}, v{t}
v_mul_f32 v{t}, v{c}, v{t}
v_cvt_pk_bf16_f32 v{lo}, v{t}, 0
v_lshlrev_b32 v{hi}, 16, v{lo}""")

def mod_tile_loads(a):
    a(f"""v_lshrrev_b32 v4, 3, v1
s_lshl_b32 s34, s35, 5
v_add_u32 v4, s34, v4
v_mul_u32_u24 v5, 6144, v4
v_and_b32 v6, 7, v1
v_lshlrev_b32 v6, 4, v6
v_add_u32 v5, v5, v6
v_lshlrev_b32 v4, 1, v4
s_lshl_b32 s34, s33, 7""")
    for i in range(4):
        a(f"buffer_load_dwordx4 v[{36+4*i}:{39+4*i}], v5, s[{SRD_B}:{SRD_B+3}], s34 offen")
        if i<3: a(f"s_add_u32 s34, s34, {8*6144}")
    for i in range(4):
        a(f"buffer_load_ushort v{52+i}, v4, s[{SRD_C}:{SRD_C+3}], 0 offen offset:{16*i}")

def mod_tile_compute(a):
    for i in range(4): silu_pack(a,52+i,100+2*i,101+2*i,56)
    gemv16(a,1,[[(100+2*i,101+2*i) for i in range(4)]],[36+4*i for i in range(4)],110)
    a("s_nop 1")
    for k in range(4): a(f"v_permlane32_swap_b32 v{110+2*k}, v{111+2*k}")
    for k in range(4): a(f"v_add_f32 v{110+2*k}, v{110+2*k}, v{111+2*k}")
    a("""s_nop 1
v_permlane16_swap_b32 v110, v112
v_permlane16_swap_b32 v114, v116
v_add_f32 v110, v110, v112
v_add_f32 v114, v114, v116
s_nop 1
v_add_f32_dpp v110, v110, v110 row_ror:8 row_mask:0xf bank_mask:0xf
v_add_f32_dpp v114, v114, v114 row_ror:8 row_mask:0xf bank_mask:0xf""")
    a(f"""v_bfe_u32 v6, v1, 3, 1
v_cmp_eq_u32 vcc, 1, v6
v_cndmask_b32 v118, v110, v114, vcc
v_mov_b32 v119, s{S_TAG}
v_and_b32 v7, 7, v1
v_lshlrev_b32 v7, 3, v7
v_lshlrev_b32 v6, 2, v6
v_bfe_u32 v8, v1, 4, 1
v_lshlrev_b32 v8, 1, v8
v_lshrrev_b32 v9, 5, v1
v_add3_u32 v7, v7, v6, v8
v_add_u32 v7, v7, v9
v_lshlrev_b32 v7, 3, v7                 ; *8 bytes
s_mul_i32 s30, s35, {3072*8}
s_lshl_b32 s31, s33, 9
s_add_u32 s30, s30, s31
s_add_u32 s30, s30, {OFF_MODP}
buffer_store_dwordx2 v[118:119], v7, s[{SRD_WS}:{SRD_WS+3}], s30 offen sc1""")

def h_p1(a):
    a("L_H_P1:")
    if 'noprio' not in EXP: a("s_setprio 3")
    a(f"s_sub_u32 s28, s{S_WAVE}, 4            ; hw")
    srd(a,SRD_A,P_X,2097152)
    a(f"""v_and_b32 v2, 1, v1
v_lshlrev_b32 v2, 12, v2                ; 4*(l&1)*1024
v_lshrrev_b32 v3, 1, v1
s_lshl_b32 s29, s28, 6
v_add_u32 v3, s29, v3
v_lshlrev_b32 v3, 2, v3
v_add_u32 v2, v2, v3
s_lshl_b32 s30, s2, 13                  ; j*8192""")
    if 'gather' not in EXP:
        for i in range(2):
            for k in range(4):
                a(f"buffer_load_dword v{10+4*i+k}, v2, s[{SRD_A}:{SRD_A+3}], s30 offen offset:{128*i+1024*k}")
    a(f"""s_lshl_b32 s32, s28, 11
s_add_u32 s32, s32, s30
v_lshlrev_b32 v3, 4, v1
buffer_load_dwordx4 v[26:29], v3, s[{SRD_A}:{SRD_A+3}], s32 offen
buffer_load_dwordx4 v[30:33], v3, s[{SRD_A}:{SRD_A+3}], s32 offen offset:1024""")
    if 'w2late' not in EXP: w2_loads(a)
    srd(a,SRD_B,P_WM,3145728)
    srd(a,SRD_C,P_C,1024)
    l7=a.lab("L_t7"); lt=a.lab("L_tj")
    a(f"""s_cmp_eq_u32 s28, 3
s_cbranch_scc1 {l7}
s_lshl_b32 s33, s2, 1
s_add_u32 s33, s33, s28
s_sub_u32 s33, s33, 1                   ; tau
s_lshr_b32 s35, s33, 5
s_and_b32 s33, s33, 31
s_add_u32 s33, s33, 16
s_branch {lt if 'allearly' not in EXP else lt+'x'}
{l7}:
s_and_b32 s33, s2, 15
s_lshr_b32 s35, s2, 4""")
    if 'allearly' in EXP:
        lz=a.lab("L_tz")
        a(f"{lt}x:\ns_cmp_eq_u32 s28, 0\ns_cbranch_scc1 {lt}")
    mod_tile_loads(a)
    a(f"""{lt}:
v_mov_b32 v8, 0
v_mov_b32 v9, 0
v_mov_b32 v34, {L_CNT}
ds_write_b64 v34, v[8:9]
ds_write_b64 v34, v[8:9] offset:8
ds_write_b64 v34, v[8:9] offset:16
ds_write_b64 v34, v[8:9] offset:24
ds_write_b64 v34, v[8:9] offset:32
ds_write_b64 v34, v[8:9] offset:40
ds_write_b64 v34, v[8:9] offset:48
s_waitcnt lgkmcnt(0)
s_barrier""")
    lm=a.lab("L_hasmod"); lm2=a.lab("L_w")
    a(f"""{'s_cmp_lg_u32 s28, 0' if 'allearly' in EXP else 's_cmp_eq_u32 s28, 3'}
s_cbranch_scc1 {lm}
s_waitcnt vmcnt({2 if 'gather' in EXP else 4})
s_branch {lm2}
{lm}:
s_waitcnt vmcnt({10 if 'gather' in EXP else 12})
{lm2}:""")
    stamp(a,2)
    a(f"""v_lshlrev_b32 v2, 4, v1
s_lshl_b32 s30, s2, 13
s_lshl_b32 s31, s28, 11
s_add_u32 s30, s30, s31
s_add_u32 s30, s30, {OFF_XT}""")
    if 'gather' not in EXP:
        for i in range(2):
            a(f"buffer_store_dwordx4 v[{10+4*i}:{13+4*i}], v2, s[{SRD_WS}:{SRD_WS+3}], s30 offen offset:{1024*i} sc1")
    get_tag(a)
    ln=a.lab("L_no56"); l1=a.lab("L_w56"); l2=a.lab("L_w7"); l3=a.lab("L_wj")
    if 'allearly' in EXP:
        a(f"s_cmp_eq_u32 s28, 0\ns_cbranch_scc1 {ln}\ns_branch {l2}")
    else:
        a(f"""s_cmp_eq_u32 s28, 0
s_cbranch_scc1 {ln}
s_cmp_eq_u32 s28, 3
s_cbranch_scc1 {l2}""")
        mod_tile_loads(a)
    if 'w2late' in EXP:
        a(f"""{l2}:
s_waitcnt vmcnt(10)
s_branch {l3}
{ln}:
s_waitcnt vmcnt(2)
{l3}:""")
    elif 'gather' in EXP:
        a(f"{l2}:\n{ln}:")
    else:
        a(f"""{l2}:
s_waitcnt vmcnt(12)
s_branch {l3}
{ln}:
s_waitcnt vmcnt(4)
{l3}:""")
    X=60
    for t in range(2):
        for k in range(4):
            a(f"v_lshlrev_b32 v{X+8*t+2*k}, 16, v{26+4*t+k}")
            a(f"v_and_b32 v{X+8*t+2*k+1}, 0xffff0000, v{26+4*t+k}")
    for t in range(2):
        a(f"v_add_f32 v{84+t}, v{X+8*t}, v{X+8*t+1}")
    for k in range(2,8):
        for t in range(2): a(f"v_add_f32 v{84+t}, v{84+t}, v{X+8*t+k}")
    for l in dpp_reduce([84,85]): a(l)
    a(f"""v_readlane_b32 s74, v84, 63
v_readlane_b32 s75, v85, 63
s_mov_b32 s76, {f32(1/512)}
v_mov_b32 v84, s74
v_mov_b32 v85, s75
v_mul_f32 v84, s76, v84
v_mul_f32 v85, s76, v85""")
    for k in range(8):
        for t in range(2): a(f"v_sub_f32 v{X+8*t+k}, v{X+8*t+k}, v{84+t}")
    for t in range(2):
        a(f"v_mul_f32 v{86+t}, v{X+8*t}, v{X+8*t}")
    for k in range(1,8):
        for t in range(2): a(f"v_fmac_f32 v{86+t}, v{X+8*t+k}, v{X+8*t+k}")
    for l in dpp_reduce([86,87]): a(l)
    a(f"""v_mul_f32 v86, s76, v86
v_mul_f32 v87, s76, v87
v_cvt_pk_bf16_f32 v88, v86, v87         ; bf16(var)
v_lshlrev_b32 v86, 16, v88
v_and_b32 v87, 0xffff0000, v88
v_add_f32 v86, {f32(1e-5)}, v86
v_add_f32 v87, {f32(1e-5)}, v87
v_cvt_pk_bf16_f32 v88, v86, v87
v_lshlrev_b32 v86, 16, v88
v_and_b32 v87, 0xffff0000, v88
v_sqrt_f32 v86, v86
v_sqrt_f32 v87, v87
v_cvt_pk_bf16_f32 v90, v84, v86         ; token0: (m, s)
v_cvt_pk_bf16_f32 v92, v85, v87         ; token1
v_mov_b32 v91, s{S_TAG}
v_mov_b32 v93, s{S_TAG}
s_lshl_b32 s30, s2, 6
s_lshl_b32 s31, s28, 4
s_add_u32 s30, s30, s31
s_add_u32 s30, s30, {OFF_STAT}
v_mov_b32 v94, 0""")
    lx=a.lab("L_x8"); ly=a.lab("L_x0")
    a(f"""s_cmp_eq_u32 s28, {1 if 'allearly' not in EXP else 9}
s_cbranch_scc1 {lx}
s_cmp_eq_u32 s28, {2 if 'allearly' not in EXP else 9}
s_cbranch_scc1 {lx}
{'s_nop 0' if 'gather' in EXP else 's_waitcnt vmcnt(0)'}
s_branch {ly}
{lx}:
s_waitcnt vmcnt(8)
{ly}:
s_mov_b32 exec_lo, 0
s_mov_b32 exec_hi, 0x80000000
buffer_store_dwordx4 v[90:93], v94, s[{SRD_WS}:{SRD_WS+3}], s30 offen sc1
s_mov_b64 exec, -1""")
    stamp(a,3)
    lend=a.lab("L_nomodc"); lw2=a.lab("L_w2go")
    a(f"s_cmp_eq_u32 s28, 0\ns_cbranch_scc1 {lend}")
    a("s_waitcnt vmcnt(1)")
    mod_tile_compute(a)
    a(f"{lend}:")
    w1_loads(a)
    if 'gather' in EXP: a("s_waitcnt vmcnt(3)")
    w2_prep(a)
    if 'gather' in EXP:
        srd(a,SRD_A,P_X,2097152)
        a(f"""v_lshlrev_b32 v2, 11, v1                ; 2l*1024
s_lshl_b32 s30, s28, 19                 ; 512hw*1024
s_lshl_b32 s31, s{S_P}, 2
s_add_u32 s30, s30, s31""")
        for i in range(4):
            a(f"buffer_load_dword v{10+2*i}, v2, s[{SRD_A}:{SRD_A+3}], s30 offen")
            a(f"buffer_load_dword v{11+2*i}, v2, s[{SRD_A}:{SRD_A+3}], s30 offen offset:1024")
            if i<3: a(f"s_add_u32 s30, s30, {128*1024}")
    stamp(a,4)
    h_build(a)

def tagcheck(a, regs, lab_ok, lab_retry, T=(250,251,252)):
    t0,t1,t2=T
    a(f"v_xor_b32 v{t0}, s{S_TAG}, v{regs[0]}")
    rest=regs[1:]
    i=0
    while i<len(rest):
        a(f"v_xor_b32 v{t1}, s{S_TAG}, v{rest[i]}")
        if i+1<len(rest):
            a(f"v_xor_b32 v{t2}, s{S_TAG}, v{rest[i+1]}\nv_or3_b32 v{t0}, v{t0}, v{t1}, v{t2}"); i+=2
        else:
            a(f"v_or_b32 v{t0}, v{t0}, v{t1}"); i+=1
    a(f"""v_cmp_ne_u32 vcc, 0, v{t0}
s_cbranch_vccz {lab_ok}
s_sub_u32 s99, s99, 1
s_cmp_eq_u32 s99, 0
s_cbranch_scc1 {lab_ok}
s_sleep {PSL}
s_branch {lab_retry}
{lab_ok}:""")

def h_build(a):
    a(f"""s_mov_b32 s99, {SPIN}
v_lshrrev_b32 v2, 2, v1                 ; l>>2
s_lshl_b32 s29, s28, 6
v_add_u32 v2, s29, v2
v_and_b32 v3, 3, v1                     ; q
v_lshlrev_b32 v4, 13, v2
v_lshlrev_b32 v5, 3, v3
v_add_u32 v4, v4, v5                    ; tb*8192 + 8q
v_lshlrev_b32 v5, 4, v3
s_lshl_b32 s33, s{S_P}, 5
s_add_u32 s33, s33, {OFF_XT}
v_lshlrev_b32 v6, 6, v2
v_add_u32 v6, v6, v5                    ; tb*64 + 16q
v_and_b32 v7, 15, v1
v_mul_u32_u24 v7, {3072*8}, v7          ; rb
v_lshrrev_b32 v8, 4, v1
v_lshlrev_b32 v9, 12, v8
v_add_u32 v70, v7, v9                   ; groups 2..5
v_and_b32 v9, 0x1000, v9
v_add_u32 v7, v7, v9                    ; groups 0,1
s_lshl_b32 s31, s{S_P}, 4
s_add_u32 s31, s31, {OFF_MODP}
s_add_u32 s30, s31, {2*4096}""")
    lr=a.lab("L_pollx"); ok=a.lab("L_okx"); lf1=a.lab("L_nof1w")
    a("s_waitcnt vmcnt(8)" if 'gather' in EXP else "s_waitcnt vmcnt(0)")
    stamp(a,40)
    a("v_mov_b32 v71, v7\nv_mov_b32 v72, v8\nv_mov_b32 v73, v9\nv_mov_b32 v74, v2\nv_mov_b32 v75, v3\ns_mov_b32 s96, s30")
    last_arriver(a,E_W2,4,lf1)
    store_flag(a,OFF_F1W)
    a(f"{lf1}:")
    a("v_mov_b32 v7, v71\nv_mov_b32 v8, v72\nv_mov_b32 v9, v73\nv_mov_b32 v2, v74\nv_mov_b32 v3, v75\ns_mov_b32 s30, s96")
    if 'xsl' in EXP: a(f"s_sleep {os.environ.get('XSL','8')}")
    a(f"{lr}:")
    a(f"s_mov_b32 s32, {OFF_STAT}")
    for i in range(4):
        a(f"buffer_load_dwordx4 v[{26+4*i}:{29+4*i}], v6, s[{SRD_WS}:{SRD_WS+3}], s32 offen offset:{1024*i} sc1")
    a(f"""buffer_load_dwordx4 v[42:45], v7, s[{SRD_WS}:{SRD_WS+3}], s31 offen sc1
buffer_load_dwordx4 v[128:131], v70, s[{SRD_WS}:{SRD_WS+3}], s30 offen sc1
s_waitcnt vmcnt(0)""")
    tagcheck(a,[27+2*k for k in range(10)]+[129,131],ok,lr)
    stamp(a,6)
    if STAMPS: a("v_writelane_b32 v254, s99, 41")
    if 'gather' not in EXP:
        a("s_mov_b32 s32, s33")
        for i in range(4):
            a(f"buffer_load_dwordx2 v[{10+2*i}:{11+2*i}], v4, s[{SRD_WS}:{SRD_WS+3}], s32 offen{BS}")
            if i<3: a(f"s_add_u32 s32, s32, {16*8192}")
    side_compute(a)
    stamp(a,42)
    for l in dpp_reduce_rows([42,44]): a(l)
    a(f"""v_cvt_pk_bf16_f32 v46, v42, v44
s_nop 0
v_readlane_b32 s74, v46, 15
v_readlane_b32 s75, v46, 31
s_lshl_b32 s76, s74, 16
s_and_b32 s77, s74, 0xffff0000
v_mov_b32 v54, s76
v_mov_b32 v55, s77
s_lshl_b32 s76, s75, 16
s_and_b32 s77, s75, 0xffff0000
v_add_f32 v46, s76, 1.0
v_add_f32 v48, s77, 1.0
v_cvt_pk_bf16_f32 v50, v46, v48
v_lshlrev_b32 v52, 16, v50
v_and_b32 v53, 0xffff0000, v50          ; c1 pair v[52:53]
v_and_b32 v8, 3, v2
v_mul_u32_u24 v8, {PL}, v8
v_lshrrev_b32 v9, 2, v2
v_lshlrev_b32 v9, 4, v9
v_lshlrev_b32 v5, 2, v3
v_add3_u32 v8, v8, v9, v5
v_add_u32 v8, {L_HP+512}, v8
v_lshlrev_b32 v9, 4, v2
v_add_u32 v9, v9, v5                    ; tb*16 + 4q
v_add_u32 v9, {L_XP}, v9
s_mov_b32 s74, 0x05040100
s_mov_b32 s75, 0x07060302""")
    for i in range(4):
        X0=10+2*i; X1=X0+1; S0=26+4*i; S1=S0+2
        if i==0:
            lq=a.lab("L_xq"); lq2=a.lab("L_xq2")
            if 'gather' not in EXP: a(f"s_cmp_eq_u32 s28, 0\ns_cbranch_scc1 {lq}\ns_waitcnt vmcnt(2)\ns_branch {lq2}\n{lq}:\ns_waitcnt vmcnt(4)\n{lq2}:")
            stamp(a,43)
        a(f"""v_lshlrev_b32 v56, 16, v{S0}
v_and_b32 v57, 0xffff0000, v{S0}
v_lshlrev_b32 v58, 16, v{S1}
v_and_b32 v59, 0xffff0000, v{S1}
v_rcp_f32 v57, v57
v_rcp_f32 v59, v59
v_lshlrev_b32 v60, 16, v{X0}
v_and_b32 v61, 0xffff0000, v{X0}
v_lshlrev_b32 v62, 16, v{X1}
v_and_b32 v63, 0xffff0000, v{X1}
v_pk_add_f32 v[60:61], v[60:61], v[56:57] op_sel_hi:[1,0] neg_lo:[0,1] neg_hi:[0,1]
v_pk_add_f32 v[62:63], v[62:63], v[58:59] op_sel_hi:[1,0] neg_lo:[0,1] neg_hi:[0,1]
v_pk_mul_f32 v[60:61], v[60:61], v[56:57] op_sel:[0,1] op_sel_hi:[1,1]
v_pk_mul_f32 v[62:63], v[62:63], v[58:59] op_sel:[0,1] op_sel_hi:[1,1]
v_pk_fma_f32 v[60:61], v[60:61], v[52:53], v[54:55]
v_pk_fma_f32 v[62:63], v[62:63], v[52:53], v[54:55]
v_perm_b32 v66, v{X1}, v{X0}, s74
v_perm_b32 v67, v{X1}, v{X0}, s75
v_cvt_pk_bf16_f32 v64, v60, v62
v_cvt_pk_bf16_f32 v65, v61, v63
ds_write_b32 v8, v64 offset:{64*i}
ds_write_b32 v8, v65 offset:{HCH+64*i}
ds_write_b32 v9, v66 offset:{256*i}
ds_write_b32 v9, v67 offset:{4096+256*i}""")
    a("s_waitcnt lgkmcnt(0)")
    if 'noprio' not in EXP: a("s_setprio 0")
    stamp(a,44)
    a("s_barrier")
    stamp(a,7)


def m_conv(a):
    a(f"""s_lshr_b32 s28, s{S_WAVE}, 1          ; ch
s_and_b32 s29, s{S_WAVE}, 1             ; m half
v_and_b32 v2, 31, v1                    ; i / a'
v_lshrrev_b32 v3, 5, v1                 ; hi
v_sub_u32 v4, 3, v2
v_and_b32 v4, 3, v4                     ; s = (3-i)&3
v_mul_u32_u24 v5, {CS}, v4
v_lshlrev_b32 v6, 3, v3                 ; 8hi
v_sub_u32 v6, v6, v2
v_sub_u32 v6, v6, v4
v_add_u32 v6, 2047, v6                  ; 2047 - i + 8hi - s
v_lshlrev_b32 v6, 1, v6
s_mul_i32 s30, s28, {KCH}
s_mul_i32 s31, s29, {32*32}
s_sub_u32 s30, s30, s31
s_add_u32 s30, s30, {L_KC+16+32-32*31-2048}
v_add3_u32 v10, v5, v6, s30             ; A base
v_mul_u32_u24 v5, {PL}, v3
v_lshlrev_b32 v6, 4, v2
s_mul_i32 s30, s28, {HCH}
s_lshl_b32 s31, s29, 8                  ; 16 entries * 16B
s_sub_u32 s30, s30, s31
s_add_u32 s30, s30, {L_HP+(32-15)*16}
v_add3_u32 v11, v5, v6, s30             ; B base""")
    a(f"""s_lshl_b32 s34, s{S_P}, 2
v_mov_b32 v137, s34
global_load_dword v136, v137, s[{P_DSK}:{P_DSK+1}]""")
    NB=3; FB=48
    def reads(it):
        b=FB+16*(it%NB)
        oa=32*(31-it)
        ob=(15-it//2)*16+(2*PL if it%2==0 else 0)
        return [f"ds_read_b64 v[{b}:{b+1}], v10 offset:{oa+2048}",
                f"ds_read_b64 v[{b+2}:{b+3}], v10 offset:{oa+2048+8}",
                f"ds_read_b128 v[{b+8}:{b+11}], v11 offset:{ob}",
                f"ds_read_b128 v[{b+12}:{b+15}], v11 offset:{ob+512}",
                f"ds_read_b64 v[{b+4}:{b+5}], v10 offset:{oa}",
                f"ds_read_b64 v[{b+6}:{b+7}], v10 offset:{oa+8}"]
    A0=16; A1=32
    if 'cprio' in EXP: a("s_setprio 2")
    for l in reads(0)+reads(1): a(l)
    for it in range(32):
        b=FB+16*(it%NB)
        nxt=reads(it+2) if it+2<32 else []
        c0="0" if it==0 else f"v[{A0}:{A0+15}]"
        c1="0" if it==0 else f"v[{A1}:{A1+15}]"
        m0=f"v_mfma_f32_32x32x16_bf16 v[{A0}:{A0+15}], v[{b}:{b+3}], v[{b+8}:{b+11}], {c0}"
        m1=f"v_mfma_f32_32x32x16_bf16 v[{A1}:{A1+15}], v[{b}:{b+3}], v[{b+12}:{b+15}], {c1}"
        m2=f"v_mfma_f32_32x32x16_bf16 v[{A1}:{A1+15}], v[{b+4}:{b+7}], v[{b+8}:{b+11}], v[{A1}:{A1+15}]"
        rem = 6 if it+1<32 else 0
        a(f"s_waitcnt lgkmcnt({rem})")
        if 'cord1' in EXP:
            a(m1)
            for l in nxt[:2]: a(l)
            a(m0)
            for l in nxt[2:4]: a(l)
            a(m2)
            for l in nxt[4:]: a(l)
        elif 'cord2' in EXP:
            a(m0); a(m1)
            for l in nxt[:3]: a(l)
            a(m2)
            for l in nxt[3:]: a(l)
        else:
            a(m0)
            for l in nxt[:2]: a(l)
            a(m1)
            for l in nxt[2:4]: a(l)
            a(m2)
            for l in nxt[4:]: a(l)
    if 'cprio' in EXP: a("s_setprio 0")
    a(f"""v_mul_u32_u24 v4, 144, v2
v_lshlrev_b32 v5, 4, v3
s_mul_i32 s30, s{S_WAVE}, {YW}
s_add_u32 s30, s30, {L_Y}
v_add3_u32 v4, v4, v5, s30""")
    for g in range(4): a(f"ds_write_b128 v4, v[{A0+4*g}:{A0+4*g+3}] offset:{32*g}")
    for g in range(4): a(f"ds_write_b128 v4, v[{A1+4*g}:{A1+4*g+3}] offset:{4608+32*g}")
    stamp(a,8)
    ev_add(a,E_Y)
    ev_wait(a,E_Y,4)
    ev_wait(a,E_GA,1)
    stamp(a,9)

def poll16(a, dst, soff_expr_sgpr, lab):
    lr=a.lab(lab+"r"); ok=a.lab(lab+"k")
    a(f"""{lr}:
buffer_load_dwordx4 v[{dst}:{dst+3}], v249, s[{SRD_WS}:{SRD_WS+3}], {soff_expr_sgpr} offen sc1
s_waitcnt vmcnt(0)""")
    tagcheck(a,[dst+1,dst+3],ok,lr)

def w1_loads(a):
    srd(a,SRD_A,P_W1,512*2752)
    a(f"""s_lshr_b32 s29, s28, 1
s_lshl_b32 s30, s{S_P}, 1
s_add_u32 s30, s30, s29                 ; d
s_mul_i32 s31, s30, 2752
s_and_b32 s32, s28, 1
s_mul_i32 s32, s32, {86*16}
s_add_u32 s31, s31, s32
v_lshlrev_b32 v68, 4, v1
buffer_load_dwordx4 v[160:163], v68, s[{SRD_A}:{SRD_A+3}], s31 offen
buffer_load_dwordx4 v[164:167], v68, s[{SRD_A}:{SRD_A+3}], s31 offen offset:1024""")

def w2_loads(a):
    srd(a,SRD_C,P_W2,1376*1024)
    a(f"""s_lshl_b32 s74, s28, 8
s_add_u32 s74, s74, s2                  ; g
s_mul_hi_u32 s75, s74, {(2**32+85)//86} ; dtile
s_mul_i32 s76, s75, 86
s_sub_u32 s76, s74, s76                 ; ks
s_lshl_b32 s76, s76, 14
s_lshl_b32 s75, s75, 6
s_add_u32 s76, s76, s75
v_lshrrev_b32 v69, 2, v1
v_lshlrev_b32 v69, 10, v69
v_and_b32 v70, 3, v1
v_lshlrev_b32 v70, 4, v70
v_add_u32 v69, v69, v70
buffer_load_dwordx4 v[168:171], v69, s[{SRD_C}:{SRD_C+3}], s76 offen
s_add_u32 s74, s74, 1024                ; g2
s_mul_hi_u32 s75, s74, {(2**32+85)//86}
s_mul_i32 s76, s75, 86
s_sub_u32 s76, s74, s76
s_lshl_b32 s76, s76, 14
s_lshl_b32 s75, s75, 6
s_add_u32 s76, s76, s75
buffer_load_dwordx4 v[172:175], v69, s[{SRD_C}:{SRD_C+3}], s76 offen""")

def w2_prep(a):
    a(f"""s_sub_u32 s28, s{S_WAVE}, 4
s_lshl_b32 s33, s28, 8
s_add_u32 s33, s33, s2                  ; g
s_lshl_b32 s34, s28, 10
s_add_u32 s34, s34, {L_W2S}
v_lshlrev_b32 v4, 4, v1
v_add_u32 v4, s34, v4                   ; staging write addr
v_lshrrev_b32 v7, 5, v1                 ; hi
v_lshlrev_b32 v7, 2, v7
v_bfe_u32 v8, v1, 2, 2                  ; r
v_add_u32 v7, v7, v8
v_lshlrev_b32 v7, 6, v7                 ; (4hi+r)*64
v_bfe_u32 v8, v1, 4, 1                  ; nh
v_lshlrev_b32 v8, 5, v8
v_and_b32 v9, 3, v1
v_lshlrev_b32 v9, 3, v9
v_add3_u32 v7, v7, v8, v9
v_add_u32 v7, s34, v7
v_lshlrev_b32 v8, 4, v1
s_lshl_b32 s35, s33, 10
s_add_u32 s35, s35, {OFF_W2F}
ds_write_b128 v4, v[168:171]
s_waitcnt lgkmcnt(0)
ds_read_b64_tr_b16 v[28:29], v7
ds_read_b64_tr_b16 v[30:31], v7 offset:512
s_waitcnt lgkmcnt(0)
buffer_store_dwordx4 v[28:31], v8, s[{SRD_WS}:{SRD_WS+3}], s35 offen sc1""")
    l2=a.lab("L_now2")
    a(f"""s_add_u32 s74, s33, 1024
s_cmp_ge_u32 s74, 1376
s_cbranch_scc1 {l2}
s_add_u32 s35, s35, {1024*1024}
ds_write_b128 v4, v[172:175]
s_waitcnt lgkmcnt(0)
ds_read_b64_tr_b16 v[32:33], v7
ds_read_b64_tr_b16 v[34:35], v7 offset:512
s_waitcnt lgkmcnt(0)
buffer_store_dwordx4 v[32:35], v8, s[{SRD_WS}:{SRD_WS+3}], s35 offen sc1
{l2}:""")

def ev_add(a, off, t=(7,8)):
    a(f"""v_mov_b32 v{t[0]}, 1
v_mov_b32 v{t[1]}, {L_CNT+off}
s_waitcnt lgkmcnt(0)
s_mov_b64 exec, 1
ds_add_u32 v{t[1]}, v{t[0]}
s_mov_b64 exec, -1""")

def ev_wait(a, off, val, t=(8,9), slp=1):
    ls=a.lab("L_evs"); lk=a.lab("L_evk")
    a(f"""v_mov_b32 v{t[0]}, {L_CNT+off}
s_mov_b32 s99, {SPIN*8}
{ls}:
ds_read_b32 v{t[1]}, v{t[0]}
s_waitcnt lgkmcnt(0)
v_readfirstlane_b32 s79, v{t[1]}
s_cmp_ge_u32 s79, {val}
s_cbranch_scc1 {lk}
s_sub_u32 s99, s99, 1
s_cmp_eq_u32 s99, 0
s_cbranch_scc1 {lk}
{"s_sleep 1" if slp else "s_nop 0"}
s_branch {ls}
{lk}:""")

def last_arriver(a, cnt_off, n, lab_not_last):
    a(f"""v_mov_b32 v7, 1
v_mov_b32 v8, {L_CNT+cnt_off}
s_waitcnt lgkmcnt(0)
s_mov_b64 exec, 1
ds_add_rtn_u32 v9, v8, v7
s_mov_b64 exec, -1
s_waitcnt lgkmcnt(0)
v_readfirstlane_b32 s30, v9
s_cmp_eq_u32 s30, {n-1}
s_cbranch_scc0 {lab_not_last}""")

def store_flag(a, off):
    a(f"""s_lshl_b32 s30, s2, 4
s_add_u32 s30, s30, {off}
v_mov_b32 v2, s{S_TAG}
v_mov_b32 v3, 0
s_mov_b64 exec, 1
buffer_store_dword v2, v3, s[{SRD_WS}:{SRD_WS+3}], s30 offen sc1
s_mov_b64 exec, -1""")

def poll_flags256(a, off, lab):
    lr=a.lab(lab+"r"); ok=a.lab(lab+"k")
    a(f"""v_lshlrev_b32 v2, 4, v1
s_mov_b32 s31, {off}
{lr}:""")
    for i in range(4): a(f"buffer_load_dword v{10+i}, v2, s[{SRD_WS}:{SRD_WS+3}], s31 offen offset:{1024*i} sc1")
    a("s_waitcnt vmcnt(0)")
    tagcheck(a,[10,11,12,13],ok,lr)

def side_compute(a):
    for l in dpp_reduce_rows([128,130]): a(l)
    a(f"""v_cvt_pk_bf16_f32 v206, v128, v130
s_nop 0
v_readlane_b32 s74, v206, 15
v_readlane_b32 s75, v206, 31
v_readlane_b32 s76, v206, 47
v_readlane_b32 s77, v206, 63
s_lshl_b32 s32, s76, 16
s_and_b32 s33, s76, 0xffff0000
v_add_f32 v180, s32, 1.0
v_add_f32 v181, s33, 1.0
v_cvt_pk_bf16_f32 v182, v180, v181
v_lshlrev_b32 v180, 16, v182
v_and_b32 v181, 0xffff0000, v182          ; c1 pair
v_mov_b32 v183, 0x21800000               ; 2^-60 stands in for an exact zero scale
v_cmp_eq_f32 vcc, 0, v180
v_cndmask_b32 v180, v180, v183, vcc
v_cmp_eq_f32 vcc, 0, v181
v_cndmask_b32 v181, v181, v183, vcc
s_lshr_b32 s29, s28, 1
s_cmp_eq_u32 s29, 0
s_cselect_b64 s[32:33], -1, 0
v_cndmask_b32 v186, v181, v180, s[32:33]""")
    for h in range(2):
        for k in range(4):
            r=160+4*h+k
            a(f"""v_lshlrev_b32 v190, 16, v{r}
v_and_b32 v191, 0xffff0000, v{r}
v_mul_f32 v190, v190, v186
v_mul_f32 v191, v191, v186
v_cvt_pk_bf16_f32 v{r}, v190, v191""")
    a(f"""s_lshl_b32 s30, s{S_P}, 1
s_add_u32 s30, s30, s29
s_mul_i32 s31, s30, 192
s_add_u32 s31, s31, {OFF_W1P}
s_and_b32 s32, s28, 1
s_mul_i32 s32, s32, 86
v_add_u32 v210, s32, v1
v_add_u32 v215, 64, v210""")
    for r in (210,215):
        a(f"""v_mul_u32_u24 v216, 5462, v{r}
v_lshrrev_b32 v216, 16, v216            ; c/12
v_mul_u32_u24 v217, 12, v216
v_sub_u32 v217, v{r}, v217
v_mul_u32_u24 v216, 98304, v216
v_lshlrev_b32 v217, 4, v217
v_add_u32 v{r}, v216, v217""")
    a(f"""buffer_store_dwordx4 v[160:163], v210, s[{SRD_WS}:{SRD_WS+3}], s31 offen sc1
s_mov_b64 exec, 0x3fffff
buffer_store_dwordx4 v[164:167], v215, s[{SRD_WS}:{SRD_WS+3}], s31 offen sc1
s_mov_b64 exec, -1""")
    lw=a.lab("L_notw4")
    a(f"""s_cmp_lg_u32 s28, 0
s_cbranch_scc1 {lw}
s_lshl_b32 s32, s75, 16
s_and_b32 s33, s75, 0xffff0000
v_rcp_f32 v184, v180
v_rcp_f32 v185, v181
v_mov_b32 v187, s32
v_mov_b32 v188, s33
v_mul_f32 v189, v187, v184
v_mul_f32 v190, v188, v185
v_fma_f32 v191, -v189, v180, v187
v_fma_f32 v192, -v190, v181, v188
v_fmac_f32 v189, v191, v184
v_fmac_f32 v190, v192, v185
v_cvt_pk_bf16_f32 v193, v189, v190
v_lshlrev_b32 v191, 16, v193
v_and_b32 v192, 0xffff0000, v193
v_sub_f32 v189, v189, v191
v_sub_f32 v190, v190, v192
v_cvt_pk_bf16_f32 v194, v189, v190
s_mov_b32 s32, 0x05040100
s_mov_b32 s33, 0x07060302
v_perm_b32 v196, v194, v193, s32
v_perm_b32 v197, v194, v193, s33           ; ch1
s_lshl_b32 s32, s77, 16
s_and_b32 s33, s77, 0xffff0000
v_mov_b32 v198, s32
v_mov_b32 v199, s33
s_lshl_b32 s32, s74, 16
s_and_b32 s33, s74, 0xffff0000
v_mov_b32 v200, s32
v_mov_b32 v201, s33
v_mov_b32 v211, 0
v_mov_b32 v212, {L_GA}
s_lshl_b32 s30, s{S_P}, 3
s_add_u32 s31, s30, {OFF_FING}
s_add_u32 s30, s30, {OFF_FINS}
s_mov_b64 exec, 1
buffer_store_dwordx2 v[196:197], v211, s[{SRD_WS}:{SRD_WS+3}], s30 offen sc1
buffer_store_dwordx2 v[198:199], v211, s[{SRD_WS}:{SRD_WS+3}], s31 offen sc1
ds_write_b64 v212, v[200:201]
s_mov_b64 exec, -1""")
    ev_add(a,E_GA,t=(213,214))
    a(f"{lw}:")

def h_side(a):
    lnf=a.lab("L_nof2w")
    a("s_waitcnt vmcnt(0)")
    last_arriver(a,E_SIDE,4,lnf)
    store_flag(a,OFF_F2W)
    a(f"{lnf}:")
    stamp(a,8)

def w1_stream(a,g0,g1):
    a(f"""v_lshlrev_b32 v10, 4, v1
s_sub_u32 s74, s30, 1
s_lshl_b32 s74, s74, 10
s_add_u32 s33, s74, {g0*3072}
s_mul_i32 s31, s29, 98304
s_add_u32 s31, s31, {OFF_W1P}
s_add_u32 s31, s31, s33""")
    for g in range(g0,g1):
        a(f"""s_mov_b32 m0, s33
buffer_load_dwordx4 v10, s[{SRD_WS}:{SRD_WS+3}], s31 offen{BS} lds""")
        if g<g1-1: a(f"s_add_u32 s31, s31, 3072\ns_add_u32 s33, s33, 3072")

def m_epilogue(a):
    a(f"""v_and_b32 v2, 255, v0                   ; tb
v_lshrrev_b32 v3, 2, v2                 ; a
v_and_b32 v4, 3, v2
v_mul_u32_u24 v5, 144, v3
v_lshlrev_b32 v6, 5, v4
v_add3_u32 v5, v5, v6, s78              ; placeholder""".replace("v_add3_u32 v5, v5, v6, s78              ; placeholder",f"v_add_u32 v5, v5, v6\nv_add_u32 v5, {L_Y}, v5"))
    a(f"""v_mul_u32_u24 v6, {PL}, v4
v_lshlrev_b32 v7, 4, v3
v_add_u32 v6, v6, v7
v_add_u32 v6, {L_HP+512}, v6            ; h addr
v_lshlrev_b32 v7, 4, v2
v_add_u32 v8, {L_XP}, v7                ; x addr""")
    for ch in range(2):
        b=80+24*ch
        a(f"""ds_read_b128 v[{b}:{b+3}], v5 offset:{2*ch*YW}
ds_read_b128 v[{b+4}:{b+7}], v5 offset:{2*ch*YW+16}
ds_read_b128 v[{b+8}:{b+11}], v5 offset:{(2*ch+1)*YW}
ds_read_b128 v[{b+12}:{b+15}], v5 offset:{(2*ch+1)*YW+16}
ds_read_b128 v[{b+16}:{b+19}], v6 offset:{ch*HCH}
ds_read_b128 v[{b+20}:{b+23}], v8 offset:{ch*4096}""")
    a(f"""v_mov_b32 v9, {L_GA}
ds_read_b64 v[132:133], v9
s_waitcnt vmcnt(0)""")
    a(f"""v_lshlrev_b32 v138, 16, v136
v_and_b32 v139, 0xffff0000, v136""")
    for ch in range(2):
        b=80+24*ch; ga=132+ch; dk=138+ch
        a(f"s_waitcnt lgkmcnt({7 if ch==0 else 0})" if False else ("s_waitcnt lgkmcnt(0)" if ch==0 else "s_nop 0"))
        for k in range(4):
            y=b+2*k
            a(f"""v_add_f32 v{y}, v{y}, v{y+8}
v_add_f32 v{y+1}, v{y+1}, v{y+9}
v_lshlrev_b32 v140, 16, v{b+16+k}
v_and_b32 v141, 0xffff0000, v{b+16+k}
v_lshlrev_b32 v142, 16, v{b+20+k}
v_and_b32 v143, 0xffff0000, v{b+20+k}
v_fmac_f32 v{y}, v140, v{dk}
v_fmac_f32 v{y+1}, v141, v{dk}
v_fma_f32 v{y}, v{y}, v{ga}, v142
v_fma_f32 v{y+1}, v{y+1}, v{ga}, v143
v_cvt_pk_bf16_f32 v{144+4*ch+k}, v{y}, v{y+1}""")
        a(f"""s_lshl_b32 s30, s{S_P}, 13
s_add_u32 s30, s30, {OFF_X2T+4096*ch}
buffer_store_dwordx4 v[{144+4*ch}:{147+4*ch}], v7, s[{SRD_WS}:{SRD_WS+3}], s30 offen sc1""")
    ev_add(a,E_STI)
    stamp(a,10)
    a("s_waitcnt vmcnt(0)")
    stamp(a,11)
    lnf=a.lab("L_nof2")
    last_arriver(a,E_EPI,4,lnf)
    store_flag(a,OFF_F2)
    a(f"{lnf}:")
    stamp(a,12)

L_W1=0
L_RING=98304
NSLOT=6
L_ST=L_STV
def poll_flags(a, off, nflag_regs, lab):
    pass

def p3_common(a):
    a(f"""s_and_b32 s28, s{S_IDX}, 3
s_and_b32 s29, s{S_XCD}, 3
s_lshl_b32 s29, s29, 2
s_add_u32 s28, s28, s29
s_lshr_b32 s29, s{S_IDX}, 2
s_lshr_b32 s79, s{S_XCD}, 2
s_lshl_b32 s79, s79, 3
s_add_u32 s29, s29, s79""")

def st_columns(a):
    lst=a.lab("L_nost")
    a(f"""s_cmp_eq_u32 s29, 15
s_cbranch_scc1 {lst}
s_sub_u32 s74, s30, 1                   ; ft
v_lshrrev_b32 v2, 5, v1                 ; hi
v_bfe_u32 v3, v1, 2, 2                  ; r
v_bfe_u32 v4, v1, 4, 1                  ; nh
v_and_b32 v5, 3, v1                     ; c
v_lshlrev_b32 v6, 3, v2
v_add_u32 v6, v6, v3                    ; 8hi + r
v_lshlrev_b32 v7, 5, v4
v_lshlrev_b32 v8, 3, v5
v_add_u32 v7, v7, v8
v_mul_u32_u24 v10, 192, v6
v_add_u32 v10, v10, v7
s_lshl_b32 s75, s74, 6
v_add_u32 v72, s75, v10                 ; A address, k-steps 0..15
v_add_u32 v73, {16*3072}, v72
v_and_b32 v13, 31, v1                   ; n
v_min_u32 v14, 3, v13
v_lshlrev_b32 v14, 10, v14
v_lshlrev_b32 v15, 4, v2
v_add_u32 v14, v14, v15
v_add_u32 v14, {L_PB}, v14
v_cmp_eq_u32 vcc, 1, v13
s_waitcnt vmcnt(0)""")
    for r in range(16):
        g=r>>2;k=r&3; src=64+2*g+(k>>1)
        a(f"v_lshlrev_b32 v74, 16, v{src}" if k%2==0 else f"v_and_b32 v74, 0xffff0000, v{src}")
        a(f"v_cndmask_b32 v{16+r}, 0, v74, vcc")
    ev_wait(a,E_W1,3,t=(76,77))
    ev_wait(a,E_PB,1,t=(76,77))
    def rd(ks):
        b=80+8*(ks%4); av=72 if ks<16 else 73; ko=(ks%16)*3072
        return [f"ds_read_b64_tr_b16 v[{b}:{b+1}], v{av} offset:{ko}", f"ds_read_b64_tr_b16 v[{b+2}:{b+3}], v{av} offset:{ko+768}",
                f"ds_read_b128 v[{b+4}:{b+7}], v14 offset:{32*ks}"]
    for k in range(3):
        for l in rd(k): a(l)
    for ks in range(32):
        b=80+8*(ks%4)
        if ks+3<32:
            for l in rd(ks+3): a(l)
        a(f"s_waitcnt lgkmcnt({3*min(3,31-ks)})")
        a(f"v_mfma_f32_32x32x16_bf16 v[16:31], v[{b}:{b+3}], v[{b+4}:{b+7}], v[16:31]")
    for r in range(16): a(f"v_mov_b32_dpp v{32+r}, v{16+r} row_shl:1 row_mask:0xf bank_mask:0xf bound_ctrl:1")
    for r in range(16): a(f"v_add_f32 v{32+r}, v{32+r}, v{16+r}")
    a(f"""v_lshlrev_b32 v75, 4, v2
s_lshl_b32 s75, s74, 7
v_add_u32 v75, s75, v75
v_add_u32 v75, {L_ST}, v75
s_mov_b32 exec_lo, 1
s_mov_b32 exec_hi, 1""")
    for g in range(4): a(f"ds_write_b128 v75, v[{16+4*g}:{19+4*g}] offset:{32*g}")
    a("s_mov_b32 exec_lo, 2\ns_mov_b32 exec_hi, 2")
    for g in range(4): a(f"ds_write_b128 v75, v[{32+4*g}:{35+4*g}] offset:{384+32*g}")
    a(f"s_mov_b64 exec, -1\ns_waitcnt lgkmcnt(0)\n{lst}:")

def h_p3(a):
    p3_common(a)
    a(f"""s_mov_b32 s99, {SPIN}
s_sub_u32 s30, s{S_WAVE}, 4             ; hw""")
    lw=a.lab("L_h3w567"); lj=a.lab("L_h3join"); lidle=a.lab("L_h3idle"); lidle2=a.lab("L_h3idle2"); lgo=a.lab("L_h3go")
    a(f"""v_lshrrev_b32 v2, 4, v1                 ; rho
v_and_b32 v3, 15, v1                    ; kappa
v_lshlrev_b32 v4, 2, v2
v_xor_b32 v3, v3, v4                    ; kappa'
v_lshlrev_b32 v3, 4, v3
v_lshlrev_b32 v2, 12, v2                ; rho*4096
v_add_u32 v120, v2, v3
v_add_u32 v121, {4*4096}, v120
s_lshl_b32 s95, s28, 8
s_add_u32 s95, s95, {OFF_X2T}
s_lshl_b32 s32, s30, 15                 ; 8 rows * 4096
s_add_u32 s95, s95, s32
s_lshl_b32 s96, s30, 11                 ; 8 rows * 256B
s_add_u32 s96, s96, {L_RING}""")
    a(f"""s_cmp_lg_u32 s30, 0
s_cbranch_scc1 {lw}""")
    poll_flags256(a,OFF_F1W,"L_f1w")
    NPF0=int(os.environ.get('NPF0','6'))
    a(f"""s_mul_i32 s74, s{S_IDX}, {352*128}
s_add_u32 s74, s74, {OFF_W2F}
v_lshlrev_b32 v15, 7, v1
s_mov_b32 s75, {NPF0}""")
    for i in range(NPF0):
        a(f"buffer_load_dword v14, v15, s[{SRD_WS}:{SRD_WS+3}], s74 offen{BS}\ns_add_u32 s74, s74, 8192")
    a(f"s_mov_b32 s99, {SPIN}")
    poll_flags256(a,OFF_F2W,"L_f2w")
    stamp(a,18)
    a(f"""v_lshlrev_b32 v5, 5, v1
s_mov_b32 s34, {OFF_FINS}
buffer_load_dwordx4 v[20:23], v5, s[{SRD_WS}:{SRD_WS+3}], s34 offen{BS}
buffer_load_dwordx4 v[24:27], v5, s[{SRD_WS}:{SRD_WS+3}], s34 offen offset:16{BS}""")
    ev_add(a,E_F2W)
    stamp(a,19)
    a(f"""s_mov_b32 s32, 0x05040100
s_mov_b32 s33, 0x07060302
v_mov_b32 v36, 0x3f803f80
v_mov_b32 v37, 0x3f803f80
v_mov_b32 v38, 0x3f803f80
v_mov_b32 v39, 0x3f803f80
v_mov_b32 v40, 0
v_mov_b32 v41, 0
v_mov_b32 v42, 0
v_mov_b32 v43, 0
v_lshlrev_b32 v5, 4, v1
v_add_u32 v5, {L_PB}, v5
s_waitcnt vmcnt(0)""")
    for k in range(4):
        a(f"v_perm_b32 v{28+k}, v{21+2*k}, v{20+2*k}, s32")
        a(f"v_perm_b32 v{32+k}, v{21+2*k}, v{20+2*k}, s33")
    a(f"""ds_write_b128 v5, v[36:39]
ds_write_b128 v5, v[28:31] offset:1024
ds_write_b128 v5, v[32:35] offset:2048
ds_write_b128 v5, v[40:43] offset:3072""")
    ev_add(a,E_PB)
    ev_wait(a,E_WE,4)
    stamp(a,33)
    lq=a.lab("L_pfrest"); lqe=a.lab("L_pfdone")
    a(f"""{lq}:
s_cmp_ge_u32 s75, {int(os.environ.get('NPF1','5'))}
s_cbranch_scc1 {lqe}
buffer_load_dword v14, v15, s[{SRD_WS}:{SRD_WS+3}], s74 offen{BS}
s_add_u32 s74, s74, 8192
s_add_u32 s75, s75, 1
s_branch {lq}
{lqe}:
s_mov_b32 s99, {SPIN}""")
    ev_wait(a,E_EPI,4)
    stamp(a,34)
    a(f"s_mov_b32 s99, {SPIN}")
    poll_flags256(a,OFF_F2,"L_f2")
    a(f"""v_mov_b32 v7, 1
v_mov_b32 v8, {L_CNT+E_F2}
s_mov_b64 exec, 1
ds_write_b32 v8, v7
s_mov_b64 exec, -1""")
    stamp(a,35)
    a(f"s_cmp_eq_u32 s29, 15\ns_cbranch_scc1 {lidle}\ns_branch {lgo}")
    a(f"{lw}:")
    a(f"s_cmp_eq_u32 s29, 15\ns_cbranch_scc1 {lidle2}")
    srd(a,SRD_A,P_B1,2752)
    a(f"""s_mul_i32 s74, s29, 192
s_sub_u32 s75, s30, 1
s_lshl_b32 s75, s75, 6
s_add_u32 s74, s74, s75
v_lshrrev_b32 v13, 5, v1
v_lshlrev_b32 v13, 3, v13""")
    for g in range(4): a(f"buffer_load_dwordx2 v[{64+2*g}:{65+2*g}], v13, s[{SRD_A}:{SRD_A+3}], s74 offen offset:{16*g}")
    ev_wait(a,E_F2W,1)
    stamp(a,30)
    w1_stream(a,12,32)
    ev_wait(a,E_STI,4)
    stamp(a,31)
    w1_stream(a,0,12)
    a(f"{lidle2}:")
    stamp(a,16)
    a("s_waitcnt vmcnt(0)")
    stamp(a,32)
    ev_add(a,E_W1)
    st_columns(a)
    stamp(a,33)
    a(f"{lj}:")
    a(f"s_cmp_eq_u32 s29, 15\ns_cbranch_scc1 {lidle}")
    ev_wait(a,E_EPI,4)
    ev_wait(a,E_F2,1,slp=0)
    a(f"{lgo}:")
    stamp(a,13)
    def issue(s):
        if 'nodma3' in EXP: return
        a(f"""s_add_u32 m0, s96, {(s%NSLOT)*8192}
s_add_u32 s34, s29, {s}
s_and_b32 s34, s34, 15
s_lshl_b32 s34, s34, 17
s_add_u32 s34, s34, s95
buffer_load_dwordx4 v120, s[{SRD_WS}:{SRD_WS+3}], s34 offen{BS} lds
s_add_u32 m0, s96, {(s%NSLOT)*8192+1024}
buffer_load_dwordx4 v121, s[{SRD_WS}:{SRD_WS+3}], s34 offen{BS} lds""")
    def x2_prefetch():
        l=a.lab("L_nox2pf")
        a(f"""s_cmp_lg_u32 s30, 0
s_cbranch_scc1 {l}
v_lshrrev_b32 v2, 1, v1
s_lshr_b32 s74, s{S_IDX}, 2
s_lshl_b32 s74, s74, 6
v_add_u32 v2, s74, v2
v_lshlrev_b32 v2, 12, v2
v_and_b32 v3, 1, v1
v_lshlrev_b32 v3, 7, v3
v_add_u32 v2, v2, v3
s_lshl_b32 s74, s28, 8
s_add_u32 s74, s74, {OFF_X2T}
buffer_load_dword v14, v2, s[{SRD_WS}:{SRD_WS+3}], s74 offen{BS}
s_add_u32 s74, s74, {32*4096}
buffer_load_dword v14, v2, s[{SRD_WS}:{SRD_WS+3}], s74 offen{BS}
{l}:""")
    AHEAD=NSLOT-2
    NB4=int(os.environ.get('NB4','2'))
    for s in range(NB4): issue(s)
    x2_prefetch()
    for s in range(NB4,AHEAD): issue(s)
    for s in range(16):
        issued=min(16,s+AHEAD)
        n=2*(issued-s-1)
        if s<NB4:
            l1=a.lab("L_s4"); l2=a.lab("L_s4b")
            a(f"s_cmp_eq_u32 s30, 0\ns_cbranch_scc1 {l1}\ns_waitcnt vmcnt({n})\ns_branch {l2}\n{l1}:\ns_waitcnt vmcnt({n+2})\n{l2}:\ns_barrier")
        else:
            a(f"s_waitcnt vmcnt({n})\ns_barrier")
        if s+AHEAD<16: issue(s+AHEAD)
    a(f"s_branch L_H_P3_done\n{lidle}:")
    for s in range(16): a("s_barrier")
    a("L_H_P3_done:")
    a(f"""s_sub_u32 s30, s{S_WAVE}, 4
s_lshr_b32 s74, s{S_IDX}, 2             ; dc
s_lshl_b32 s74, s74, 6
s_lshl_b32 s75, s30, 4
s_add_u32 s74, s74, s75                 ; first row
s_lshl_b32 s74, s74, 12
s_and_b32 s75, s{S_IDX}, 3
s_lshl_b32 s76, s{S_XCD}, 2
s_add_u32 s75, s75, s76                 ; t64
s_lshl_b32 s75, s75, 7
s_add_u32 s74, s74, s75
s_add_u32 s74, s74, {OFF_X2T}
v_lshrrev_b32 v2, 3, v1
v_lshlrev_b32 v2, 12, v2
v_and_b32 v3, 7, v1
v_lshlrev_b32 v3, 4, v3
v_add_u32 v2, v2, v3
s_lshl_b32 s75, s30, 11
s_add_u32 m0, s75, {139264}
buffer_load_dwordx4 v2, s[{SRD_WS}:{SRD_WS+3}], s74 offen{BS} lds
s_add_u32 m0, s75, {139264+1024}
s_add_u32 s74, s74, {8*4096}
buffer_load_dwordx4 v2, s[{SRD_WS}:{SRD_WS+3}], s74 offen{BS} lds""")

def m_p3(a):
    p3_common(a)
    lidle=a.lab("L_m3idle"); lst=a.lab("L_m3nost")
    a(f"""v_lshrrev_b32 v2, 5, v1                 ; hi
v_bfe_u32 v3, v1, 2, 2                  ; r
v_bfe_u32 v4, v1, 4, 1                  ; nh
v_and_b32 v5, 3, v1                     ; c
v_lshlrev_b32 v6, 3, v2
v_add_u32 v6, v6, v3                    ; 8hi + r
v_lshlrev_b32 v7, 5, v4
v_lshlrev_b32 v8, 3, v5
v_add_u32 v7, v7, v8                    ; nh*32 + c*8
v_mul_u32_u24 v10, 192, v6
v_add_u32 v10, v10, v7                  ; A base (W1')
v_add_u32 v11, {16*3072}, v10           ; A base second half
v_lshlrev_b32 v12, 8, v6
v_xor_b32 v8, s{S_WAVE}, v3
v_lshlrev_b32 v8, 6, v8
v_add3_u32 v12, v12, v8, v7
v_add_u32 v12, {L_RING}, v12            ; B base (x2 ring)""")
    ev_wait(a,E_F2W,1,t=(76,77))
    ev_wait(a,E_W1,3,t=(76,77))
    stamp(a,28)
    w2f_loads(a,16,43)
    a("s_waitcnt vmcnt(0)")
    ev_add(a,E_WE,t=(76,77))
    stamp(a,29)
    stamp(a,13)
    a(f"s_cmp_eq_u32 s29, 15\ns_cbranch_scc1 {lidle}")
    a(f"""v_mov_b32 v13, 0
v_mov_b32 v14, 0
s_mov_b32 s31, 0x3f803f80
s_lshl_b32 s32, s28, 4                  ; tt*16
s_lshl_b32 s33, s{S_WAVE}, 9            ; 32w*16B
s_lshl_b32 s34, s32, 11                 ; tt*16*128*16B
s_add_u32 s33, s33, s34
s_add_u32 s33, s33, {OFF_LNP}           ; base of this wave's tokens in partial slot 0
v_and_b32 v11, 31, v1
v_lshlrev_b32 v11, 4, v11               ; n*16""")
    ACC=16; FB=64; NBUF=3
    def setA(S):
        a(f"""s_add_u32 s34, s29, {S}
s_and_b32 s34, s34, 15
s_mul_i32 s34, s34, 6144
v_add_u32 v{8+(S&1)}, s34, v10""")
    def reads(ks):
        b=FB+16*(ks%NBUF)
        av=8+((ks//2)&1)
        ko=(ks%2)*3072
        slot=(ks//2)%NSLOT
        bo=slot*8192+(ks%2)*4096
        o=[f"ds_read_b64_tr_b16 v[{b+12}:{b+13}], v12 offset:{bo}",
           f"ds_read_b64_tr_b16 v[{b+14}:{b+15}], v12 offset:{bo+1024}"]
        for ft in range(3):
            o+=[f"ds_read_b64_tr_b16 v[{b+4*ft}:{b+4*ft+1}], v{av} offset:{ko+64*ft}",
                f"ds_read_b64_tr_b16 v[{b+4*ft+2}:{b+4*ft+3}], v{av} offset:{ko+768+64*ft}"]
        return o
    def dots(b):
        for k in range(4):
            a(f"v_dot2c_f32_bf16 v13, s31, v{b+12+k}")
            a(f"v_dot2c_f32_bf16 v14, v{b+12+k}, v{b+12+k}")
    def publish(sig):
        a(f"""v_mov_b32 v2, v13
v_mov_b32 v3, v14
s_nop 1
v_permlane32_swap_b32 v2, v13
v_permlane32_swap_b32 v3, v14
s_lshl_b32 s35, s35, 11
s_add_u32 s35, s35, s33
v_add_f32 v4, v13, v2
v_add_f32 v6, v14, v3
v_mov_b32 v5, s{S_TAG}
v_mov_b32 v7, s{S_TAG}
s_mov_b32 exec_hi, 0
buffer_store_dwordx4 v[4:7], v11, s[{SRD_WS}:{SRD_WS+3}], s35 offen sc1
s_mov_b32 exec_hi, -1
v_mov_b32 v13, 0
v_mov_b32 v14, 0""")
    setA(0); setA(1)
    a("s_barrier")
    stamp(a,16)
    for l in reads(0)+reads(1)[:6]: a(l)
    a("s_waitcnt lgkmcnt(12)")
    for l in reads(1)[6:]: a(l)
    lg=None
    for ks in range(32):
        b=FB+16*(ks%NBUF)
        if ks%2==0 and ks+2<32:
            a("s_barrier")
        a(f"s_waitcnt lgkmcnt({8 if ks<31 else 0})")
        nxt=reads(ks+2) if ks+2<32 else []
        for ft in range(3):
            c="0" if ks==0 else f"v[{ACC+16*ft}:{ACC+16*ft+15}]"
            a(f"v_mfma_f32_32x32x16_bf16 v[{ACC+16*ft}:{ACC+16*ft+15}], v[{b+4*ft}:{b+4*ft+3}], v[{b+12}:{b+15}], {c}")
            if ft==2 and nxt: a("s_waitcnt lgkmcnt(13)")
            for l in (nxt[3*ft:3*ft+3] if ft<2 else nxt[6:]): a(l)
        if ks%2==1 and ks//2+2<16: setA(ks//2+2)
        if ks in (0,1): dots(b)
        if ks==1:
            a("s_mov_b32 s35, s29"); publish(0)
        if ks in (2,3):
            l=a.lab("L_nost14"); a(f"s_cmp_eq_u32 s29, 14\ns_cbranch_scc0 {l}")
            dots(b)
            if ks==3:
                a("s_mov_b32 s35, 15"); publish(0)
            a(f"{l}:")
        if ks==24:
            a(f"""v_lshrrev_b32 v2, 5, v1
v_lshlrev_b32 v2, 14, v2                ; hi*8*2048
v_add_u32 v15, v2, v11
s_mov_b32 s35, s33""")
            for i in range(8):
                a(f"buffer_load_dwordx4 v[{112+4*i}:{115+4*i}], v15, s[{SRD_WS}:{SRD_WS+3}], s35 offen offset:{2048*(i&1)} sc1")
                if i&1 and i<7: a("s_add_u32 s35, s35, 4096")
    stamp(a,27)
    lr=a.lab("L_lnr"); ok=a.lab("L_lnk"); lf=a.lab("L_lnf")
    a(f"""s_mov_b32 s99, {SPIN}
s_waitcnt vmcnt(0)
s_branch {lf}
{lr}:
s_mov_b32 s35, s33""")
    for i in range(8):
        a(f"buffer_load_dwordx4 v[{112+4*i}:{115+4*i}], v15, s[{SRD_WS}:{SRD_WS+3}], s35 offen offset:{2048*(i&1)} sc1")
        if i&1 and i<7: a("s_add_u32 s35, s35, 4096")
    a(f"s_waitcnt vmcnt(0)\n{lf}:")
    tagcheck(a,[113+2*k for k in range(16)],ok,lr,T=(2,3,4))
    a("v_add_f32 v13, v112, v116\nv_add_f32 v14, v114, v118")
    for i in range(2,8): a(f"v_add_f32 v13, v13, v{112+4*i}\nv_add_f32 v14, v14, v{114+4*i}")
    a(f"""v_mov_b32 v2, v13
v_mov_b32 v3, v14
s_nop 1
v_permlane32_swap_b32 v2, v13
v_permlane32_swap_b32 v3, v14
s_nop 1
v_add_f32 v13, v13, v2
v_add_f32 v14, v14, v3
v_mul_f32 v13, {f32(1/512)}, v13        ; mean
v_mul_f32 v14, {f32(1/512)}, v14
v_fma_f32 v14, -v13, v13, v14           ; var
v_max_f32 v14, 0, v14
v_cvt_pk_bf16_f32 v2, v13, v14
v_lshlrev_b32 v6, 16, v2                ; m (bf16)
v_and_b32 v14, 0xffff0000, v2
v_add_f32 v14, {f32(1e-5)}, v14
v_cvt_pk_bf16_f32 v14, v14, v14
v_lshlrev_b32 v14, 16, v14
v_sqrt_f32 v14, v14
s_nop 0
v_cvt_pk_bf16_f32 v14, v14, v14
v_lshlrev_b32 v14, 16, v14
v_rcp_f32 v7, v14                       ; r
v_lshrrev_b32 v2, 5, v1
v_lshlrev_b32 v2, 4, v2
v_add_u32 v2, {L_ST}, v2
v_lshlrev_b32 v3, 4, v1                 ; store lane offset
s_lshl_b32 s30, s28, 2
s_add_u32 s30, s30, s{S_WAVE}           ; T32
s_mul_i32 s30, s30, {86*1024}
s_mul_i32 s31, s29, {6*1024}
s_add_u32 s30, s30, s31
s_add_u32 s30, s30, {OFF_H}""")
    grp=[(ft,g) for ft in range(3) for g in range(4)]
    def rdst(i):
        ft,g=grp[i]; b=64+8*(i%2)
        return [f"ds_read_b128 v[{b}:{b+3}], v2 offset:{128*ft+32*g}", f"ds_read_b128 v[{b+4}:{b+7}], v2 offset:{384+128*ft+32*g}"]
    for l in rdst(0): a(l)
    skip_lab=None
    for i,(ft,g) in enumerate(grp):
        if g==0 and ft==1:
            skip_lab=a.lab("L_skipft"); a(f"s_cmp_eq_u32 s29, 14\ns_cbranch_scc1 {skip_lab}")
        b=64+8*(i%2)
        if i+1<len(grp):
            for l in rdst(i+1): a(l)
            a("s_waitcnt lgkmcnt(2)")
        else: a("s_waitcnt lgkmcnt(0)")
        A=ACC+16*ft+4*g
        for k in (0,2): a(f"v_pk_fma_f32 v[{A+k}:{A+k+1}], v[6:7], v[{b+k}:{b+k+1}], v[{A+k}:{A+k+1}] op_sel_hi:[0,1,1] neg_lo:[1,0,0] neg_hi:[1,0,0]")
        for k in (0,2): a(f"v_pk_fma_f32 v[{A+k}:{A+k+1}], v[6:7], v[{A+k}:{A+k+1}], v[{b+4+k}:{b+5+k}] op_sel:[1,0,0] op_sel_hi:[1,1,1]")
        for k in range(4): a(f"v_max_f32 v{A+k}, 0, v{A+k}")
        for k in (0,2): a(f"v_pk_mul_f32 v[{A+k}:{A+k+1}], v[{A+k}:{A+k+1}], v[{A+k}:{A+k+1}]")
        o=8+2*g
        a(f"v_cvt_pk_bf16_f32 v{o}, v{A}, v{A+1}\nv_cvt_pk_bf16_f32 v{o+1}, v{A+2}, v{A+3}")
        if g==1 or g==3:
            half=g>>1
            off=2048*ft+1024*half
            if off<4096: a(f"buffer_store_dwordx4 v[{8+4*half}:{11+4*half}], v3, s[{SRD_WS}:{SRD_WS+3}], s30 offen offset:{off} sc1")
            else: a(f"s_add_u32 s31, s30, 4096\nbuffer_store_dwordx4 v[{8+4*half}:{11+4*half}], v3, s[{SRD_WS}:{SRD_WS+3}], s31 offen offset:{off-4096} sc1")
    a(f"{skip_lab}:\ns_waitcnt lgkmcnt(0)")
    stamp(a,17)
    a(f"s_branch L_M_P3_done\n{lidle}:")
    for s in range(16): a("s_barrier")
    a("L_M_P3_done:")

def residual_loads(a):
    a(f"""s_and_b32 s74, s{S_IDX}, 3
s_lshl_b32 s75, s{S_XCD}, 2
s_add_u32 s74, s74, s75                 ; t64
s_lshr_b32 s75, s{S_IDX}, 2             ; dc
s_lshl_b32 s75, s75, 1
s_and_b32 s76, s{S_WAVE}, 1
s_add_u32 s75, s75, s76                 ; dtile
s_lshl_b32 s75, s75, 5                  ; d0
s_lshl_b32 s74, s74, 6
s_lshr_b32 s76, s{S_WAVE}, 1
s_lshl_b32 s76, s76, 5
s_add_u32 s74, s74, s76                 ; t0
v_lshrrev_b32 v112, 5, v1
v_lshlrev_b32 v112, 2, v112
v_add_u32 v112, s75, v112               ; d0 + 4hi
v_lshlrev_b32 v112, 12, v112
v_and_b32 v113, 31, v1
v_add_u32 v113, s74, v113
v_lshlrev_b32 v113, 1, v113
v_add_u32 v112, v112, v113
s_mov_b32 s75, {OFF_X2T}""")
    for r in range(16):
        dd=(r&3)+8*(r>>2)
        if dd==0: so="s75"
        else:
            a(f"s_add_u32 s74, s75, {dd*4096}"); so="s74"
        a(f"buffer_load_ushort v{96+r}, v112, s[{SRD_WS}:{SRD_WS+3}], {so} offen{BS}")

def wf_reg(j):
    return 144+4*(j-16) if j>=16 else 80+4*j
def w2f_loads(a,j0,j1):
    a(f"""s_lshr_b32 s74, s{S_IDX}, 2             ; dc
s_and_b32 s75, s{S_WAVE}, 1             ; dt
s_lshr_b32 s76, s{S_WAVE}, 1            ; kh
s_lshl_b32 s74, s74, 1
s_add_u32 s74, s74, s75                 ; dtile
s_mul_i32 s74, s74, 86
s_mul_i32 s76, s76, 43
s_add_u32 s74, s74, s76
s_add_u32 s74, s74, {j0}
s_lshl_b32 s74, s74, 10
s_add_u32 s74, s74, {OFF_W2F}
v_lshlrev_b32 v252, 4, v1""")
    for n,j in enumerate(range(j0,j1)):
        if n%4==0 and n>0: a(f"s_add_u32 s74, s74, 4096")
        a(f"buffer_load_dwordx4 v[{wf_reg(j)}:{wf_reg(j)+3}], v252, s[{SRD_WS}:{SRD_WS+3}], s74 offen offset:{1024*(n%4)}{BS}")

WF=80
def p3_publish(a,role):
    if role=='H':
        le=a.lab("L_noep")
        a(f"""s_cmp_lg_u32 s2, 0
s_cbranch_scc1 {le}
s_cmp_lg_u32 s{S_WAVE}, 4
s_cbranch_scc1 {le}
v_mov_b32 v3, s{S_TAG}
v_mov_b32 v4, 0
s_mov_b64 exec, 1
buffer_store_dword v3, v4, s[{SRD_WS}:{SRD_WS+3}], 0 offen sc1
s_mov_b64 exec, -1
{le}:""")
        return
    a("s_waitcnt vmcnt(0)")
    stamp(a,15)
    lf=a.lab("L_nof3")
    last_arriver(a,E_F3,4,lf)
    store_flag(a,OFF_F3)
    a(f"{lf}:")
    stamp(a,37)
    w2f_loads(a,0,16)
    stamp(a,39)

L_HR=0 ; HSLOTS=34
L_RES=HSLOTS*4096
L_EX2=147456
GRP=4
PERM=list(range(16,43))+list(range(16))
def h_p4(a):
    a(f"""s_mov_b32 s99, {SPIN}
s_and_b32 s28, s{S_IDX}, 3
s_lshl_b32 s29, s{S_XCD}, 2
s_add_u32 s28, s28, s29                 ; t64
s_sub_u32 s30, s{S_WAVE}, 4             ; hw""")
    lw=a.lab("L_f3w"); lr=a.lab("L_f3r"); ok=a.lab("L_f3k")
    a(f"""s_cmp_lg_u32 s30, 0
s_cbranch_scc1 {lw}
s_lshr_b32 s31, s28, 1                  ; tt
s_and_b32 s32, s31, 3
s_lshl_b32 s32, s32, 3                  ; 8*(tt&3)
s_lshr_b32 s31, s31, 2
s_add_u32 s32, s32, s31                 ; + (tt>>2)
s_lshl_b32 s32, s32, 4
s_add_u32 s32, s32, {OFF_F3}
v_min_u32 v3, 14, v1                    ; fc
v_and_b32 v2, 7, v3
v_lshlrev_b32 v2, 5, v2                 ; 32*(fc&7)
v_lshrrev_b32 v3, 3, v3
v_lshlrev_b32 v3, 2, v3                 ; 4*(fc>>3)
v_add_u32 v2, v2, v3
v_lshlrev_b32 v2, 4, v2                 ; wg*16B
s_waitcnt vmcnt(0)""")
    ev_wait(a,E_WF,4)
    a(f"""s_mov_b32 s99, {SPIN}
{lr}:
buffer_load_dword v10, v2, s[{SRD_WS}:{SRD_WS+3}], s32 offen sc1
s_waitcnt vmcnt(0)""")
    tagcheck(a,[10],ok,lr)
    stamp(a,20)
    a(f"{lw}:\ns_barrier")
    stamp(a,21)
    a(f"""s_lshl_b32 s31, s28, 1
s_and_b32 s32, s30, 1
s_add_u32 s31, s31, s32                 ; T32
s_mul_i32 s31, s31, {86*1024}
s_lshr_b32 s32, s30, 1
s_mul_i32 s32, s32, {43*1024}
s_add_u32 s31, s31, s32
s_add_u32 s31, s31, {OFF_H}
s_lshl_b32 s33, s30, 10                 ; LDS offset inside a step
v_lshlrev_b32 v20, 4, v1""")
    def issue(j):
        a(f"""s_add_u32 m0, s33, {(j%HSLOTS)*4096+L_HR}
s_add_u32 s34, s31, {PERM[j]*1024}
buffer_load_dwordx4 v20, s[{SRD_WS}:{SRD_WS+3}], s34 offen{BS} lds""")
    FIRST=8
    for j in range(FIRST): issue(j)
    stamp(a,22)
    ngrp=(43+GRP-1)//GRP
    issued=FIRST
    for g in range(ngrp):
        need=min(43,(g+1)*GRP)
        a(f"s_waitcnt vmcnt({issued-need})\ns_barrier")
        tgt=min(43,issued+ (8 if g<3 else 5))
        while issued<tgt and issued-HSLOTS < g*GRP-1:
            issue(issued); issued+=1
    assert issued==43

def m_p4(a):
    a(f"""s_and_b32 s28, s{S_IDX}, 3
s_lshl_b32 s29, s{S_XCD}, 2
s_add_u32 s28, s28, s29                 ; t64
s_lshr_b32 s29, s{S_IDX}, 2             ; dc
s_and_b32 s30, s{S_WAVE}, 1             ; dt
s_lshr_b32 s31, s{S_WAVE}, 1            ; kh
s_lshl_b32 s32, s29, 1
s_add_u32 s32, s32, s30                 ; dtile
v_lshlrev_b32 v2, 4, v1""")
    X=64
    a(f"""v_and_b32 v3, 31, v1
v_lshrrev_b32 v4, 5, v1                 ; hi
s_lshl_b32 s33, s32, 5                  ; d0 = 32*dtile
s_lshl_b32 s34, s28, 6
s_lshl_b32 s35, s31, 5
s_add_u32 s34, s34, s35                 ; t0 = 64*t64 + 32*kh
v_lshlrev_b32 v5, 2, v4                 ; 4hi
v_add_u32 v6, s33, v5                   ; d0 + 4hi
s_nop 0""")
    a("s_waitcnt vmcnt(0)")
    ev_add(a,E_WF,t=(11,12))
    stamp(a,20)
    a("s_barrier")
    stamp(a,21)
    a(f"""s_lshl_b32 s35, s31, 11                 ; kh*2048
v_add_u32 v9, s35, v2                   ; H frag address inside a step
v_add_u32 v10, 0x10000, v9
v_add_u32 v13, 0x20000, v9""")
    ACC=16; FB=48
    def reads(j):
        b=FB+8*(j%2); sl=(j%HSLOTS)*4096+L_HR
        av=[9,10,13][sl>>16]
        o=sl&0xffff
        return [f"ds_read_b128 v[{b}:{b+3}], v{av} offset:{o}", f"ds_read_b128 v[{b+4}:{b+7}], v{av} offset:{o+1024}"]
    stamp(a,22)
    a("s_barrier")
    stamp(a,23)
    for l in reads(0): a(l)
    for j in range(43):
        b=FB+8*(j%2)
        if j+1<43:
            if (j+1)%GRP==0: a("s_barrier")
            for l in reads(j+1): a(l)
            a("s_waitcnt lgkmcnt(2)")
        else: a("s_waitcnt lgkmcnt(0)")
        for tt in range(2):
            c="0" if j==0 else f"v[{ACC+16*tt}:{ACC+16*tt+15}]"
            a(f"v_mfma_f32_32x32x16_bf16 v[{ACC+16*tt}:{ACC+16*tt+15}], v[{wf_reg(PERM[j])}:{wf_reg(PERM[j])+3}], v[{b+4*tt}:{b+4*tt+3}], {c}")
        if j==30:
            srd(a,SRD_A,P_B2,1024)
            srd(a,SRD_OUT,P_OUT,2097152)
            a(f"""v_lshlrev_b32 v11, 2, v6
s_mov_b32 s35, {OFF_FING}
v_lshlrev_b32 v12, 1, v6""")
            for g in range(4):
                a(f"buffer_load_dwordx4 v[{160+4*g}:{163+4*g}], v11, s[{SRD_WS}:{SRD_WS+3}], s35 offen offset:{32*g}{BS}")
                a(f"buffer_load_dwordx2 v[{152+2*g}:{153+2*g}], v12, s[{SRD_A}:{SRD_A+3}], 0 offen offset:{16*g}")
    stamp(a,24)
    a(f"""s_lshl_b32 s35, s{S_WAVE}, 12
s_add_u32 s35, s35, {L_EX2}
v_add_u32 v4, s35, v2
s_xor_b32 s35, s{S_WAVE}, 2
s_lshl_b32 s35, s35, 12
s_add_u32 s35, s35, {L_EX2}
v_add_u32 v5, s35, v2""")
    lk=a.lab("L_kh1"); lj=a.lab("L_khj")
    a(f"s_cmp_eq_u32 s31, 0\ns_cbranch_scc0 {lk}")
    for g in range(4): a(f"ds_write_b128 v4, v[{ACC+16+4*g}:{ACC+16+4*g+3}] offset:{1024*g}")
    a(f"s_branch {lj}\n{lk}:")
    for g in range(4): a(f"ds_write_b128 v4, v[{ACC+4*g}:{ACC+4*g+3}] offset:{1024*g}")
    for i in range(16): a(f"v_mov_b32 v{ACC+i}, v{ACC+16+i}")
    a(f"{lj}:\ns_waitcnt lgkmcnt(0)\ns_barrier")
    for g in range(4): a(f"ds_read_b128 v[{48+4*g}:{48+4*g+3}], v5 offset:{1024*g}")
    a(f"""s_and_b32 s35, s{S_WAVE}, 1
s_lshl_b32 s35, s35, 5                  ; 32*dt
v_lshrrev_b32 v7, 5, v1
v_lshlrev_b32 v7, 2, v7
v_add_u32 v7, s35, v7
v_lshlrev_b32 v7, 7, v7
s_lshl_b32 s35, s31, 6
v_lshlrev_b32 v8, 1, v3
v_add3_u32 v7, v7, v8, s35
v_add_u32 v7, {L_RES}, v7
s_waitcnt lgkmcnt(0)""")
    for r in range(16): a(f"ds_read_u16 v{80+r}, v7 offset:{((r&3)+8*(r>>2))*128}")
    a("s_waitcnt vmcnt(0) lgkmcnt(0)")
    for r in range(16):
        g=r>>2; k=r&3
        b2r=152+2*g+(k>>1)
        unp = f"v_lshlrev_b32 v2, 16, v{b2r}" if k%2==0 else f"v_and_b32 v2, 0xffff0000, v{b2r}"
        a(f"""v_add_f32 v{ACC+r}, v{ACC+r}, v{48+r}
{unp}
v_lshlrev_b32 v4, 16, v{80+r}
v_add_f32 v{ACC+r}, v{ACC+r}, v2
v_fma_f32 v{ACC+r}, v{160+r}, v{ACC+r}, v4""")
    for p in range(8): a(f"v_cvt_pk_bf16_f32 v{176+p}, v{ACC+2*p}, v{ACC+2*p+1}")
    a(f"""s_nop 1
v_permlane32_swap_b32 v176, v178
v_permlane32_swap_b32 v177, v179
v_permlane32_swap_b32 v180, v182
v_permlane32_swap_b32 v181, v183
v_add_u32 v8, s34, v3
v_lshlrev_b32 v8, 10, v8                ; t*1024
v_lshrrev_b32 v4, 5, v1
v_lshlrev_b32 v4, 4, v4                 ; hi*16B
s_lshl_b32 s35, s33, 1
v_add3_u32 v8, v8, v4, s35
buffer_store_dwordx4 v[176:179], v8, s[{SRD_OUT}:{SRD_OUT+3}], 0 offen
buffer_store_dwordx4 v[180:183], v8, s[{SRD_OUT}:{SRD_OUT+3}], 0 offen offset:32""")
    stamp(a,25)
    if STAMPS:
        a("s_waitcnt vmcnt(0)")
        stamp(a,26)

def h_p4_tail(a):
    a("s_barrier")

def dump_lds(a, nbytes):
    a(f"""s_mul_i32 s30, s2, {LDS_BYTES}
s_add_u32 s30, s30, {OFF_DBG}
v_lshlrev_b32 v2, 4, v0""")
    n=(nbytes+8191)//8192
    for i in range(n):
        a(f"""ds_read_b128 v[4:7], v2 offset:0
s_waitcnt lgkmcnt(0)
buffer_store_dwordx4 v[4:7], v2, s[{SRD_WS}:{SRD_WS+3}], s30 offen
v_add_u32 v2, 8192, v2
s_waitcnt vmcnt(0)""")

def build(stop):
    a=Asm()
    prologue(a)
    m_p1(a)
    m_conv(a)
    m_epilogue(a)
    m_p3(a)
    p3_publish(a,'M')
    m_p4(a)
    a("s_branch L_fin")
    h_p1(a)
    h_side(a)
    h_p3(a)
    p3_publish(a,'H')
    h_p4(a)
    h_p4_tail(a)
    a("L_fin:")
    if STAMPS: a("s_memrealtime s[78:79]\ns_waitcnt lgkmcnt(0)\nv_writelane_b32 v254, s78, 61")
    dump_stamps(a,64)
    a("L_end:\ns_endpgm")
    return finish(a, f"; @launch grid=(256,1,1) block=(512,1,1) lds={LDS_BYTES}")

if __name__=="__main__":
    stop=int(sys.argv[1]) if len(sys.argv)>1 else 99
    if len(sys.argv)>3 and sys.argv[3]=='st': STAMPS=True
    out=sys.argv[2] if len(sys.argv)>2 else "out.s"
    open(out,"w").write(build(stop))
```

```python
import sys, os
from base import *
EXP=set(os.environ.get('EXP','allearly').split(','))
if 'base' not in EXP: EXP.add('allearly')
BS=' sc1' if 'bulksc1' in EXP else ''

OFF_E   =0x0
OFF_F2  =0x1000
OFF_F3  =0x2000
OFF_F2W =0x3000
OFF_F1W =0x88000
OFF_STAT=0x4000
OFF_MOD =0x8000
OFF_S   =0x10000
OFF_T   =0x12000
OFF_MODP=0x20000
OFF_FINS=0x80000
OFF_FING=0x81000
OFF_LNP =0x90000
OFF_XT  =0x110000
OFF_W1P =0x500000
OFF_W2F =0x700000
OFF_X2T =0x900000
OFF_H   =0xB00000
OFF_DBG =0x2000000
WS_SIZE =268435456
CS=4416; KCH=4*CS
L_KC=0
PL=1568; HCH=4*PL
L_EG=35328; EGW=17408
L_EX=104960
L_Y=98304; YW=9216
L_HP=135168
L_XP=147712
L_MISC=155904
L_MODP=L_MISC
L_CNT=L_MISC+512
L_W2S=L_MISC+1024
L_STV=161024
L_GA=L_CNT+56
E_W2=0; E_F2=4; E_SIDE=8; E_KX=12; E_EPI=16; E_F3=20; E_F2W=24; E_Y=28; E_GA=36; E_W1=40; E_PB=44; E_WF=48; E_STI=52; E_WE=32
L_PB=156928
LDS_BYTES=163840
SPIN=int(os.environ.get('SPIN','100000'))
NE=int(os.environ.get('NE','27'))
B2R=80+4*(43-NE); GBR=B2R+8
PSL=int(os.environ.get('PSL','1'))
TAGC=0x9E3779B9

S_WAVE=3; S_TAG=4; S_P=5; S_XCD=6; S_IDX=7
SRD_WS=8; SRD_OUT=12; SRD_A=16; SRD_B=20; SRD_C=24
P_X=36;P_ARE=38;P_AIM=40;P_BRE=42;P_BIM=44;P_CRE=46;P_CIM=48;P_LDT=50
P_DSK=52;P_BX=54;P_W1=56;P_B1=58;P_W2=60;P_B2=62;P_C=64;P_WM=66;P_OUT=68;P_DBG=70;P_WS=72
LOG2E=0x3fb8aa3b; LOG2E_LO=0x32a57060; LN2=0x3f317218; INV2PI=0x3e22f983

def srd(a, r, p, size):
    a(f"""s_mov_b32 s{r}, s{p}
s_and_b32 s{r+1}, s{p+1}, 0xffff
s_mov_b32 s{r+2}, {size}
s_mov_b32 s{r+3}, 0x20000""")

def cmul(dst,x,y,tmp):
    return [f"v_pk_mul_f32 v[{tmp}:{tmp+1}], v[{x}:{x+1}], v[{y}:{y+1}] op_sel_hi:[1,0]",
            f"v_pk_fma_f32 v[{dst}:{dst+1}], v[{x}:{x+1}], v[{y}:{y+1}], v[{tmp}:{tmp+1}] op_sel:[1,1,0] op_sel_hi:[0,1,1] neg_lo:[1,0,0]"]

def cexp(dst,q,va,vb,t0,t1,t2):
    return [f"v_mul_f32 v{t0}, {q}, v{va}",
            f"v_mul_f32 v{t1}, {q}, v{vb}",
            f"v_exp_f32 v{t0}, v{t0}",
            f"v_fract_f32 v{t1}, v{t1}",
            f"v_cos_f32 v{t2}, v{t1}",
            f"v_sin_f32 v{t1}, v{t1}",
            f"v_mul_f32 v{dst}, v{t0}, v{t2}",
            f"v_mul_f32 v{dst+1}, v{t0}, v{t1}"]

def f32(x):
    import struct
    return "0x%08x"%struct.unpack('<I',struct.pack('<f',x))[0]

def rho(r,hi): return (r&3)+8*(r>>2)+4*hi
ROWS=[[0,1,2,3,4,5,6,7,512,516,520,1024,1032,1280,1288],
      [256,256,258,260,260,260,262,264,768,772,776,1536,1544,1792,1800]]
GROWS={}
for hi in (0,1):
    for r,q in enumerate(ROWS[hi]): GROWS.setdefault(q,[]).append(rho(r,hi))

STAMPS=False
def stamp(a,i):
    if not STAMPS: return
    a(f"""s_memtime s[78:79]
s_waitcnt lgkmcnt(0)
v_writelane_b32 v254, s78, {i}""")
def dump_stamps(a,n):
    if not STAMPS: return
    if 'dbg' in EXP:
        sel=[int(x) for x in os.environ.get('DBGSEL','2,7,8,12,16,27,17,15,21,23,24,26').split(',')]
        l=a.lab("L_nodbg")
        srd(a,SRD_A,P_DBG,256)
        a(f"""s_cmp_lg_u32 s2, {os.environ.get('DBGWG','0')}
s_cbranch_scc1 {l}
s_cmp_lg_u32 s{S_WAVE}, {os.environ.get('DBGWAVE','0')}
s_cbranch_scc1 {l}
v_readlane_b32 s30, v254, 0
v_mov_b32 v2, 0""")
        for i,k in enumerate(sel):
            a(f"""v_readlane_b32 s31, v254, {k}
s_sub_u32 s31, s31, s30
v_mov_b32 v3, s31
s_mov_b64 exec, 1
buffer_store_dword v3, v2, s[{SRD_A}:{SRD_A+3}], 0 offen offset:{4*i}
s_mov_b64 exec, -1""")
        a(f"{l}:")
        return
    a(f"""s_lshl_b32 s30, s{S_WAVE}, 8
s_lshl_b32 s31, s2, 11
s_add_u32 s30, s30, s31
s_add_u32 s30, s30, {OFF_DBG+0x3000000}
v_lshlrev_b32 v2, 2, v1
buffer_store_dword v254, v2, s[{SRD_WS}:{SRD_WS+3}], s30 offen""")

def prologue(a):
    a(f"""s_cmp_ge_u32 s2, 256
s_cbranch_scc1 L_end
s_memtime s[80:81]
s_load_dwordx16 s[36:51], s[0:1], 0
s_load_dwordx16 s[52:67], s[0:1], 64
s_load_dwordx4 s[68:71], s[0:1], 128
s_load_dwordx2 s[72:73], s[0:1], 144
v_lshrrev_b32 v2, 6, v0
v_and_b32 v1, 63, v0
s_and_b32 s{S_XCD}, s2, 7
v_readfirstlane_b32 s{S_WAVE}, v2
s_lshr_b32 s{S_IDX}, s2, 3
s_lshl_b32 s{S_P}, s{S_XCD}, 5
s_add_u32 s{S_P}, s{S_P}, s{S_IDX}
s_waitcnt lgkmcnt(0)""")
    srd(a,SRD_WS,P_WS,WS_SIZE)
    if STAMPS:
        a("v_writelane_b32 v254, s80, 0")
        a("s_memrealtime s[78:79]\ns_waitcnt lgkmcnt(0)\nv_writelane_b32 v254, s78, 60")
    stamp(a,1)
    a(f"""v_mov_b32 v2, 0
buffer_load_dword v255, v2, s[{SRD_WS}:{SRD_WS+3}], 0 offen sc1
s_cmp_ge_u32 s{S_WAVE}, 4
s_cbranch_scc1 L_H_P1""")

def get_tag(a):
    a(f"""v_readfirstlane_b32 s{S_TAG}, v255
s_add_u32 s{S_TAG}, s{S_TAG}, {TAGC}""")

def m_p1(a):
    a(f"""s_lshr_b32 s28, s{S_WAVE}, 1          ; ch
s_lshl_b32 s29, s{S_P}, 1
s_add_u32 s29, s29, s28                ; d
s_and_b32 s30, s{S_WAVE}, 1
s_lshl_b32 s31, s29, 8
s_lshl_b32 s32, s30, 7
s_add_u32 s31, s31, s32                ; d*256 + half*128
v_lshlrev_b32 v9, 1, v1
v_add_u32 v9, s31, v9
global_load_ushort v2, v9, s[{P_ARE}:{P_ARE+1}]
global_load_ushort v3, v9, s[{P_AIM}:{P_AIM+1}]
global_load_ushort v4, v9, s[{P_BRE}:{P_BRE+1}]
global_load_ushort v5, v9, s[{P_BIM}:{P_BIM+1}]
global_load_ushort v6, v9, s[{P_CRE}:{P_CRE+1}]
global_load_ushort v7, v9, s[{P_CIM}:{P_CIM+1}]
s_lshl_b32 s32, s29, 1
v_mov_b32 v10, s32
global_load_ushort v8, v10, s[{P_LDT}:{P_LDT+1}]""")
    a(f"""v_mov_b32 v12, 0
v_mov_b32 v13, 0
v_mov_b32 v14, 0
v_mov_b32 v15, 0
v_lshrrev_b32 v10, 5, v1                ; 0/1
s_lshl_b32 s32, s{S_WAVE}, 1
v_add_u32 v10, s32, v10
v_mul_u32_u24 v10, {PL}, v10
v_and_b32 v11, 31, v1
v_lshlrev_b32 v11, 4, v11
v_add_u32 v10, v10, v11
v_add_u32 v10, {L_HP}, v10
ds_write_b128 v10, v[12:15]
v_lshrrev_b32 v10, 3, v1
v_mul_u32_u24 v10, {CS}, v10
v_and_b32 v11, 7, v1
v_lshlrev_b32 v11, 4, v11
v_add_u32 v10, v10, v11
ds_write_b128 v10, v[12:15] offset:{L_KC+16+4064}
s_waitcnt lgkmcnt(0)
s_barrier""")
    a(f"""s_mul_i32 s33, s{S_WAVE}, {EGW}
s_add_u32 s33, s33, {L_EG}
v_lshlrev_b32 v60, 2, v1
v_add_u32 v60, s33, v60
v_add_u32 v61, {32*272}, v60
s_mov_b32 s34, {LOG2E}
s_mov_b32 s35, {LOG2E_LO}
s_waitcnt vmcnt(0)""")
    stamp(a,2)
    get_tag(a)
    a(f"""v_lshlrev_b32 v2, 16, v2
v_lshlrev_b32 v3, 16, v3
v_lshlrev_b32 v4, 16, v4
v_lshlrev_b32 v5, 16, v5
v_lshlrev_b32 v6, 16, v6
v_lshlrev_b32 v7, 16, v7
v_lshlrev_b32 v8, 16, v8
v_mul_f32 v10, s34, v8
v_fma_f32 v11, v8, s34, -v10
v_fma_f32 v11, v8, s35, v11
v_exp_f32 v10, v10
v_mul_f32 v11, {LN2}, v11
v_fma_f32 v10, v10, v11, v10
v_cvt_pk_bf16_f32 v10, v10, v10
v_lshlrev_b32 v8, 16, v10
v_mul_f32 v2, v8, v2                    ; zr
v_mul_f32 v3, v8, v3                    ; zi
v_mul_f32 v4, v8, v4
v_mul_f32 v5, v8, v5
v_mul_f32 v10, v6, v4
v_mul_f32 v11, v6, v5
v_fma_f32 v10, -v7, v5, v10             ; wr
v_fma_f32 v11, v7, v4, v11              ; wi
v_mul_f32 v12, s34, v2
v_mul_f32 v13, {INV2PI}, v3""")
    W=10; U1=14;U2=16;U4=18;U8=20;U16=22;U256=24;U512=26;U1024=28
    a(f"""s_mov_b32 s74, {f32(8.0)}
s_mov_b32 s75, {f32(256.0)}
s_mov_b32 s76, {f32(512.0)}
s_mov_b32 s77, {f32(1024.0)}""")
    a.interleave(cexp(U8,"s74",12,13,38,39,40), cexp(U1,"1.0",12,13,41,42,43), cexp(U256,"s75",12,13,44,45,46))
    a.interleave(cexp(U512,"s76",12,13,38,39,40), cexp(U1024,"s77",12,13,41,42,43), cmul(U16,U8,U8,44)+cmul(U2,U1,U1,46))
    for l in cmul(U4,U2,U2,44): a(l)
    def emitG(q,reg,tmp):
        o=[f"v_cvt_pk_bf16_f32 v{tmp}, v{reg}, v{reg+1}"]
        if 'nods' in EXP: return o
        for r in GROWS[q]: o.append(f"ds_write_b32 v60, v{tmp} offset:{r*272}")
        return o
    def emitE(b,reg,tmp):
        if 'nods' in EXP: return [f"v_cvt_pk_bf16_f32 v{tmp}, v{reg}, -v{reg+1}"]
        return [f"v_cvt_pk_bf16_f32 v{tmp}, v{reg}, -v{reg+1}", f"ds_write_b32 v61, v{tmp} offset:{b*272}"]
    EA=30; EB=32
    sE=[]; sO=[]
    sE+=[f"v_mov_b32 v54, 0x3f80", f"ds_write_b32 v61, v54 offset:0"]
    sE+=[f"v_mov_b32 v{EA}, v{U16}", f"v_mov_b32 v{EA+1}, v{U16+1}"]+emitE(2,EA,54)
    for b in range(4,32,2): sE+=cmul(EA,EA,U16,48)+emitE(b,EA,54)
    sO+=[f"v_mov_b32 v{EB}, v{U8}", f"v_mov_b32 v{EB+1}, v{U8+1}"]+emitE(1,EB,55)
    for b in range(3,32,2): sO+=cmul(EB,EB,U16,50)+emitE(b,EB,55)
    GA=34; GB=36; GC=58
    sG=[]
    sG+=emitG(0,W,56)+cmul(GA,W,U1,52)+emitG(1,GA,56)
    for c in range(2,8): sG+=cmul(GA,GA,U1,52)+emitG(c,GA,56)
    sG+=cmul(GA,W,U256,52)+emitG(256,GA,56)
    sG+=cmul(GB,GA,U8,52)+emitG(264,GB,56)
    for q in (258,260,262): sG+=cmul(GA,GA,U2,52)+emitG(q,GA,56)
    sG+=cmul(GA,W,U512,52)+emitG(512,GA,56)
    sG+=cmul(GB,GA,U4,52)+emitG(516,GB,56)+cmul(GB,GA,U8,52)+emitG(520,GB,56)
    sG+=cmul(GA,GA,U256,52)+emitG(768,GA,56)
    sG+=cmul(GB,GA,U4,52)+emitG(772,GB,56)+cmul(GB,GA,U8,52)+emitG(776,GB,56)
    sG+=cmul(GA,W,U1024,52)+emitG(1024,GA,56)+cmul(GB,GA,U8,52)+emitG(1032,GB,56)
    sG+=cmul(GC,GA,U256,52)+emitG(1280,GC,56)+cmul(GB,GC,U8,52)+emitG(1288,GB,56)
    sG+=cmul(GA,GA,U512,52)+emitG(1536,GA,56)+cmul(GB,GA,U8,52)+emitG(1544,GB,56)
    sG+=cmul(GA,GA,U256,52)+emitG(1792,GA,56)+cmul(GB,GA,U8,52)+emitG(1800,GB,56)
    a.interleave(sE,sO,sG[:len(sG)//2],sG[len(sG)//2:]) if False else a.interleave(sE,sO,sG)
    stamp(a,3)
    if 'hwait' in EXP: a("s_barrier")
    a(f"""v_and_b32 v62, 31, v1
v_mul_u32_u24 v62, 272, v62
v_lshrrev_b32 v63, 5, v1
v_lshlrev_b32 v63, 4, v63
v_add3_u32 v62, v62, v63, s33
v_add_u32 v63, {32*272}, v62
s_waitcnt lgkmcnt(0)""")
    FA=64
    for s in range(7):
        a(f"ds_read_b128 v[{FA+8*s}:{FA+8*s+3}], v62 offset:{32*s}")
        a(f"ds_read_b128 v[{FA+8*s+4}:{FA+8*s+7}], v63 offset:{32*s}")
    ACC=128
    for s in range(8):
        if s==0:
            a("s_waitcnt lgkmcnt(12)")
        elif s==1:
            a(f"ds_read_b128 v[{FA+56}:{FA+59}], v62 offset:{32*7}")
            a(f"ds_read_b128 v[{FA+60}:{FA+63}], v63 offset:{32*7}")
            a("s_waitcnt lgkmcnt(12)")
        else:
            a(f"s_waitcnt lgkmcnt({2*(7-s)})")
        c = "0" if s==0 else f"v[{ACC}:{ACC+15}]"
        a(f"v_mfma_f32_32x32x16_bf16 v[{ACC}:{ACC+15}], v[{FA+8*s}:{FA+8*s+3}], v[{FA+8*s+4}:{FA+8*s+7}], {c}")
    a(f"""s_lshl_b32 s34, s{S_WAVE}, 12
s_add_u32 s34, s34, {L_EX}
v_lshlrev_b32 v62, 4, v1
v_add_u32 v63, s34, v62
s_xor_b32 s35, s34, 4096
v_add_u32 v62, s35, v62""")
    for g in range(4): a(f"ds_write_b128 v63, v[{ACC+4*g}:{ACC+4*g+3}] offset:{1024*g}")
    a(f"""s_xor_b32 s35, s{S_WAVE}, 1
s_lshl_b32 s35, s35, 12
s_add_u32 s35, s35, {L_EX}
v_lshlrev_b32 v62, 4, v1
v_add_u32 v62, s35, v62
s_waitcnt lgkmcnt(0)""")
    stamp(a,4)
    ev_add(a,E_KX)
    ev_wait(a,E_KX,4)
    stamp(a,5)
    for g in range(4): a(f"ds_read_b128 v[{FA+4*g}:{FA+4*g+3}], v62 offset:{1024*g}")
    a(f"""s_lshr_b32 s28, s{S_WAVE}, 1
s_mul_i32 s28, s28, {KCH}
s_add_u32 s28, s28, {L_KC+16+4080-8}
v_and_b32 v2, 31, v1
v_lshlrev_b32 v2, 4, v2                 ; 16c
v_sub_u32 v2, s28, v2                   ; base - 16c
v_lshrrev_b32 v3, 5, v1                 ; hi
s_mov_b32 s30, 0xaaaaaaaa
s_mov_b32 s31, 0xaaaaaaaa
s_waitcnt lgkmcnt(0)""")
    for i in range(16): a(f"v_add_f32 v{ACC+i}, v{ACC+i}, v{FA+i}")
    def chunk(e, base0, basehi):
        D=84; O=88; K0=4
        a(f"""v_mul_u32_u24 v{K0}, {2*basehi}, v3
v_add_u32 v{K0}, {2*base0}, v{K0}
v_sub_u32 v{K0}, v2, v{K0}
v_add_u32 v{K0+1}, {CS}, v{K0}
v_add_u32 v{K0+2}, {2*CS}, v{K0}
v_add_u32 v{K0+3}, {3*CS}, v{K0}""")
        f=[e[7-j] for j in range(8)]
        for j in range(4): a(f"v_cvt_pk_bf16_f32 v{D+j}, v{f[2*j]}, v{f[2*j+1]}")
        for j in range(3): a(f"v_cvt_pk_bf16_f32 v{O+j}, v{f[2*j+1]}, v{f[2*j+2]}")
        a(f"""ds_write_b128 v{K0}, v[{D}:{D+3}] offset:8
ds_write2_b32 v{K0+2}, v{D}, v{D+1} offset0:1 offset1:2
ds_write2_b32 v{K0+2}, v{D+2}, v{D+3} offset0:3 offset1:4
ds_write_b16 v{K0+1}, v{D} offset:6
ds_write_b96 v{K0+1}, v[{O}:{O+2}] offset:8
ds_write_b16_d16_hi v{K0+1}, v{D+3} offset:20
ds_write_b16 v{K0+3}, v{D} offset:2
ds_write2_b32 v{K0+3}, v{O}, v{O+1} offset0:1 offset1:2
ds_write_b32 v{K0+3}, v{O+2} offset:12
ds_write_b16_d16_hi v{K0+3}, v{D+3} offset:16""")
    R=lambda r: ACC+r
    lo=a.lab("L_kodd"); le=a.lab("L_kend")
    a(f"""s_bitcmp1_b32 s{S_WAVE}, 0
s_cbranch_scc1 {lo}""")
    chunk([R(i) for i in range(8)],0,256)
    a(f"v_cndmask_b32 v8, v{R(11)}, v{R(12)}, s[30:31]")
    chunk([R(11)]*4+[8]+[R(12)]*3,1024,512)
    a(f"s_branch {le}\n{lo}:")
    chunk([R(8)]*3+[R(9)]*3+[R(10)]*2,512,256)
    a(f"v_cndmask_b32 v8, v{R(13)}, v{R(14)}, s[30:31]")
    chunk([R(13)]*4+[8]+[R(14)]*3,1280,512)
    a(f"{le}:")
    a("s_waitcnt lgkmcnt(0)")
    stamp(a,6)
    a("s_barrier")
    stamp(a,7)

def dpp_reduce(regs, full=True):
    o=[]
    for sh in (1,2,4,8):
        for r in regs: o.append(f"v_add_f32_dpp v{r}, v{r}, v{r} row_shr:{sh} row_mask:0xf bank_mask:0xf")
    for r in regs: o.append(f"v_add_f32_dpp v{r}, v{r}, v{r} row_bcast:15 row_mask:0xa bank_mask:0xf")
    if full:
        for r in regs: o.append(f"v_add_f32_dpp v{r}, v{r}, v{r} row_bcast:31 row_mask:0xc bank_mask:0xf")
    return o

def dpp_reduce_rows(regs):
    o=[]
    for sh in (1,2,4,8):
        for r in regs: o.append(f"v_add_f32_dpp v{r}, v{r}, v{r} row_shr:{sh} row_mask:0xf bank_mask:0xf")
    return o

def gemv16(a, nvec, vecregs, wregs, accbase):
    for v in range(nvec):
        for k in range(8): a(f"v_mov_b32 v{accbase+8*v+k}, 0")
    for i in range(4):
        for v in range(nvec):
            lo,hi=vecregs[v][i]
            for k in range(4):
                a(f"v_dot2c_f32_bf16 v{accbase+8*v+2*k}, v{wregs[i]+k}, v{lo}")
                a(f"v_dot2c_f32_bf16 v{accbase+8*v+2*k+1}, v{wregs[i]+k}, v{hi}")

def silu_pack(a,c,lo,hi,t):
    a(f"""v_lshlrev_b32 v{c}, 16, v{c}
v_mul_f32 v{t}, {f32(-1.4426950408889634)}, v{c}
v_exp_f32 v{t}, v{t}
v_add_f32 v{t}, 1.0, v{t}
v_rcp_f32 v{t}, v{t}
v_mul_f32 v{t}, v{c}, v{t}
v_cvt_pk_bf16_f32 v{lo}, v{t}, 0
v_lshlrev_b32 v{hi}, 16, v{lo}""")

def mod_tile_loads(a):
    a(f"""v_lshrrev_b32 v4, 3, v1
s_lshl_b32 s34, s35, 5
v_add_u32 v4, s34, v4
v_mul_u32_u24 v5, 6144, v4
v_and_b32 v6, 7, v1
v_lshlrev_b32 v6, 4, v6
v_add_u32 v5, v5, v6
v_lshlrev_b32 v4, 1, v4
s_lshl_b32 s34, s33, 7""")
    for i in range(4):
        a(f"buffer_load_dwordx4 v[{36+4*i}:{39+4*i}], v5, s[{SRD_B}:{SRD_B+3}], s34 offen")
        if i<3: a(f"s_add_u32 s34, s34, {8*6144}")
    for i in range(4):
        a(f"buffer_load_ushort v{52+i}, v4, s[{SRD_C}:{SRD_C+3}], 0 offen offset:{16*i}")

def mod_tile_compute(a):
    for i in range(4): silu_pack(a,52+i,100+2*i,101+2*i,56)
    gemv16(a,1,[[(100+2*i,101+2*i) for i in range(4)]],[36+4*i for i in range(4)],110)
    a("s_nop 1")
    for k in range(4): a(f"v_permlane32_swap_b32 v{110+2*k}, v{111+2*k}")
    for k in range(4): a(f"v_add_f32 v{110+2*k}, v{110+2*k}, v{111+2*k}")
    a("""s_nop 1
v_permlane16_swap_b32 v110, v112
v_permlane16_swap_b32 v114, v116
v_add_f32 v110, v110, v112
v_add_f32 v114, v114, v116
s_nop 1
v_add_f32_dpp v110, v110, v110 row_ror:8 row_mask:0xf bank_mask:0xf
v_add_f32_dpp v114, v114, v114 row_ror:8 row_mask:0xf bank_mask:0xf""")
    a(f"""v_bfe_u32 v6, v1, 3, 1
v_cmp_eq_u32 vcc, 1, v6
v_cndmask_b32 v118, v110, v114, vcc
v_mov_b32 v119, s{S_TAG}
v_and_b32 v7, 7, v1
v_lshlrev_b32 v7, 3, v7
v_lshlrev_b32 v6, 2, v6
v_bfe_u32 v8, v1, 4, 1
v_lshlrev_b32 v8, 1, v8
v_lshrrev_b32 v9, 5, v1
v_add3_u32 v7, v7, v6, v8
v_add_u32 v7, v7, v9
v_lshlrev_b32 v7, 3, v7                 ; *8 bytes
s_mul_i32 s30, s35, {3072*8}
s_lshl_b32 s31, s33, 9
s_add_u32 s30, s30, s31
s_add_u32 s30, s30, {OFF_MODP}
buffer_store_dwordx2 v[118:119], v7, s[{SRD_WS}:{SRD_WS+3}], s30 offen sc1""")

def h_p1(a):
    a("L_H_P1:")
    if 'noprio' not in EXP: a("s_setprio 3")
    a(f"s_sub_u32 s28, s{S_WAVE}, 4            ; hw")
    srd(a,SRD_A,P_X,2097152)
    a(f"""v_and_b32 v2, 1, v1
v_lshlrev_b32 v2, 12, v2                ; 4*(l&1)*1024
v_lshrrev_b32 v3, 1, v1
s_lshl_b32 s29, s28, 6
v_add_u32 v3, s29, v3
v_lshlrev_b32 v3, 2, v3
v_add_u32 v2, v2, v3
s_lshl_b32 s30, s2, 13                  ; j*8192""")
    if 'gather' not in EXP:
        for i in range(2):
            for k in range(4):
                a(f"buffer_load_dword v{10+4*i+k}, v2, s[{SRD_A}:{SRD_A+3}], s30 offen offset:{128*i+1024*k}")
    a(f"""s_lshl_b32 s32, s28, 11
s_add_u32 s32, s32, s30
v_lshlrev_b32 v3, 4, v1
buffer_load_dwordx4 v[26:29], v3, s[{SRD_A}:{SRD_A+3}], s32 offen
buffer_load_dwordx4 v[30:33], v3, s[{SRD_A}:{SRD_A+3}], s32 offen offset:1024""")
    if 'w2late' not in EXP: w2_loads(a)
    srd(a,SRD_B,P_WM,3145728)
    srd(a,SRD_C,P_C,1024)
    l7=a.lab("L_t7"); lt=a.lab("L_tj")
    a(f"""s_cmp_eq_u32 s28, 3
s_cbranch_scc1 {l7}
s_lshl_b32 s33, s2, 1
s_add_u32 s33, s33, s28
s_sub_u32 s33, s33, 1                   ; tau
s_lshr_b32 s35, s33, 5
s_and_b32 s33, s33, 31
s_add_u32 s33, s33, 16
s_branch {lt if 'allearly' not in EXP else lt+'x'}
{l7}:
s_and_b32 s33, s2, 15
s_lshr_b32 s35, s2, 4""")
    if 'allearly' in EXP:
        lz=a.lab("L_tz")
        a(f"{lt}x:\ns_cmp_eq_u32 s28, 0\ns_cbranch_scc1 {lt}")
    mod_tile_loads(a)
    a(f"""{lt}:
v_mov_b32 v8, 0
v_mov_b32 v9, 0
v_mov_b32 v34, {L_CNT}
ds_write_b64 v34, v[8:9]
ds_write_b64 v34, v[8:9] offset:8
ds_write_b64 v34, v[8:9] offset:16
ds_write_b64 v34, v[8:9] offset:24
ds_write_b64 v34, v[8:9] offset:32
ds_write_b64 v34, v[8:9] offset:40
ds_write_b64 v34, v[8:9] offset:48
s_waitcnt lgkmcnt(0)
s_barrier""")
    lm=a.lab("L_hasmod"); lm2=a.lab("L_w")
    a(f"""{'s_cmp_lg_u32 s28, 0' if 'allearly' in EXP else 's_cmp_eq_u32 s28, 3'}
s_cbranch_scc1 {lm}
s_waitcnt vmcnt({2 if 'gather' in EXP else 4})
s_branch {lm2}
{lm}:
s_waitcnt vmcnt({10 if 'gather' in EXP else 12})
{lm2}:""")
    stamp(a,2)
    a(f"""v_lshlrev_b32 v2, 4, v1
s_lshl_b32 s30, s2, 13
s_lshl_b32 s31, s28, 11
s_add_u32 s30, s30, s31
s_add_u32 s30, s30, {OFF_XT}""")
    if 'gather' not in EXP:
        for i in range(2):
            a(f"buffer_store_dwordx4 v[{10+4*i}:{13+4*i}], v2, s[{SRD_WS}:{SRD_WS+3}], s30 offen offset:{1024*i} sc1")
    get_tag(a)
    ln=a.lab("L_no56"); l1=a.lab("L_w56"); l2=a.lab("L_w7"); l3=a.lab("L_wj")
    if 'allearly' in EXP:
        a(f"s_cmp_eq_u32 s28, 0\ns_cbranch_scc1 {ln}\ns_branch {l2}")
    else:
        a(f"""s_cmp_eq_u32 s28, 0
s_cbranch_scc1 {ln}
s_cmp_eq_u32 s28, 3
s_cbranch_scc1 {l2}""")
        mod_tile_loads(a)
    if 'w2late' in EXP:
        a(f"""{l2}:
s_waitcnt vmcnt(10)
s_branch {l3}
{ln}:
s_waitcnt vmcnt(2)
{l3}:""")
    elif 'gather' in EXP:
        a(f"{l2}:\n{ln}:")
    else:
        a(f"""{l2}:
s_waitcnt vmcnt(12)
s_branch {l3}
{ln}:
s_waitcnt vmcnt(4)
{l3}:""")
    X=60
    for t in range(2):
        for k in range(4):
            a(f"v_lshlrev_b32 v{X+8*t+2*k}, 16, v{26+4*t+k}")
            a(f"v_and_b32 v{X+8*t+2*k+1}, 0xffff0000, v{26+4*t+k}")
    for t in range(2):
        a(f"v_add_f32 v{84+t}, v{X+8*t}, v{X+8*t+1}")
    for k in range(2,8):
        for t in range(2): a(f"v_add_f32 v{84+t}, v{84+t}, v{X+8*t+k}")
    for l in dpp_reduce([84,85]): a(l)
    a(f"""v_readlane_b32 s74, v84, 63
v_readlane_b32 s75, v85, 63
s_mov_b32 s76, {f32(1/512)}
v_mov_b32 v84, s74
v_mov_b32 v85, s75
v_mul_f32 v84, s76, v84
v_mul_f32 v85, s76, v85""")
    for k in range(8):
        for t in range(2): a(f"v_sub_f32 v{X+8*t+k}, v{X+8*t+k}, v{84+t}")
    for t in range(2):
        a(f"v_mul_f32 v{86+t}, v{X+8*t}, v{X+8*t}")
    for k in range(1,8):
        for t in range(2): a(f"v_fmac_f32 v{86+t}, v{X+8*t+k}, v{X+8*t+k}")
    for l in dpp_reduce([86,87]): a(l)
    a(f"""v_mul_f32 v86, s76, v86
v_mul_f32 v87, s76, v87
v_cvt_pk_bf16_f32 v88, v86, v87         ; bf16(var)
v_lshlrev_b32 v86, 16, v88
v_and_b32 v87, 0xffff0000, v88
v_add_f32 v86, {f32(1e-5)}, v86
v_add_f32 v87, {f32(1e-5)}, v87
v_cvt_pk_bf16_f32 v88, v86, v87
v_lshlrev_b32 v86, 16, v88
v_and_b32 v87, 0xffff0000, v88
v_sqrt_f32 v86, v86
v_sqrt_f32 v87, v87
v_cvt_pk_bf16_f32 v90, v84, v86         ; token0: (m, s)
v_cvt_pk_bf16_f32 v92, v85, v87         ; token1
v_mov_b32 v91, s{S_TAG}
v_mov_b32 v93, s{S_TAG}
s_lshl_b32 s30, s2, 6
s_lshl_b32 s31, s28, 4
s_add_u32 s30, s30, s31
s_add_u32 s30, s30, {OFF_STAT}
v_mov_b32 v94, 0""")
    lx=a.lab("L_x8"); ly=a.lab("L_x0")
    a(f"""s_cmp_eq_u32 s28, {1 if 'allearly' not in EXP else 9}
s_cbranch_scc1 {lx}
s_cmp_eq_u32 s28, {2 if 'allearly' not in EXP else 9}
s_cbranch_scc1 {lx}
{'s_nop 0' if 'gather' in EXP else 's_waitcnt vmcnt(0)'}
s_branch {ly}
{lx}:
s_waitcnt vmcnt(8)
{ly}:
s_mov_b32 exec_lo, 0
s_mov_b32 exec_hi, 0x80000000
buffer_store_dwordx4 v[90:93], v94, s[{SRD_WS}:{SRD_WS+3}], s30 offen sc1
s_mov_b64 exec, -1""")
    stamp(a,3)
    lend=a.lab("L_nomodc"); lw2=a.lab("L_w2go")
    a(f"s_cmp_eq_u32 s28, 0\ns_cbranch_scc1 {lend}")
    a("s_waitcnt vmcnt(1)")
    mod_tile_compute(a)
    a(f"{lend}:")
    w1_loads(a)
    if 'gather' in EXP: a("s_waitcnt vmcnt(3)")
    w2_prep(a)
    if 'gather' in EXP:
        srd(a,SRD_A,P_X,2097152)
        a(f"""v_lshlrev_b32 v2, 11, v1                ; 2l*1024
s_lshl_b32 s30, s28, 19                 ; 512hw*1024
s_lshl_b32 s31, s{S_P}, 2
s_add_u32 s30, s30, s31""")
        for i in range(4):
            a(f"buffer_load_dword v{10+2*i}, v2, s[{SRD_A}:{SRD_A+3}], s30 offen")
            a(f"buffer_load_dword v{11+2*i}, v2, s[{SRD_A}:{SRD_A+3}], s30 offen offset:1024")
            if i<3: a(f"s_add_u32 s30, s30, {128*1024}")
    stamp(a,4)
    h_build(a)

def tagcheck(a, regs, lab_ok, lab_retry, T=(250,251,252)):
    t0,t1,t2=T
    a(f"v_xor_b32 v{t0}, s{S_TAG}, v{regs[0]}")
    rest=regs[1:]
    i=0
    while i<len(rest):
        a(f"v_xor_b32 v{t1}, s{S_TAG}, v{rest[i]}")
        if i+1<len(rest):
            a(f"v_xor_b32 v{t2}, s{S_TAG}, v{rest[i+1]}\nv_or3_b32 v{t0}, v{t0}, v{t1}, v{t2}"); i+=2
        else:
            a(f"v_or_b32 v{t0}, v{t0}, v{t1}"); i+=1
    a(f"""v_cmp_ne_u32 vcc, 0, v{t0}
s_cbranch_vccz {lab_ok}
s_sub_u32 s99, s99, 1
s_cmp_eq_u32 s99, 0
s_cbranch_scc1 {lab_ok}
s_sleep {PSL}
s_branch {lab_retry}
{lab_ok}:""")

def h_build(a):
    a(f"""s_mov_b32 s99, {SPIN}
v_lshrrev_b32 v2, 2, v1                 ; l>>2
s_lshl_b32 s29, s28, 6
v_add_u32 v2, s29, v2
v_and_b32 v3, 3, v1                     ; q
v_lshlrev_b32 v4, 13, v2
v_lshlrev_b32 v5, 3, v3
v_add_u32 v4, v4, v5                    ; tb*8192 + 8q
v_lshlrev_b32 v5, 4, v3
s_lshl_b32 s33, s{S_P}, 5
s_add_u32 s33, s33, {OFF_XT}
v_lshlrev_b32 v6, 6, v2
v_add_u32 v6, v6, v5                    ; tb*64 + 16q
v_and_b32 v7, 15, v1
v_mul_u32_u24 v7, {3072*8}, v7          ; rb
v_lshrrev_b32 v8, 4, v1
v_lshlrev_b32 v9, 12, v8
v_add_u32 v70, v7, v9                   ; groups 2..5
v_and_b32 v9, 0x1000, v9
v_add_u32 v7, v7, v9                    ; groups 0,1
s_lshl_b32 s31, s{S_P}, 4
s_add_u32 s31, s31, {OFF_MODP}
s_add_u32 s30, s31, {2*4096}""")
    lr=a.lab("L_pollx"); ok=a.lab("L_okx"); lf1=a.lab("L_nof1w")
    a("s_waitcnt vmcnt(8)" if 'gather' in EXP else "s_waitcnt vmcnt(0)")
    stamp(a,40)
    a("v_mov_b32 v71, v7\nv_mov_b32 v72, v8\nv_mov_b32 v73, v9\nv_mov_b32 v74, v2\nv_mov_b32 v75, v3\ns_mov_b32 s96, s30")
    last_arriver(a,E_W2,4,lf1)
    store_flag(a,OFF_F1W)
    a(f"{lf1}:")
    a("v_mov_b32 v7, v71\nv_mov_b32 v8, v72\nv_mov_b32 v9, v73\nv_mov_b32 v2, v74\nv_mov_b32 v3, v75\ns_mov_b32 s30, s96")
    if 'xsl' in EXP: a(f"s_sleep {os.environ.get('XSL','8')}")
    a(f"{lr}:")
    a(f"s_mov_b32 s32, {OFF_STAT}")
    for i in range(4):
        a(f"buffer_load_dwordx4 v[{26+4*i}:{29+4*i}], v6, s[{SRD_WS}:{SRD_WS+3}], s32 offen offset:{1024*i} sc1")
    a(f"""buffer_load_dwordx4 v[42:45], v7, s[{SRD_WS}:{SRD_WS+3}], s31 offen sc1
buffer_load_dwordx4 v[128:131], v70, s[{SRD_WS}:{SRD_WS+3}], s30 offen sc1
s_waitcnt vmcnt(0)""")
    tagcheck(a,[27+2*k for k in range(10)]+[129,131],ok,lr)
    stamp(a,6)
    if STAMPS: a("v_writelane_b32 v254, s99, 41")
    if 'gather' not in EXP:
        a("s_mov_b32 s32, s33")
        for i in range(4):
            a(f"buffer_load_dwordx2 v[{10+2*i}:{11+2*i}], v4, s[{SRD_WS}:{SRD_WS+3}], s32 offen{BS}")
            if i<3: a(f"s_add_u32 s32, s32, {16*8192}")
    side_compute(a)
    stamp(a,42)
    for l in dpp_reduce_rows([42,44]): a(l)
    a(f"""v_cvt_pk_bf16_f32 v46, v42, v44
s_nop 0
v_readlane_b32 s74, v46, 15
v_readlane_b32 s75, v46, 31
s_lshl_b32 s76, s74, 16
s_and_b32 s77, s74, 0xffff0000
v_mov_b32 v54, s76
v_mov_b32 v55, s77
s_lshl_b32 s76, s75, 16
s_and_b32 s77, s75, 0xffff0000
v_add_f32 v46, s76, 1.0
v_add_f32 v48, s77, 1.0
v_cvt_pk_bf16_f32 v50, v46, v48
v_lshlrev_b32 v52, 16, v50
v_and_b32 v53, 0xffff0000, v50          ; c1 pair v[52:53]
v_and_b32 v8, 3, v2
v_mul_u32_u24 v8, {PL}, v8
v_lshrrev_b32 v9, 2, v2
v_lshlrev_b32 v9, 4, v9
v_lshlrev_b32 v5, 2, v3
v_add3_u32 v8, v8, v9, v5
v_add_u32 v8, {L_HP+512}, v8
v_lshlrev_b32 v9, 4, v2
v_add_u32 v9, v9, v5                    ; tb*16 + 4q
v_add_u32 v9, {L_XP}, v9
s_mov_b32 s74, 0x05040100
s_mov_b32 s75, 0x07060302""")
    for i in range(4):
        X0=10+2*i; X1=X0+1; S0=26+4*i; S1=S0+2
        if i==0:
            lq=a.lab("L_xq"); lq2=a.lab("L_xq2")
            if 'gather' not in EXP: a(f"s_cmp_eq_u32 s28, 0\ns_cbranch_scc1 {lq}\ns_waitcnt vmcnt(2)\ns_branch {lq2}\n{lq}:\ns_waitcnt vmcnt(4)\n{lq2}:")
            stamp(a,43)
        a(f"""v_lshlrev_b32 v56, 16, v{S0}
v_and_b32 v57, 0xffff0000, v{S0}
v_lshlrev_b32 v58, 16, v{S1}
v_and_b32 v59, 0xffff0000, v{S1}
v_rcp_f32 v57, v57
v_rcp_f32 v59, v59
v_lshlrev_b32 v60, 16, v{X0}
v_and_b32 v61, 0xffff0000, v{X0}
v_lshlrev_b32 v62, 16, v{X1}
v_and_b32 v63, 0xffff0000, v{X1}
v_pk_add_f32 v[60:61], v[60:61], v[56:57] op_sel_hi:[1,0] neg_lo:[0,1] neg_hi:[0,1]
v_pk_add_f32 v[62:63], v[62:63], v[58:59] op_sel_hi:[1,0] neg_lo:[0,1] neg_hi:[0,1]
v_pk_mul_f32 v[60:61], v[60:61], v[56:57] op_sel:[0,1] op_sel_hi:[1,1]
v_pk_mul_f32 v[62:63], v[62:63], v[58:59] op_sel:[0,1] op_sel_hi:[1,1]
v_pk_fma_f32 v[60:61], v[60:61], v[52:53], v[54:55]
v_pk_fma_f32 v[62:63], v[62:63], v[52:53], v[54:55]
v_perm_b32 v66, v{X1}, v{X0}, s74
v_perm_b32 v67, v{X1}, v{X0}, s75
v_cvt_pk_bf16_f32 v64, v60, v62
v_cvt_pk_bf16_f32 v65, v61, v63
ds_write_b32 v8, v64 offset:{64*i}
ds_write_b32 v8, v65 offset:{HCH+64*i}
ds_write_b32 v9, v66 offset:{256*i}
ds_write_b32 v9, v67 offset:{4096+256*i}""")
    a("s_waitcnt lgkmcnt(0)")
    if 'noprio' not in EXP: a("s_setprio 0")
    stamp(a,44)
    a("s_barrier")
    stamp(a,7)


def m_conv(a):
    a(f"""s_lshr_b32 s28, s{S_WAVE}, 1          ; ch
s_and_b32 s29, s{S_WAVE}, 1             ; m half
v_and_b32 v2, 31, v1                    ; i / a'
v_lshrrev_b32 v3, 5, v1                 ; hi
v_sub_u32 v4, 3, v2
v_and_b32 v4, 3, v4                     ; s = (3-i)&3
v_mul_u32_u24 v5, {CS}, v4
v_lshlrev_b32 v6, 3, v3                 ; 8hi
v_sub_u32 v6, v6, v2
v_sub_u32 v6, v6, v4
v_add_u32 v6, 2047, v6                  ; 2047 - i + 8hi - s
v_lshlrev_b32 v6, 1, v6
s_mul_i32 s30, s28, {KCH}
s_mul_i32 s31, s29, {32*32}
s_sub_u32 s30, s30, s31
s_add_u32 s30, s30, {L_KC+16+32-32*31-2048}
v_add3_u32 v10, v5, v6, s30             ; A base
v_mul_u32_u24 v5, {PL}, v3
v_lshlrev_b32 v6, 4, v2
s_mul_i32 s30, s28, {HCH}
s_lshl_b32 s31, s29, 8                  ; 16 entries * 16B
s_sub_u32 s30, s30, s31
s_add_u32 s30, s30, {L_HP+(32-15)*16}
v_add3_u32 v11, v5, v6, s30             ; B base""")
    a(f"""s_lshl_b32 s34, s{S_P}, 2
v_mov_b32 v137, s34
global_load_dword v136, v137, s[{P_DSK}:{P_DSK+1}]""")
    NB=3; FB=48
    def reads(it):
        b=FB+16*(it%NB)
        oa=32*(31-it)
        ob=(15-it//2)*16+(2*PL if it%2==0 else 0)
        return [f"ds_read_b64 v[{b}:{b+1}], v10 offset:{oa+2048}",
                f"ds_read_b64 v[{b+2}:{b+3}], v10 offset:{oa+2048+8}",
                f"ds_read_b128 v[{b+8}:{b+11}], v11 offset:{ob}",
                f"ds_read_b128 v[{b+12}:{b+15}], v11 offset:{ob+512}",
                f"ds_read_b64 v[{b+4}:{b+5}], v10 offset:{oa}",
                f"ds_read_b64 v[{b+6}:{b+7}], v10 offset:{oa+8}"]
    A0=16; A1=32
    if 'cprio' in EXP: a("s_setprio 2")
    for l in reads(0)+reads(1): a(l)
    for it in range(32):
        b=FB+16*(it%NB)
        nxt=reads(it+2) if it+2<32 else []
        c0="0" if it==0 else f"v[{A0}:{A0+15}]"
        c1="0" if it==0 else f"v[{A1}:{A1+15}]"
        m0=f"v_mfma_f32_32x32x16_bf16 v[{A0}:{A0+15}], v[{b}:{b+3}], v[{b+8}:{b+11}], {c0}"
        m1=f"v_mfma_f32_32x32x16_bf16 v[{A1}:{A1+15}], v[{b}:{b+3}], v[{b+12}:{b+15}], {c1}"
        m2=f"v_mfma_f32_32x32x16_bf16 v[{A1}:{A1+15}], v[{b+4}:{b+7}], v[{b+8}:{b+11}], v[{A1}:{A1+15}]"
        rem = 6 if it+1<32 else 0
        a(f"s_waitcnt lgkmcnt({rem})")
        if 'cord1' in EXP:
            a(m1)
            for l in nxt[:2]: a(l)
            a(m0)
            for l in nxt[2:4]: a(l)
            a(m2)
            for l in nxt[4:]: a(l)
        elif 'cord2' in EXP:
            a(m0); a(m1)
            for l in nxt[:3]: a(l)
            a(m2)
            for l in nxt[3:]: a(l)
        else:
            a(m0)
            for l in nxt[:2]: a(l)
            a(m1)
            for l in nxt[2:4]: a(l)
            a(m2)
            for l in nxt[4:]: a(l)
    if 'cprio' in EXP: a("s_setprio 0")
    a(f"""v_mul_u32_u24 v4, 144, v2
v_lshlrev_b32 v5, 4, v3
s_mul_i32 s30, s{S_WAVE}, {YW}
s_add_u32 s30, s30, {L_Y}
v_add3_u32 v4, v4, v5, s30""")
    for g in range(4): a(f"ds_write_b128 v4, v[{A0+4*g}:{A0+4*g+3}] offset:{32*g}")
    for g in range(4): a(f"ds_write_b128 v4, v[{A1+4*g}:{A1+4*g+3}] offset:{4608+32*g}")
    stamp(a,8)
    ev_add(a,E_Y)
    ev_wait(a,E_Y,4)
    ev_wait(a,E_GA,1)
    stamp(a,9)

def poll16(a, dst, soff_expr_sgpr, lab):
    lr=a.lab(lab+"r"); ok=a.lab(lab+"k")
    a(f"""{lr}:
buffer_load_dwordx4 v[{dst}:{dst+3}], v249, s[{SRD_WS}:{SRD_WS+3}], {soff_expr_sgpr} offen sc1
s_waitcnt vmcnt(0)""")
    tagcheck(a,[dst+1,dst+3],ok,lr)

def w1_loads(a):
    srd(a,SRD_A,P_W1,512*2752)
    a(f"""s_lshr_b32 s29, s28, 1
s_lshl_b32 s30, s{S_P}, 1
s_add_u32 s30, s30, s29                 ; d
s_mul_i32 s31, s30, 2752
s_and_b32 s32, s28, 1
s_mul_i32 s32, s32, {86*16}
s_add_u32 s31, s31, s32
v_lshlrev_b32 v68, 4, v1
buffer_load_dwordx4 v[160:163], v68, s[{SRD_A}:{SRD_A+3}], s31 offen
buffer_load_dwordx4 v[164:167], v68, s[{SRD_A}:{SRD_A+3}], s31 offen offset:1024""")

def w2_loads(a):
    srd(a,SRD_C,P_W2,1376*1024)
    a(f"""s_lshl_b32 s74, s28, 8
s_add_u32 s74, s74, s2                  ; g
s_mul_hi_u32 s75, s74, {(2**32+85)//86} ; dtile
s_mul_i32 s76, s75, 86
s_sub_u32 s76, s74, s76                 ; ks
s_lshl_b32 s76, s76, 14
s_lshl_b32 s75, s75, 6
s_add_u32 s76, s76, s75
v_lshrrev_b32 v69, 2, v1
v_lshlrev_b32 v69, 10, v69
v_and_b32 v70, 3, v1
v_lshlrev_b32 v70, 4, v70
v_add_u32 v69, v69, v70
buffer_load_dwordx4 v[168:171], v69, s[{SRD_C}:{SRD_C+3}], s76 offen
s_add_u32 s74, s74, 1024                ; g2
s_mul_hi_u32 s75, s74, {(2**32+85)//86}
s_mul_i32 s76, s75, 86
s_sub_u32 s76, s74, s76
s_lshl_b32 s76, s76, 14
s_lshl_b32 s75, s75, 6
s_add_u32 s76, s76, s75
buffer_load_dwordx4 v[172:175], v69, s[{SRD_C}:{SRD_C+3}], s76 offen""")

def w2_prep(a):
    a(f"""s_sub_u32 s28, s{S_WAVE}, 4
s_lshl_b32 s33, s28, 8
s_add_u32 s33, s33, s2                  ; g
s_lshl_b32 s34, s28, 10
s_add_u32 s34, s34, {L_W2S}
v_lshlrev_b32 v4, 4, v1
v_add_u32 v4, s34, v4                   ; staging write addr
v_lshrrev_b32 v7, 5, v1                 ; hi
v_lshlrev_b32 v7, 2, v7
v_bfe_u32 v8, v1, 2, 2                  ; r
v_add_u32 v7, v7, v8
v_lshlrev_b32 v7, 6, v7                 ; (4hi+r)*64
v_bfe_u32 v8, v1, 4, 1                  ; nh
v_lshlrev_b32 v8, 5, v8
v_and_b32 v9, 3, v1
v_lshlrev_b32 v9, 3, v9
v_add3_u32 v7, v7, v8, v9
v_add_u32 v7, s34, v7
v_lshlrev_b32 v8, 4, v1
s_lshl_b32 s35, s33, 10
s_add_u32 s35, s35, {OFF_W2F}
ds_write_b128 v4, v[168:171]
s_waitcnt lgkmcnt(0)
ds_read_b64_tr_b16 v[28:29], v7
ds_read_b64_tr_b16 v[30:31], v7 offset:512
s_waitcnt lgkmcnt(0)
buffer_store_dwordx4 v[28:31], v8, s[{SRD_WS}:{SRD_WS+3}], s35 offen sc1""")
    l2=a.lab("L_now2")
    a(f"""s_add_u32 s74, s33, 1024
s_cmp_ge_u32 s74, 1376
s_cbranch_scc1 {l2}
s_add_u32 s35, s35, {1024*1024}
ds_write_b128 v4, v[172:175]
s_waitcnt lgkmcnt(0)
ds_read_b64_tr_b16 v[32:33], v7
ds_read_b64_tr_b16 v[34:35], v7 offset:512
s_waitcnt lgkmcnt(0)
buffer_store_dwordx4 v[32:35], v8, s[{SRD_WS}:{SRD_WS+3}], s35 offen sc1
{l2}:""")

def ev_add(a, off, t=(7,8)):
    a(f"""v_mov_b32 v{t[0]}, 1
v_mov_b32 v{t[1]}, {L_CNT+off}
s_waitcnt lgkmcnt(0)
s_mov_b64 exec, 1
ds_add_u32 v{t[1]}, v{t[0]}
s_mov_b64 exec, -1""")

def ev_wait(a, off, val, t=(8,9), slp=1):
    ls=a.lab("L_evs"); lk=a.lab("L_evk")
    a(f"""v_mov_b32 v{t[0]}, {L_CNT+off}
s_mov_b32 s99, {SPIN*8}
{ls}:
ds_read_b32 v{t[1]}, v{t[0]}
s_waitcnt lgkmcnt(0)
v_readfirstlane_b32 s79, v{t[1]}
s_cmp_ge_u32 s79, {val}
s_cbranch_scc1 {lk}
s_sub_u32 s99, s99, 1
s_cmp_eq_u32 s99, 0
s_cbranch_scc1 {lk}
{"s_sleep 1" if slp else "s_nop 0"}
s_branch {ls}
{lk}:""")

def last_arriver(a, cnt_off, n, lab_not_last):
    a(f"""v_mov_b32 v7, 1
v_mov_b32 v8, {L_CNT+cnt_off}
s_waitcnt lgkmcnt(0)
s_mov_b64 exec, 1
ds_add_rtn_u32 v9, v8, v7
s_mov_b64 exec, -1
s_waitcnt lgkmcnt(0)
v_readfirstlane_b32 s30, v9
s_cmp_eq_u32 s30, {n-1}
s_cbranch_scc0 {lab_not_last}""")

def store_flag(a, off):
    a(f"""s_lshl_b32 s30, s2, 4
s_add_u32 s30, s30, {off}
v_mov_b32 v2, s{S_TAG}
v_mov_b32 v3, 0
s_mov_b64 exec, 1
buffer_store_dword v2, v3, s[{SRD_WS}:{SRD_WS+3}], s30 offen sc1
s_mov_b64 exec, -1""")

def poll_flags256(a, off, lab):
    lr=a.lab(lab+"r"); ok=a.lab(lab+"k")
    a(f"""v_lshlrev_b32 v2, 4, v1
s_mov_b32 s31, {off}
{lr}:""")
    for i in range(4): a(f"buffer_load_dword v{10+i}, v2, s[{SRD_WS}:{SRD_WS+3}], s31 offen offset:{1024*i} sc1")
    a("s_waitcnt vmcnt(0)")
    tagcheck(a,[10,11,12,13],ok,lr)

def side_compute(a):
    for l in dpp_reduce_rows([128,130]): a(l)
    a(f"""v_cvt_pk_bf16_f32 v206, v128, v130
s_nop 0
v_readlane_b32 s74, v206, 15
v_readlane_b32 s75, v206, 31
v_readlane_b32 s76, v206, 47
v_readlane_b32 s77, v206, 63
s_lshl_b32 s32, s76, 16
s_and_b32 s33, s76, 0xffff0000
v_add_f32 v180, s32, 1.0
v_add_f32 v181, s33, 1.0
v_cvt_pk_bf16_f32 v182, v180, v181
v_lshlrev_b32 v180, 16, v182
v_and_b32 v181, 0xffff0000, v182          ; c1 pair
v_mov_b32 v183, 0x21800000               ; 2^-60 stands in for an exact zero scale
v_cmp_eq_f32 vcc, 0, v180
v_cndmask_b32 v180, v180, v183, vcc
v_cmp_eq_f32 vcc, 0, v181
v_cndmask_b32 v181, v181, v183, vcc
s_lshr_b32 s29, s28, 1
s_cmp_eq_u32 s29, 0
s_cselect_b64 s[32:33], -1, 0
v_cndmask_b32 v186, v181, v180, s[32:33]""")
    for h in range(2):
        for k in range(4):
            r=160+4*h+k
            a(f"""v_lshlrev_b32 v190, 16, v{r}
v_and_b32 v191, 0xffff0000, v{r}
v_mul_f32 v190, v190, v186
v_mul_f32 v191, v191, v186
v_cvt_pk_bf16_f32 v{r}, v190, v191""")
    a(f"""s_lshl_b32 s30, s{S_P}, 1
s_add_u32 s30, s30, s29
s_mul_i32 s31, s30, 192
s_add_u32 s31, s31, {OFF_W1P}
s_and_b32 s32, s28, 1
s_mul_i32 s32, s32, 86
v_add_u32 v210, s32, v1
v_add_u32 v215, 64, v210""")
    for r in (210,215):
        a(f"""v_mul_u32_u24 v216, 5462, v{r}
v_lshrrev_b32 v216, 16, v216            ; c/12
v_mul_u32_u24 v217, 12, v216
v_sub_u32 v217, v{r}, v217
v_mul_u32_u24 v216, 98304, v216
v_lshlrev_b32 v217, 4, v217
v_add_u32 v{r}, v216, v217""")
    a(f"""buffer_store_dwordx4 v[160:163], v210, s[{SRD_WS}:{SRD_WS+3}], s31 offen sc1
s_mov_b64 exec, 0x3fffff
buffer_store_dwordx4 v[164:167], v215, s[{SRD_WS}:{SRD_WS+3}], s31 offen sc1
s_mov_b64 exec, -1""")
    lw=a.lab("L_notw4")
    a(f"""s_cmp_lg_u32 s28, 0
s_cbranch_scc1 {lw}
s_lshl_b32 s32, s75, 16
s_and_b32 s33, s75, 0xffff0000
v_rcp_f32 v184, v180
v_rcp_f32 v185, v181
v_mov_b32 v187, s32
v_mov_b32 v188, s33
v_mul_f32 v189, v187, v184
v_mul_f32 v190, v188, v185
v_fma_f32 v191, -v189, v180, v187
v_fma_f32 v192, -v190, v181, v188
v_fmac_f32 v189, v191, v184
v_fmac_f32 v190, v192, v185
v_cvt_pk_bf16_f32 v193, v189, v190
v_lshlrev_b32 v191, 16, v193
v_and_b32 v192, 0xffff0000, v193
v_sub_f32 v189, v189, v191
v_sub_f32 v190, v190, v192
v_cvt_pk_bf16_f32 v194, v189, v190
s_mov_b32 s32, 0x05040100
s_mov_b32 s33, 0x07060302
v_perm_b32 v196, v194, v193, s32
v_perm_b32 v197, v194, v193, s33           ; ch1
s_lshl_b32 s32, s77, 16
s_and_b32 s33, s77, 0xffff0000
v_mov_b32 v198, s32
v_mov_b32 v199, s33
s_lshl_b32 s32, s74, 16
s_and_b32 s33, s74, 0xffff0000
v_mov_b32 v200, s32
v_mov_b32 v201, s33
v_mov_b32 v211, 0
v_mov_b32 v212, {L_GA}
s_lshl_b32 s30, s{S_P}, 3
s_add_u32 s31, s30, {OFF_FING}
s_add_u32 s30, s30, {OFF_FINS}
s_mov_b64 exec, 1
buffer_store_dwordx2 v[196:197], v211, s[{SRD_WS}:{SRD_WS+3}], s30 offen sc1
buffer_store_dwordx2 v[198:199], v211, s[{SRD_WS}:{SRD_WS+3}], s31 offen sc1
ds_write_b64 v212, v[200:201]
s_mov_b64 exec, -1""")
    ev_add(a,E_GA,t=(213,214))
    a(f"{lw}:")

def h_side(a):
    lnf=a.lab("L_nof2w")
    a("s_waitcnt vmcnt(0)")
    last_arriver(a,E_SIDE,4,lnf)
    store_flag(a,OFF_F2W)
    a(f"{lnf}:")
    stamp(a,8)

def w1_stream(a,g0,g1):
    a(f"""v_lshlrev_b32 v10, 4, v1
s_sub_u32 s74, s30, 1
s_lshl_b32 s74, s74, 10
s_add_u32 s33, s74, {g0*3072}
s_mul_i32 s31, s29, 98304
s_add_u32 s31, s31, {OFF_W1P}
s_add_u32 s31, s31, s33""")
    for g in range(g0,g1):
        a(f"""s_mov_b32 m0, s33
buffer_load_dwordx4 v10, s[{SRD_WS}:{SRD_WS+3}], s31 offen{BS} lds""")
        if g<g1-1: a(f"s_add_u32 s31, s31, 3072\ns_add_u32 s33, s33, 3072")

def m_epilogue(a):
    a(f"""v_and_b32 v2, 255, v0                   ; tb
v_lshrrev_b32 v3, 2, v2                 ; a
v_and_b32 v4, 3, v2
v_mul_u32_u24 v5, 144, v3
v_lshlrev_b32 v6, 5, v4
v_add3_u32 v5, v5, v6, s78              ; placeholder""".replace("v_add3_u32 v5, v5, v6, s78              ; placeholder",f"v_add_u32 v5, v5, v6\nv_add_u32 v5, {L_Y}, v5"))
    a(f"""v_mul_u32_u24 v6, {PL}, v4
v_lshlrev_b32 v7, 4, v3
v_add_u32 v6, v6, v7
v_add_u32 v6, {L_HP+512}, v6            ; h addr
v_lshlrev_b32 v7, 4, v2
v_add_u32 v8, {L_XP}, v7                ; x addr""")
    for ch in range(2):
        b=80+24*ch
        a(f"""ds_read_b128 v[{b}:{b+3}], v5 offset:{2*ch*YW}
ds_read_b128 v[{b+4}:{b+7}], v5 offset:{2*ch*YW+16}
ds_read_b128 v[{b+8}:{b+11}], v5 offset:{(2*ch+1)*YW}
ds_read_b128 v[{b+12}:{b+15}], v5 offset:{(2*ch+1)*YW+16}
ds_read_b128 v[{b+16}:{b+19}], v6 offset:{ch*HCH}
ds_read_b128 v[{b+20}:{b+23}], v8 offset:{ch*4096}""")
    a(f"""v_mov_b32 v9, {L_GA}
ds_read_b64 v[132:133], v9
s_waitcnt vmcnt(0)""")
    a(f"""v_lshlrev_b32 v138, 16, v136
v_and_b32 v139, 0xffff0000, v136""")
    for ch in range(2):
        b=80+24*ch; ga=132+ch; dk=138+ch
        a(f"s_waitcnt lgkmcnt({7 if ch==0 else 0})" if False else ("s_waitcnt lgkmcnt(0)" if ch==0 else "s_nop 0"))
        for k in range(4):
            y=b+2*k
            a(f"""v_add_f32 v{y}, v{y}, v{y+8}
v_add_f32 v{y+1}, v{y+1}, v{y+9}
v_lshlrev_b32 v140, 16, v{b+16+k}
v_and_b32 v141, 0xffff0000, v{b+16+k}
v_lshlrev_b32 v142, 16, v{b+20+k}
v_and_b32 v143, 0xffff0000, v{b+20+k}
v_fmac_f32 v{y}, v140, v{dk}
v_fmac_f32 v{y+1}, v141, v{dk}
v_fma_f32 v{y}, v{y}, v{ga}, v142
v_fma_f32 v{y+1}, v{y+1}, v{ga}, v143
v_cvt_pk_bf16_f32 v{144+4*ch+k}, v{y}, v{y+1}""")
        a(f"""s_lshl_b32 s30, s{S_P}, 13
s_add_u32 s30, s30, {OFF_X2T+4096*ch}
buffer_store_dwordx4 v[{144+4*ch}:{147+4*ch}], v7, s[{SRD_WS}:{SRD_WS+3}], s30 offen sc1""")
    ev_add(a,E_STI)
    stamp(a,10)
    a("s_waitcnt vmcnt(0)")
    stamp(a,11)
    lnf=a.lab("L_nof2")
    last_arriver(a,E_EPI,4,lnf)
    store_flag(a,OFF_F2)
    a(f"{lnf}:")
    stamp(a,12)

L_W1=0
L_RING=98304
NSLOT=6
L_ST=L_STV
def poll_flags(a, off, nflag_regs, lab):
    pass

def p3_common(a):
    a(f"""s_and_b32 s28, s{S_IDX}, 3
s_and_b32 s29, s{S_XCD}, 3
s_lshl_b32 s29, s29, 2
s_add_u32 s28, s28, s29
s_lshr_b32 s29, s{S_IDX}, 2
s_lshr_b32 s79, s{S_XCD}, 2
s_lshl_b32 s79, s79, 3
s_add_u32 s29, s29, s79""")

def st_columns(a):
    lst=a.lab("L_nost")
    a(f"""s_cmp_eq_u32 s29, 15
s_cbranch_scc1 {lst}
s_sub_u32 s74, s30, 1                   ; ft
v_lshrrev_b32 v2, 5, v1                 ; hi
v_bfe_u32 v3, v1, 2, 2                  ; r
v_bfe_u32 v4, v1, 4, 1                  ; nh
v_and_b32 v5, 3, v1                     ; c
v_lshlrev_b32 v6, 3, v2
v_add_u32 v6, v6, v3                    ; 8hi + r
v_lshlrev_b32 v7, 5, v4
v_lshlrev_b32 v8, 3, v5
v_add_u32 v7, v7, v8
v_mul_u32_u24 v10, 192, v6
v_add_u32 v10, v10, v7
s_lshl_b32 s75, s74, 6
v_add_u32 v72, s75, v10                 ; A address, k-steps 0..15
v_add_u32 v73, {16*3072}, v72
v_and_b32 v13, 31, v1                   ; n
v_min_u32 v14, 3, v13
v_lshlrev_b32 v14, 10, v14
v_lshlrev_b32 v15, 4, v2
v_add_u32 v14, v14, v15
v_add_u32 v14, {L_PB}, v14
v_cmp_eq_u32 vcc, 1, v13
s_waitcnt vmcnt(0)""")
    for r in range(16):
        g=r>>2;k=r&3; src=64+2*g+(k>>1)
        a(f"v_lshlrev_b32 v74, 16, v{src}" if k%2==0 else f"v_and_b32 v74, 0xffff0000, v{src}")
        a(f"v_cndmask_b32 v{16+r}, 0, v74, vcc")
    ev_wait(a,E_W1,3,t=(76,77))
    ev_wait(a,E_PB,1,t=(76,77))
    def rd(ks):
        b=80+8*(ks%4); av=72 if ks<16 else 73; ko=(ks%16)*3072
        return [f"ds_read_b64_tr_b16 v[{b}:{b+1}], v{av} offset:{ko}", f"ds_read_b64_tr_b16 v[{b+2}:{b+3}], v{av} offset:{ko+768}",
                f"ds_read_b128 v[{b+4}:{b+7}], v14 offset:{32*ks}"]
    for k in range(3):
        for l in rd(k): a(l)
    for ks in range(32):
        b=80+8*(ks%4)
        if ks+3<32:
            for l in rd(ks+3): a(l)
        a(f"s_waitcnt lgkmcnt({3*min(3,31-ks)})")
        a(f"v_mfma_f32_32x32x16_bf16 v[16:31], v[{b}:{b+3}], v[{b+4}:{b+7}], v[16:31]")
    for r in range(16): a(f"v_mov_b32_dpp v{32+r}, v{16+r} row_shl:1 row_mask:0xf bank_mask:0xf bound_ctrl:1")
    for r in range(16): a(f"v_add_f32 v{32+r}, v{32+r}, v{16+r}")
    a(f"""v_lshlrev_b32 v75, 4, v2
s_lshl_b32 s75, s74, 7
v_add_u32 v75, s75, v75
v_add_u32 v75, {L_ST}, v75
s_mov_b32 exec_lo, 1
s_mov_b32 exec_hi, 1""")
    for g in range(4): a(f"ds_write_b128 v75, v[{16+4*g}:{19+4*g}] offset:{32*g}")
    a("s_mov_b32 exec_lo, 2\ns_mov_b32 exec_hi, 2")
    for g in range(4): a(f"ds_write_b128 v75, v[{32+4*g}:{35+4*g}] offset:{384+32*g}")
    a(f"s_mov_b64 exec, -1\ns_waitcnt lgkmcnt(0)\n{lst}:")

def h_p3(a):
    p3_common(a)
    a(f"""s_mov_b32 s99, {SPIN}
s_sub_u32 s30, s{S_WAVE}, 4             ; hw""")
    lw=a.lab("L_h3w567"); lj=a.lab("L_h3join"); lidle=a.lab("L_h3idle"); lidle2=a.lab("L_h3idle2"); lgo=a.lab("L_h3go")
    a(f"""v_lshrrev_b32 v2, 4, v1                 ; rho
v_and_b32 v3, 15, v1                    ; kappa
v_lshlrev_b32 v4, 2, v2
v_xor_b32 v3, v3, v4                    ; kappa'
v_lshlrev_b32 v3, 4, v3
v_lshlrev_b32 v2, 12, v2                ; rho*4096
v_add_u32 v120, v2, v3
v_add_u32 v121, {4*4096}, v120
s_lshl_b32 s95, s28, 8
s_add_u32 s95, s95, {OFF_X2T}
s_lshl_b32 s32, s30, 15                 ; 8 rows * 4096
s_add_u32 s95, s95, s32
s_lshl_b32 s96, s30, 11                 ; 8 rows * 256B
s_add_u32 s96, s96, {L_RING}""")
    a(f"""s_cmp_lg_u32 s30, 0
s_cbranch_scc1 {lw}""")
    poll_flags256(a,OFF_F1W,"L_f1w")
    NPF0=int(os.environ.get('NPF0','6'))
    a(f"""s_mul_i32 s74, s{S_IDX}, {352*128}
s_add_u32 s74, s74, {OFF_W2F}
v_lshlrev_b32 v15, 7, v1
s_mov_b32 s75, {NPF0}""")
    for i in range(NPF0):
        a(f"buffer_load_dword v14, v15, s[{SRD_WS}:{SRD_WS+3}], s74 offen{BS}\ns_add_u32 s74, s74, 8192")
    a(f"s_mov_b32 s99, {SPIN}")
    poll_flags256(a,OFF_F2W,"L_f2w")
    stamp(a,18)
    a(f"""v_lshlrev_b32 v5, 5, v1
s_mov_b32 s34, {OFF_FINS}
buffer_load_dwordx4 v[20:23], v5, s[{SRD_WS}:{SRD_WS+3}], s34 offen{BS}
buffer_load_dwordx4 v[24:27], v5, s[{SRD_WS}:{SRD_WS+3}], s34 offen offset:16{BS}""")
    ev_add(a,E_F2W)
    stamp(a,19)
    a(f"""s_mov_b32 s32, 0x05040100
s_mov_b32 s33, 0x07060302
v_mov_b32 v36, 0x3f803f80
v_mov_b32 v37, 0x3f803f80
v_mov_b32 v38, 0x3f803f80
v_mov_b32 v39, 0x3f803f80
v_mov_b32 v40, 0
v_mov_b32 v41, 0
v_mov_b32 v42, 0
v_mov_b32 v43, 0
v_lshlrev_b32 v5, 4, v1
v_add_u32 v5, {L_PB}, v5
s_waitcnt vmcnt(0)""")
    for k in range(4):
        a(f"v_perm_b32 v{28+k}, v{21+2*k}, v{20+2*k}, s32")
        a(f"v_perm_b32 v{32+k}, v{21+2*k}, v{20+2*k}, s33")
    a(f"""ds_write_b128 v5, v[36:39]
ds_write_b128 v5, v[28:31] offset:1024
ds_write_b128 v5, v[32:35] offset:2048
ds_write_b128 v5, v[40:43] offset:3072""")
    ev_add(a,E_PB)
    ev_wait(a,E_WE,4)
    stamp(a,33)
    lq=a.lab("L_pfrest"); lqe=a.lab("L_pfdone")
    a(f"""{lq}:
s_cmp_ge_u32 s75, {int(os.environ.get('NPF1','5'))}
s_cbranch_scc1 {lqe}
buffer_load_dword v14, v15, s[{SRD_WS}:{SRD_WS+3}], s74 offen{BS}
s_add_u32 s74, s74, 8192
s_add_u32 s75, s75, 1
s_branch {lq}
{lqe}:
s_mov_b32 s99, {SPIN}""")
    ev_wait(a,E_EPI,4)
    stamp(a,34)
    a(f"s_mov_b32 s99, {SPIN}")
    poll_flags256(a,OFF_F2,"L_f2")
    a(f"""v_mov_b32 v7, 1
v_mov_b32 v8, {L_CNT+E_F2}
s_mov_b64 exec, 1
ds_write_b32 v8, v7
s_mov_b64 exec, -1""")
    stamp(a,35)
    a(f"s_cmp_eq_u32 s29, 15\ns_cbranch_scc1 {lidle}\ns_branch {lgo}")
    a(f"{lw}:")
    a(f"s_cmp_eq_u32 s29, 15\ns_cbranch_scc1 {lidle2}")
    srd(a,SRD_A,P_B1,2752)
    a(f"""s_mul_i32 s74, s29, 192
s_sub_u32 s75, s30, 1
s_lshl_b32 s75, s75, 6
s_add_u32 s74, s74, s75
v_lshrrev_b32 v13, 5, v1
v_lshlrev_b32 v13, 3, v13""")
    for g in range(4): a(f"buffer_load_dwordx2 v[{64+2*g}:{65+2*g}], v13, s[{SRD_A}:{SRD_A+3}], s74 offen offset:{16*g}")
    ev_wait(a,E_F2W,1)
    stamp(a,30)
    w1_stream(a,12,32)
    ev_wait(a,E_STI,4)
    stamp(a,31)
    w1_stream(a,0,12)
    a(f"{lidle2}:")
    stamp(a,16)
    a("s_waitcnt vmcnt(0)")
    stamp(a,32)
    ev_add(a,E_W1)
    st_columns(a)
    stamp(a,33)
    a(f"{lj}:")
    a(f"s_cmp_eq_u32 s29, 15\ns_cbranch_scc1 {lidle}")
    ev_wait(a,E_EPI,4)
    ev_wait(a,E_F2,1,slp=0)
    a(f"{lgo}:")
    stamp(a,13)
    def issue(s):
        if 'nodma3' in EXP: return
        a(f"""s_add_u32 m0, s96, {(s%NSLOT)*8192}
s_add_u32 s34, s29, {s}
s_and_b32 s34, s34, 15
s_lshl_b32 s34, s34, 17
s_add_u32 s34, s34, s95
buffer_load_dwordx4 v120, s[{SRD_WS}:{SRD_WS+3}], s34 offen{BS} lds
s_add_u32 m0, s96, {(s%NSLOT)*8192+1024}
buffer_load_dwordx4 v121, s[{SRD_WS}:{SRD_WS+3}], s34 offen{BS} lds""")
    def x2_prefetch():
        l=a.lab("L_nox2pf")
        a(f"""s_cmp_lg_u32 s30, 0
s_cbranch_scc1 {l}
v_lshrrev_b32 v2, 1, v1
s_lshr_b32 s74, s{S_IDX}, 2
s_lshl_b32 s74, s74, 6
v_add_u32 v2, s74, v2
v_lshlrev_b32 v2, 12, v2
v_and_b32 v3, 1, v1
v_lshlrev_b32 v3, 7, v3
v_add_u32 v2, v2, v3
s_lshl_b32 s74, s28, 8
s_add_u32 s74, s74, {OFF_X2T}
buffer_load_dword v14, v2, s[{SRD_WS}:{SRD_WS+3}], s74 offen{BS}
s_add_u32 s74, s74, {32*4096}
buffer_load_dword v14, v2, s[{SRD_WS}:{SRD_WS+3}], s74 offen{BS}
{l}:""")
    AHEAD=NSLOT-2
    NB4=int(os.environ.get('NB4','2'))
    for s in range(NB4): issue(s)
    x2_prefetch()
    for s in range(NB4,AHEAD): issue(s)
    for s in range(16):
        issued=min(16,s+AHEAD)
        n=2*(issued-s-1)
        if s<NB4:
            l1=a.lab("L_s4"); l2=a.lab("L_s4b")
            a(f"s_cmp_eq_u32 s30, 0\ns_cbranch_scc1 {l1}\ns_waitcnt vmcnt({n})\ns_branch {l2}\n{l1}:\ns_waitcnt vmcnt({n+2})\n{l2}:\ns_barrier")
        else:
            a(f"s_waitcnt vmcnt({n})\ns_barrier")
        if s+AHEAD<16: issue(s+AHEAD)
    a(f"s_branch L_H_P3_done\n{lidle}:")
    for s in range(16): a("s_barrier")
    a("L_H_P3_done:")
    a(f"""s_sub_u32 s30, s{S_WAVE}, 4
s_lshr_b32 s74, s{S_IDX}, 2             ; dc
s_lshl_b32 s74, s74, 6
s_lshl_b32 s75, s30, 4
s_add_u32 s74, s74, s75                 ; first row
s_lshl_b32 s74, s74, 12
s_and_b32 s75, s{S_IDX}, 3
s_lshl_b32 s76, s{S_XCD}, 2
s_add_u32 s75, s75, s76                 ; t64
s_lshl_b32 s75, s75, 7
s_add_u32 s74, s74, s75
s_add_u32 s74, s74, {OFF_X2T}
v_lshrrev_b32 v2, 3, v1
v_lshlrev_b32 v2, 12, v2
v_and_b32 v3, 7, v1
v_lshlrev_b32 v3, 4, v3
v_add_u32 v2, v2, v3
s_lshl_b32 s75, s30, 11
s_add_u32 m0, s75, {139264}
buffer_load_dwordx4 v2, s[{SRD_WS}:{SRD_WS+3}], s74 offen{BS} lds
s_add_u32 m0, s75, {139264+1024}
s_add_u32 s74, s74, {8*4096}
buffer_load_dwordx4 v2, s[{SRD_WS}:{SRD_WS+3}], s74 offen{BS} lds""")

def m_p3(a):
    p3_common(a)
    lidle=a.lab("L_m3idle"); lst=a.lab("L_m3nost")
    a(f"""v_lshrrev_b32 v2, 5, v1                 ; hi
v_bfe_u32 v3, v1, 2, 2                  ; r
v_bfe_u32 v4, v1, 4, 1                  ; nh
v_and_b32 v5, 3, v1                     ; c
v_lshlrev_b32 v6, 3, v2
v_add_u32 v6, v6, v3                    ; 8hi + r
v_lshlrev_b32 v7, 5, v4
v_lshlrev_b32 v8, 3, v5
v_add_u32 v7, v7, v8                    ; nh*32 + c*8
v_mul_u32_u24 v10, 192, v6
v_add_u32 v10, v10, v7                  ; A base (W1')
v_add_u32 v11, {16*3072}, v10           ; A base second half
v_lshlrev_b32 v12, 8, v6
v_xor_b32 v8, s{S_WAVE}, v3
v_lshlrev_b32 v8, 6, v8
v_add3_u32 v12, v12, v8, v7
v_add_u32 v12, {L_RING}, v12            ; B base (x2 ring)""")
    ev_wait(a,E_F2W,1,t=(76,77))
    ev_wait(a,E_W1,3,t=(76,77))
    stamp(a,28)
    w2f_loads(a,43-NE,43)
    a("s_waitcnt vmcnt(0)")
    ev_add(a,E_WE,t=(76,77))
    stamp(a,29)
    stamp(a,13)
    a(f"s_cmp_eq_u32 s29, 15\ns_cbranch_scc1 {lidle}")
    a(f"""v_mov_b32 v13, 0
v_mov_b32 v14, 0
s_mov_b32 s31, 0x3f803f80
s_lshl_b32 s32, s28, 4                  ; tt*16
s_lshl_b32 s33, s{S_WAVE}, 9            ; 32w*16B
s_lshl_b32 s34, s32, 11                 ; tt*16*128*16B
s_add_u32 s33, s33, s34
s_add_u32 s33, s33, {OFF_LNP}           ; base of this wave's tokens in partial slot 0
v_and_b32 v11, 31, v1
v_lshlrev_b32 v11, 4, v11               ; n*16""")
    ACC=16; FB=64; NBUF=3
    def setA(S):
        a(f"""s_add_u32 s34, s29, {S}
s_and_b32 s34, s34, 15
s_mul_i32 s34, s34, 6144
v_add_u32 v{8+(S&1)}, s34, v10""")
    def reads(ks):
        b=FB+16*(ks%NBUF)
        av=8+((ks//2)&1)
        ko=(ks%2)*3072
        slot=(ks//2)%NSLOT
        bo=slot*8192+(ks%2)*4096
        o=[f"ds_read_b64_tr_b16 v[{b+12}:{b+13}], v12 offset:{bo}",
           f"ds_read_b64_tr_b16 v[{b+14}:{b+15}], v12 offset:{bo+1024}"]
        for ft in range(3):
            o+=[f"ds_read_b64_tr_b16 v[{b+4*ft}:{b+4*ft+1}], v{av} offset:{ko+64*ft}",
                f"ds_read_b64_tr_b16 v[{b+4*ft+2}:{b+4*ft+3}], v{av} offset:{ko+768+64*ft}"]
        return o
    def dots(b):
        for k in range(4):
            a(f"v_dot2c_f32_bf16 v13, s31, v{b+12+k}")
            a(f"v_dot2c_f32_bf16 v14, v{b+12+k}, v{b+12+k}")
    def publish(sig):
        a(f"""v_mov_b32 v2, v13
v_mov_b32 v3, v14
s_nop 1
v_permlane32_swap_b32 v2, v13
v_permlane32_swap_b32 v3, v14
s_lshl_b32 s35, s35, 11
s_add_u32 s35, s35, s33
v_add_f32 v4, v13, v2
v_add_f32 v6, v14, v3
v_mov_b32 v5, s{S_TAG}
v_mov_b32 v7, s{S_TAG}
s_mov_b32 exec_hi, 0
buffer_store_dwordx4 v[4:7], v11, s[{SRD_WS}:{SRD_WS+3}], s35 offen sc1
s_mov_b32 exec_hi, -1
v_mov_b32 v13, 0
v_mov_b32 v14, 0""")
    setA(0); setA(1)
    a("s_barrier")
    stamp(a,16)
    for l in reads(0)+reads(1)[:6]: a(l)
    a("s_waitcnt lgkmcnt(12)")
    for l in reads(1)[6:]: a(l)
    lg=None
    for ks in range(32):
        b=FB+16*(ks%NBUF)
        if ks%2==0 and ks+2<32:
            a("s_barrier")
        a(f"s_waitcnt lgkmcnt({8 if ks<31 else 0})")
        nxt=reads(ks+2) if ks+2<32 else []
        for ft in range(3):
            c="0" if ks==0 else f"v[{ACC+16*ft}:{ACC+16*ft+15}]"
            a(f"v_mfma_f32_32x32x16_bf16 v[{ACC+16*ft}:{ACC+16*ft+15}], v[{b+4*ft}:{b+4*ft+3}], v[{b+12}:{b+15}], {c}")
            if ft==2 and nxt: a("s_waitcnt lgkmcnt(13)")
            for l in (nxt[3*ft:3*ft+3] if ft<2 else nxt[6:]): a(l)
        if ks%2==1 and ks//2+2<16: setA(ks//2+2)
        if ks in (0,1): dots(b)
        if ks==1:
            a("s_mov_b32 s35, s29"); publish(0)
        if ks in (2,3):
            l=a.lab("L_nost14"); a(f"s_cmp_eq_u32 s29, 14\ns_cbranch_scc0 {l}")
            dots(b)
            if ks==3:
                a("s_mov_b32 s35, 15"); publish(0)
            a(f"{l}:")
        if ks==24:
            a(f"""v_lshrrev_b32 v2, 5, v1
v_lshlrev_b32 v2, 14, v2                ; hi*8*2048
v_add_u32 v15, v2, v11
s_mov_b32 s35, s33""")
            for i in range(8):
                a(f"buffer_load_dwordx4 v[{112+4*i}:{115+4*i}], v15, s[{SRD_WS}:{SRD_WS+3}], s35 offen offset:{2048*(i&1)} sc1")
                if i&1 and i<7: a("s_add_u32 s35, s35, 4096")
    stamp(a,27)
    lr=a.lab("L_lnr"); ok=a.lab("L_lnk"); lf=a.lab("L_lnf")
    a(f"""s_mov_b32 s99, {SPIN}
s_waitcnt vmcnt(0)
s_branch {lf}
{lr}:
s_mov_b32 s35, s33""")
    for i in range(8):
        a(f"buffer_load_dwordx4 v[{112+4*i}:{115+4*i}], v15, s[{SRD_WS}:{SRD_WS+3}], s35 offen offset:{2048*(i&1)} sc1")
        if i&1 and i<7: a("s_add_u32 s35, s35, 4096")
    a(f"s_waitcnt vmcnt(0)\n{lf}:")
    tagcheck(a,[113+2*k for k in range(16)],ok,lr,T=(2,3,4))
    a("v_add_f32 v13, v112, v116\nv_add_f32 v14, v114, v118")
    for i in range(2,8): a(f"v_add_f32 v13, v13, v{112+4*i}\nv_add_f32 v14, v14, v{114+4*i}")
    a(f"""v_mov_b32 v2, v13
v_mov_b32 v3, v14
s_nop 1
v_permlane32_swap_b32 v2, v13
v_permlane32_swap_b32 v3, v14
s_nop 1
v_add_f32 v13, v13, v2
v_add_f32 v14, v14, v3
v_mul_f32 v13, {f32(1/512)}, v13        ; mean
v_mul_f32 v14, {f32(1/512)}, v14
v_fma_f32 v14, -v13, v13, v14           ; var
v_max_f32 v14, 0, v14
v_cvt_pk_bf16_f32 v2, v13, v14
v_lshlrev_b32 v6, 16, v2                ; m (bf16)
v_and_b32 v14, 0xffff0000, v2
v_add_f32 v14, {f32(1e-5)}, v14
v_cvt_pk_bf16_f32 v14, v14, v14
v_lshlrev_b32 v14, 16, v14
v_sqrt_f32 v14, v14
s_nop 0
v_cvt_pk_bf16_f32 v14, v14, v14
v_lshlrev_b32 v14, 16, v14
v_rcp_f32 v7, v14                       ; r
v_lshrrev_b32 v2, 5, v1
v_lshlrev_b32 v2, 4, v2
v_add_u32 v2, {L_ST}, v2
v_lshlrev_b32 v3, 4, v1                 ; store lane offset
s_lshl_b32 s30, s28, 2
s_add_u32 s30, s30, s{S_WAVE}           ; T32
s_mul_i32 s30, s30, {86*1024}
s_mul_i32 s31, s29, {6*1024}
s_add_u32 s30, s30, s31
s_add_u32 s30, s30, {OFF_H}""")
    grp=[(ft,g) for ft in range(3) for g in range(4)]
    def rdst(i):
        ft,g=grp[i]; b=64+8*(i%2)
        return [f"ds_read_b128 v[{b}:{b+3}], v2 offset:{128*ft+32*g}", f"ds_read_b128 v[{b+4}:{b+7}], v2 offset:{384+128*ft+32*g}"]
    for l in rdst(0): a(l)
    skip_lab=None
    for i,(ft,g) in enumerate(grp):
        if g==0 and ft==1:
            skip_lab=a.lab("L_skipft"); a(f"s_cmp_eq_u32 s29, 14\ns_cbranch_scc1 {skip_lab}")
        b=64+8*(i%2)
        if i+1<len(grp):
            for l in rdst(i+1): a(l)
            a("s_waitcnt lgkmcnt(2)")
        else: a("s_waitcnt lgkmcnt(0)")
        A=ACC+16*ft+4*g
        for k in (0,2): a(f"v_pk_fma_f32 v[{A+k}:{A+k+1}], v[6:7], v[{b+k}:{b+k+1}], v[{A+k}:{A+k+1}] op_sel_hi:[0,1,1] neg_lo:[1,0,0] neg_hi:[1,0,0]")
        for k in (0,2): a(f"v_pk_fma_f32 v[{A+k}:{A+k+1}], v[6:7], v[{A+k}:{A+k+1}], v[{b+4+k}:{b+5+k}] op_sel:[1,0,0] op_sel_hi:[1,1,1]")
        for k in range(4): a(f"v_max_f32 v{A+k}, 0, v{A+k}")
        for k in (0,2): a(f"v_pk_mul_f32 v[{A+k}:{A+k+1}], v[{A+k}:{A+k+1}], v[{A+k}:{A+k+1}]")
        o=8+2*g
        a(f"v_cvt_pk_bf16_f32 v{o}, v{A}, v{A+1}\nv_cvt_pk_bf16_f32 v{o+1}, v{A+2}, v{A+3}")
        if g==1 or g==3:
            half=g>>1
            off=2048*ft+1024*half
            if off<4096: a(f"buffer_store_dwordx4 v[{8+4*half}:{11+4*half}], v3, s[{SRD_WS}:{SRD_WS+3}], s30 offen offset:{off} sc1")
            else: a(f"s_add_u32 s31, s30, 4096\nbuffer_store_dwordx4 v[{8+4*half}:{11+4*half}], v3, s[{SRD_WS}:{SRD_WS+3}], s31 offen offset:{off-4096} sc1")
    a(f"{skip_lab}:\ns_waitcnt lgkmcnt(0)")
    stamp(a,17)
    a(f"s_branch L_M_P3_done\n{lidle}:")
    for s in range(16): a("s_barrier")
    a("L_M_P3_done:")

def residual_loads(a):
    a(f"""s_and_b32 s74, s{S_IDX}, 3
s_lshl_b32 s75, s{S_XCD}, 2
s_add_u32 s74, s74, s75                 ; t64
s_lshr_b32 s75, s{S_IDX}, 2             ; dc
s_lshl_b32 s75, s75, 1
s_and_b32 s76, s{S_WAVE}, 1
s_add_u32 s75, s75, s76                 ; dtile
s_lshl_b32 s75, s75, 5                  ; d0
s_lshl_b32 s74, s74, 6
s_lshr_b32 s76, s{S_WAVE}, 1
s_lshl_b32 s76, s76, 5
s_add_u32 s74, s74, s76                 ; t0
v_lshrrev_b32 v112, 5, v1
v_lshlrev_b32 v112, 2, v112
v_add_u32 v112, s75, v112               ; d0 + 4hi
v_lshlrev_b32 v112, 12, v112
v_and_b32 v113, 31, v1
v_add_u32 v113, s74, v113
v_lshlrev_b32 v113, 1, v113
v_add_u32 v112, v112, v113
s_mov_b32 s75, {OFF_X2T}""")
    for r in range(16):
        dd=(r&3)+8*(r>>2)
        if dd==0: so="s75"
        else:
            a(f"s_add_u32 s74, s75, {dd*4096}"); so="s74"
        a(f"buffer_load_ushort v{96+r}, v112, s[{SRD_WS}:{SRD_WS+3}], {so} offen{BS}")

def wf_reg(j):
    return 80+4*j
def w2f_loads(a,j0,j1):
    a(f"""s_lshr_b32 s74, s{S_IDX}, 2             ; dc
s_and_b32 s75, s{S_WAVE}, 1             ; dt
s_lshr_b32 s76, s{S_WAVE}, 1            ; kh
s_lshl_b32 s74, s74, 1
s_add_u32 s74, s74, s75                 ; dtile
s_mul_i32 s74, s74, 86
s_mul_i32 s76, s76, 43
s_add_u32 s74, s74, s76
s_add_u32 s74, s74, {j0}
s_lshl_b32 s74, s74, 10
s_add_u32 s74, s74, {OFF_W2F}
v_lshlrev_b32 v252, 4, v1""")
    for n,j in enumerate(range(j0,j1)):
        if n%4==0 and n>0: a(f"s_add_u32 s74, s74, 4096")
        a(f"buffer_load_dwordx4 v[{wf_reg(j)}:{wf_reg(j)+3}], v252, s[{SRD_WS}:{SRD_WS+3}], s74 offen offset:{1024*(n%4)}{BS}")

WF=80
def p3_publish(a,role):
    if role=='H':
        le=a.lab("L_noep")
        a(f"""s_cmp_lg_u32 s2, 0
s_cbranch_scc1 {le}
s_cmp_lg_u32 s{S_WAVE}, 4
s_cbranch_scc1 {le}
v_mov_b32 v3, s{S_TAG}
v_mov_b32 v4, 0
s_mov_b64 exec, 1
buffer_store_dword v3, v4, s[{SRD_WS}:{SRD_WS+3}], 0 offen sc1
s_mov_b64 exec, -1
{le}:""")
        return
    a("s_waitcnt vmcnt(0)")
    stamp(a,15)
    lf=a.lab("L_nof3")
    last_arriver(a,E_F3,4,lf)
    store_flag(a,OFF_F3)
    a(f"{lf}:")
    stamp(a,37)
    w2f_loads(a,0,43-NE)
    stamp(a,39)

L_HR=0 ; HSLOTS=34
L_RES=HSLOTS*4096
L_EX2=147456
GRP=4
PERM=list(range(43-NE,43))+list(range(43-NE))
def h_p4(a):
    a(f"""s_mov_b32 s99, {SPIN}
s_and_b32 s28, s{S_IDX}, 3
s_lshl_b32 s29, s{S_XCD}, 2
s_add_u32 s28, s28, s29                 ; t64
s_sub_u32 s30, s{S_WAVE}, 4             ; hw""")
    lw=a.lab("L_f3w"); lr=a.lab("L_f3r"); ok=a.lab("L_f3k")
    a(f"""s_cmp_lg_u32 s30, 0
s_cbranch_scc1 {lw}
s_lshr_b32 s31, s28, 1                  ; tt
s_and_b32 s32, s31, 3
s_lshl_b32 s32, s32, 3                  ; 8*(tt&3)
s_lshr_b32 s31, s31, 2
s_add_u32 s32, s32, s31                 ; + (tt>>2)
s_lshl_b32 s32, s32, 4
s_add_u32 s32, s32, {OFF_F3}
v_min_u32 v3, 14, v1                    ; fc
v_and_b32 v2, 7, v3
v_lshlrev_b32 v2, 5, v2                 ; 32*(fc&7)
v_lshrrev_b32 v3, 3, v3
v_lshlrev_b32 v3, 2, v3                 ; 4*(fc>>3)
v_add_u32 v2, v2, v3
v_lshlrev_b32 v2, 4, v2                 ; wg*16B
s_waitcnt vmcnt(0)""")
    ev_wait(a,E_WF,4)
    a(f"""s_mov_b32 s99, {SPIN}
{lr}:
buffer_load_dword v10, v2, s[{SRD_WS}:{SRD_WS+3}], s32 offen sc1
s_waitcnt vmcnt(0)""")
    tagcheck(a,[10],ok,lr)
    stamp(a,20)
    a(f"{lw}:\ns_barrier")
    stamp(a,21)
    a(f"""s_lshl_b32 s31, s28, 1
s_and_b32 s32, s30, 1
s_add_u32 s31, s31, s32                 ; T32
s_mul_i32 s31, s31, {86*1024}
s_lshr_b32 s32, s30, 1
s_mul_i32 s32, s32, {43*1024}
s_add_u32 s31, s31, s32
s_add_u32 s31, s31, {OFF_H}
s_lshl_b32 s33, s30, 10                 ; LDS offset inside a step
v_lshlrev_b32 v20, 4, v1""")
    def issue(j):
        a(f"""s_add_u32 m0, s33, {(j%HSLOTS)*4096+L_HR}
s_add_u32 s34, s31, {PERM[j]*1024}
buffer_load_dwordx4 v20, s[{SRD_WS}:{SRD_WS+3}], s34 offen{BS} lds""")
    FIRST=int(os.environ.get('FIRST','8'))
    for j in range(FIRST): issue(j)
    HPF='hpf' in EXP
    if HPF:
        lpf=a.lab("L_nohpf")
        a(f"""s_cmp_ge_u32 s30, 3
s_cbranch_scc1 {lpf}
s_mul_i32 s74, s28, {2*86*1024}
s_lshr_b32 s75, s{S_IDX}, 2
s_mul_i32 s75, s75, {172*128}
s_add_u32 s74, s74, s75
s_lshl_b32 s75, s30, 13
s_add_u32 s74, s74, s75
s_add_u32 s74, s74, {OFF_H}
v_lshlrev_b32 v15, 7, v1
buffer_load_dword v14, v15, s[{SRD_WS}:{SRD_WS+3}], s74 offen{BS}
{lpf}:""")
    stamp(a,22)
    ngrp=(43+GRP-1)//GRP
    issued=FIRST
    for g in range(ngrp):
        need=min(43,(g+1)*GRP)
        if HPF and need<=FIRST:
            l1=a.lab("L_hw"); l2=a.lab("L_hw2")
            a(f"s_cmp_ge_u32 s30, 3\ns_cbranch_scc1 {l1}\ns_waitcnt vmcnt({issued-need+1})\ns_branch {l2}\n{l1}:\ns_waitcnt vmcnt({issued-need})\n{l2}:\ns_barrier")
        else:
            a(f"s_waitcnt vmcnt({issued-need})\ns_barrier")
        tgt=min(43,issued+ (8 if g<3 else 5))
        while issued<tgt and issued-HSLOTS < g*GRP-1:
            issue(issued); issued+=1
    assert issued==43

def m_p4(a):
    a(f"""s_and_b32 s28, s{S_IDX}, 3
s_lshl_b32 s29, s{S_XCD}, 2
s_add_u32 s28, s28, s29                 ; t64
s_lshr_b32 s29, s{S_IDX}, 2             ; dc
s_and_b32 s30, s{S_WAVE}, 1             ; dt
s_lshr_b32 s31, s{S_WAVE}, 1            ; kh
s_lshl_b32 s32, s29, 1
s_add_u32 s32, s32, s30                 ; dtile
v_lshlrev_b32 v2, 4, v1""")
    X=64
    a(f"""v_and_b32 v3, 31, v1
v_lshrrev_b32 v4, 5, v1                 ; hi
s_lshl_b32 s33, s32, 5                  ; d0 = 32*dtile
s_lshl_b32 s34, s28, 6
s_lshl_b32 s35, s31, 5
s_add_u32 s34, s34, s35                 ; t0 = 64*t64 + 32*kh
v_lshlrev_b32 v5, 2, v4                 ; 4hi
v_add_u32 v6, s33, v5                   ; d0 + 4hi
s_nop 0""")
    a("s_waitcnt vmcnt(0)")
    ev_add(a,E_WF,t=(11,12))
    stamp(a,20)
    a("s_barrier")
    stamp(a,21)
    a(f"""s_lshl_b32 s35, s31, 11                 ; kh*2048
v_add_u32 v9, s35, v2                   ; H frag address inside a step
v_add_u32 v10, 0x10000, v9
v_add_u32 v13, 0x20000, v9""")
    ACC=16; FB=48
    def reads(j):
        b=FB+8*(j%2); sl=(j%HSLOTS)*4096+L_HR
        av=[9,10,13][sl>>16]
        o=sl&0xffff
        return [f"ds_read_b128 v[{b}:{b+3}], v{av} offset:{o}", f"ds_read_b128 v[{b+4}:{b+7}], v{av} offset:{o+1024}"]
    stamp(a,22)
    a("s_barrier")
    stamp(a,23)
    for l in reads(0): a(l)
    for j in range(43):
        b=FB+8*(j%2)
        if j+1<43:
            if (j+1)%GRP==0: a("s_barrier")
            for l in reads(j+1): a(l)
            a("s_waitcnt lgkmcnt(2)")
        else: a("s_waitcnt lgkmcnt(0)")
        for tt in range(2):
            c="0" if j==0 else f"v[{ACC+16*tt}:{ACC+16*tt+15}]"
            a(f"v_mfma_f32_32x32x16_bf16 v[{ACC+16*tt}:{ACC+16*tt+15}], v[{wf_reg(PERM[j])}:{wf_reg(PERM[j])+3}], v[{b+4*tt}:{b+4*tt+3}], {c}")
        if j==30:
            srd(a,SRD_A,P_B2,1024)
            srd(a,SRD_OUT,P_OUT,2097152)
            a(f"""v_lshlrev_b32 v11, 2, v6
s_mov_b32 s35, {OFF_FING}
v_lshlrev_b32 v12, 1, v6""")
            for g in range(4):
                a(f"buffer_load_dwordx4 v[{GBR+4*g}:{GBR+3+4*g}], v11, s[{SRD_WS}:{SRD_WS+3}], s35 offen offset:{32*g}{BS}")
                a(f"buffer_load_dwordx2 v[{B2R+2*g}:{B2R+1+2*g}], v12, s[{SRD_A}:{SRD_A+3}], 0 offen offset:{16*g}")
    stamp(a,24)
    a(f"""s_lshl_b32 s35, s{S_WAVE}, 12
s_add_u32 s35, s35, {L_EX2}
v_add_u32 v4, s35, v2
s_xor_b32 s35, s{S_WAVE}, 2
s_lshl_b32 s35, s35, 12
s_add_u32 s35, s35, {L_EX2}
v_add_u32 v5, s35, v2""")
    lk=a.lab("L_kh1"); lj=a.lab("L_khj")
    a(f"s_cmp_eq_u32 s31, 0\ns_cbranch_scc0 {lk}")
    for g in range(4): a(f"ds_write_b128 v4, v[{ACC+16+4*g}:{ACC+16+4*g+3}] offset:{1024*g}")
    a(f"s_branch {lj}\n{lk}:")
    for g in range(4): a(f"ds_write_b128 v4, v[{ACC+4*g}:{ACC+4*g+3}] offset:{1024*g}")
    for i in range(16): a(f"v_mov_b32 v{ACC+i}, v{ACC+16+i}")
    a(f"{lj}:\ns_waitcnt lgkmcnt(0)\ns_barrier")
    for g in range(4): a(f"ds_read_b128 v[{48+4*g}:{48+4*g+3}], v5 offset:{1024*g}")
    a(f"""s_and_b32 s35, s{S_WAVE}, 1
s_lshl_b32 s35, s35, 5                  ; 32*dt
v_lshrrev_b32 v7, 5, v1
v_lshlrev_b32 v7, 2, v7
v_add_u32 v7, s35, v7
v_lshlrev_b32 v7, 7, v7
s_lshl_b32 s35, s31, 6
v_lshlrev_b32 v8, 1, v3
v_add3_u32 v7, v7, v8, s35
v_add_u32 v7, {L_RES}, v7
s_waitcnt lgkmcnt(0)""")
    for r in range(16): a(f"ds_read_u16 v{80+r}, v7 offset:{((r&3)+8*(r>>2))*128}")
    a("s_waitcnt vmcnt(0) lgkmcnt(0)")
    for r in range(16):
        g=r>>2; k=r&3
        b2r=B2R+2*g+(k>>1)
        unp = f"v_lshlrev_b32 v2, 16, v{b2r}" if k%2==0 else f"v_and_b32 v2, 0xffff0000, v{b2r}"
        a(f"""v_add_f32 v{ACC+r}, v{ACC+r}, v{48+r}
{unp}
v_lshlrev_b32 v4, 16, v{80+r}
v_add_f32 v{ACC+r}, v{ACC+r}, v2
v_fma_f32 v{ACC+r}, v{GBR+r}, v{ACC+r}, v4""")
    for p in range(8): a(f"v_cvt_pk_bf16_f32 v{64+p}, v{ACC+2*p}, v{ACC+2*p+1}")
    a(f"""s_nop 1
v_permlane32_swap_b32 v64, v66
v_permlane32_swap_b32 v65, v67
v_permlane32_swap_b32 v68, v70
v_permlane32_swap_b32 v69, v71
v_add_u32 v8, s34, v3
v_lshlrev_b32 v8, 10, v8                ; t*1024
v_lshrrev_b32 v4, 5, v1
v_lshlrev_b32 v4, 4, v4                 ; hi*16B
s_lshl_b32 s35, s33, 1
v_add3_u32 v8, v8, v4, s35
buffer_store_dwordx4 v[64:67], v8, s[{SRD_OUT}:{SRD_OUT+3}], 0 offen
buffer_store_dwordx4 v[68:71], v8, s[{SRD_OUT}:{SRD_OUT+3}], 0 offen offset:32""")
    stamp(a,25)
    if STAMPS:
        a("s_waitcnt vmcnt(0)")
        stamp(a,26)

def h_p4_tail(a):
    a("s_barrier")

def dump_lds(a, nbytes):
    a(f"""s_mul_i32 s30, s2, {LDS_BYTES}
s_add_u32 s30, s30, {OFF_DBG}
v_lshlrev_b32 v2, 4, v0""")
    n=(nbytes+8191)//8192
    for i in range(n):
        a(f"""ds_read_b128 v[4:7], v2 offset:0
s_waitcnt lgkmcnt(0)
buffer_store_dwordx4 v[4:7], v2, s[{SRD_WS}:{SRD_WS+3}], s30 offen
v_add_u32 v2, 8192, v2
s_waitcnt vmcnt(0)""")

def build(stop):
    a=Asm()
    prologue(a)
    m_p1(a)
    m_conv(a)
    m_epilogue(a)
    m_p3(a)
    p3_publish(a,'M')
    m_p4(a)
    a("s_branch L_fin")
    h_p1(a)
    h_side(a)
    h_p3(a)
    p3_publish(a,'H')
    h_p4(a)
    h_p4_tail(a)
    a("L_fin:")
    if STAMPS: a("s_memrealtime s[78:79]\ns_waitcnt lgkmcnt(0)\nv_writelane_b32 v254, s78, 61")
    dump_stamps(a,64)
    a("L_end:\ns_endpgm")
    return finish(a, f"; @launch grid=(256,1,1) block=(512,1,1) lds={LDS_BYTES}")

if __name__=="__main__":
    stop=int(sys.argv[1]) if len(sys.argv)>1 else 99
    if len(sys.argv)>3 and sys.argv[3]=='st': STAMPS=True
    out=sys.argv[2] if len(sys.argv)>2 else "out.s"
    open(out,"w").write(build(stop))
```
